```python
import torch

def _softmax(x, axis=-1):
    return torch.softmax(x, dim=axis)
def _gelu(x):
    return torch.nn.functional.gelu(x, approximate="tanh")
def _silu(x):
    return torch.nn.functional.silu(x)
def _sigmoid(x):
    return torch.sigmoid(x)
def _layernorm(x, axis=-1, eps=1e-5):
    m = x.mean(dim=axis, keepdim=True)
    v = x.var(dim=axis, keepdim=True, unbiased=False)
    return (x - m) / torch.sqrt(v + eps)
def _scatter_add(tgt, idx, src, axis=0):
    return tgt.clone().index_add_(axis, idx, src)
def _segment_sum(src, seg, n):
    out = torch.zeros((n,) + src.shape[1:], dtype=src.dtype)
    return out.index_add_(0, seg, src)
def _pad(x, pw):
    flat = tuple(v for pair in reversed(pw) for v in pair)
    return torch.nn.functional.pad(x, flat)

kernel_name = 'standalone__mha_softmax__near_ridge'

def setup_inputs():

    _w = (lambda a: (lambda t: t.to(torch.bfloat16) if t.is_floating_point() else t)(torch.as_tensor(a)))
    B, H, Sq, Sk, D = 16, 32, 624, 624, 128
    return {
        "q": _w((lambda *s: torch.randn(*s, dtype=torch.bfloat16) * 0.8)(B, H, Sq, D)),
        "k": _w((lambda *s: torch.randn(*s, dtype=torch.bfloat16) * 0.8)(B, H, Sk, D)),
        "v": _w((lambda *s: torch.randn(*s, dtype=torch.bfloat16) * 0.05)(B, H, Sk, D)),
    }

def reference(q, k, v):
    scale = q.shape[-1] ** -0.5
    scores = torch.einsum("bhqd,bhkd->bhqk", q, k) * scale
    p = _softmax(scores, axis=-1)
    return torch.einsum("bhqk,bhkd->bhqd", p, v)
```

```python
import re

def R(f, lo, n=1):
    return [f"{f}{lo+i}" for i in range(n)]
def rs(f, lo, n=1):
    return f"{f}{lo}" if n == 1 else f"{f}[{lo}:{lo+n-1}]"

COST = dict(mfma=8, valu=4, trans=8, pk=4, lds_r=4, lds_w64=12, lds_w128=20, dma=12, vload=12, vstore=20,
            salu=4, wait=4, barrier=4, nop=4, branch=4, label=0, perm=4)

class I:
    __slots__ = ("text", "kind", "rd", "wr", "aff", "ab", "c", "note", "gap", "need")
    def __init__(self, text, kind, rd=(), wr=(), aff=0, ab=(), c=(), note="", need=()):
        self.text = text; self.kind = kind
        self.rd = list(rd); self.wr = list(wr); self.aff = aff
        self.ab = list(ab); self.c = list(c)
        self.note = note; self.gap = None
        self.need = list(need)
    def shifted(self, d):
        def sh(l):
            return [(r, (t[0], t[1] + d) + tuple(t[2:]) if t is not None and t[1] is not None else t) for r, t in l]
        n = I(self.text, self.kind, sh(self.rd), sh(self.wr), self.aff + d, self.ab, self.c, self.note, sh(self.need))
        n.gap = self.gap
        return n
    def copy(self):
        return self.shifted(0)
    def __repr__(self):
        return self.text

def tagged(regs, tag):
    if tag is None:
        return [(r, None) for r in regs]
    return [(r, tag + (i,)) for i, r in enumerate(regs)]

VALU_KINDS = ("valu", "trans", "pk", "perm")
LDS_KINDS = ("lds_r", "lds_w64", "lds_w128")
VMEM_KINDS = ("dma", "vload", "vstore")

def check_dataflow(seq):
    cur = {}
    errs = []
    def ab(t, j):
        return None if t is None else ((t[0], None if t[1] is None else t[1] + j) + tuple(t[2:]))
    for idx, (ins, j, live) in enumerate(seq):
        if live:
            for r, t in ins.rd + ins.need:
                if t is None: continue
                want = ab(t, j)
                if cur.get(r) != want:
                    errs.append(f"[{idx}] job{j} '{ins.text}' reads {r}: want {want} has {cur.get(r)}")
        for r, t in ins.wr:
            cur[r] = ab(t, j)
    return errs

def states(ins):
    if ins.kind == "label": return 0
    if ins.kind == "nop":
        return int(ins.text.split()[1]) + 1
    return 1

def hazard_need(p, c):
    need = 0
    pw = {r for r, _ in p.wr}; pr = {r for r, _ in p.rd}
    cw = {r for r, _ in c.wr}; cr = {r for r, _ in c.rd}
    if p.kind in VALU_KINDS:
        if c.kind == "mfma" and pw & cr: need = max(need, 2)
        if c.kind == "perm" and pw & cr: need = max(need, 2)
        if p.kind == "trans" and c.kind in ("valu", "pk", "perm") and pw & cr: need = max(need, 1)
        if "readfirstlane" in c.text or "readlane" in c.text:
            if pw & cr: need = max(need, 1)
        sw = {r for r in pw if r[0] == "s" or r == "vcc"}
        if sw & cr:
            if c.kind in VMEM_KINDS: need = max(need, 5)
            elif c.kind in VALU_KINDS: need = max(need, 2)
            else: need = max(need, 1)
    if p.kind == "mfma":
        if c.kind == "mfma":
            if pw & set(c.ab): need = max(need, 8)
            if pw & set(c.c) and [r for r, _ in p.wr] != list(c.c): need = max(need, 6)
        else:
            if pw & (cr | cw): need = max(need, 8)
            if c.kind in VALU_KINDS and set(p.c) & cw: need = max(need, 3)
    if p.kind == "salu" and "m0" in pw and c.kind == "dma": need = max(need, 1)
    if p.kind in ("vstore", "lds_w64", "lds_w128") and pr & cw: need = max(need, 2)
    return need

def insert_nops(segs_paths, verbose=False):
    total = 0
    changed = True
    while changed:
        changed = False
        for path in segs_paths:
            flat = [(seg, k) for seg in path for k in range(len(seg))]
            for n in range(len(flat)):
                seg, k = flat[n]
                c = seg[k]
                if c.kind in ("label", "nop", "wait", "barrier", "branch"): continue
                dist = 0
                short = 0
                m = n - 1
                while m >= 0 and dist < 8:
                    p = flat[m][0][flat[m][1]]
                    nd = hazard_need(p, c)
                    if nd > dist:
                        short = max(short, nd - dist)
                        why = p
                    dist += states(p)
                    m -= 1
                if short:
                    seg.insert(k, I(f"s_nop {short-1}", "nop", note=f"hz: {why.text[:40]}"))
                    total += short
                    if verbose: print("nop", short, "before", c.text, "after", why.text)
                    changed = True
                    break
            if changed: break
    return total

def insert_waits(segs_paths):
    req = {}
    for path in segs_paths:
        flat = [ins for seg in path for ins in seg]
        vmq = []; lgq = []
        for ins in flat:
            used = {r for r, _ in ins.rd} | {r for r, _ in ins.need} | {r for r, _ in ins.wr}
            if ins.kind == "wait" and ins.note == "full":
                vmq = []; lgq = []; continue
            nv = nl = None
            for qi in range(len(vmq) - 1, -1, -1):
                if vmq[qi] & used:
                    nv = len(vmq) - 1 - qi; break
            for qi in range(len(lgq) - 1, -1, -1):
                if lgq[qi] & used:
                    nl = len(lgq) - 1 - qi; break
            cur = req.setdefault(id(ins), [None, None])
            if nv is not None: cur[0] = nv if cur[0] is None else min(cur[0], nv)
            if nl is not None: cur[1] = nl if cur[1] is None else min(cur[1], nl)
            if nv is not None: vmq = vmq[len(vmq) - nv:] if nv else []
            if nl is not None: lgq = lgq[len(lgq) - nl:] if nl else []
            if ins.kind in VMEM_KINDS:
                vmq.append(set() if ins.kind == "vstore" else {r for r, _ in ins.wr})
            elif ins.kind in LDS_KINDS:
                lgq.append({r for r, _ in ins.wr if r[0] in "va" and r[1:].isdigit()})
    done = set()
    n = 0
    for path in segs_paths:
        for seg in path:
            if id(seg) in done: continue
            done.add(id(seg))
            out = []
            for ins in seg:
                v, l = req.get(id(ins), (None, None))
                if v is not None or l is not None:
                    parts = []
                    if v is not None:
                        assert v <= 62
                        parts.append(f"vmcnt({v})")
                    if l is not None:
                        l = min(l, 14)
                        parts.append(f"lgkmcnt({l})")
                    if parts:
                        k = len(out); v2, l2 = v, l
                        ok = False
                        while k > 0 and len(out) - k < 6 and ins.kind != "barrier":
                            p = out[k - 1]
                            if p.kind == "mfma": ok = True; break
                            if p.kind in ("label", "branch", "barrier", "wait", "salu", "nop"): break
                            if p.kind in VMEM_KINDS and v2 is not None:
                                if v2 == 0: break
                                v2 -= 1
                            if p.kind in LDS_KINDS and l2 is not None:
                                if l2 == 0: break
                                l2 -= 1
                            k -= 1
                        if ok:
                            parts = ([f"vmcnt({v2})"] if v2 is not None else []) + ([f"lgkmcnt({l2})"] if l2 is not None else [])
                            out.insert(k, I("s_waitcnt " + " ".join(parts), "wait"))
                        else:
                            out.append(I("s_waitcnt " + " ".join(parts), "wait"))
                        n += 1
                out.append(ins)
            seg[:] = out
    return n

def estimate(seq):
    t = 0
    vec_free = 0
    pipe_free = 0
    last_valu = False
    for ins in seq:
        k = ins.kind
        if k == "label": continue
        if k == "mfma":
            s = max(t, vec_free, pipe_free)
            pipe_free = s + 16; vec_free = s + 8; t = s + 4; last_valu = False
        elif k == "pk":
            s = max(t, vec_free, pipe_free)
            t = vec_free = s + 4; pipe_free = max(pipe_free, s + 16); pipe_free = s + 4; last_valu = True
        elif k in VALU_KINDS:
            s = max(t, vec_free); t = vec_free = s + COST[k]; last_valu = True
        elif k in LDS_KINDS or k in VMEM_KINDS:
            s = max(t, vec_free) + (8 if last_valu else 0); t = vec_free = s + COST[k]; last_valu = False
        elif k == "nop":
            t += 4 * states(ins)
        elif k == "barrier":
            t += 24
        else:
            t += 4
    return max(t, pipe_free)
```

```python
import sys, struct
from core import *

NAME = "standalone__mha_softmax__near_ridge"
HEAD = 624 * 256
TOTAL = 512 * HEAD
OOB = 0x40000000
NS = 5
KRING = 0
VRING = NS * 8192
STAGE = 2 * NS * 8192
LDS_BYTES = STAGE + 4 * 20480
NT = 5
NSTEP = 20
JOBSTRIDE = 128 * HEAD
CSCALE = 0.08838834764831845 * 1.4426950408889634
THRESH = float(2 ** 30)
def f32bits(x): return struct.unpack("<I", struct.pack("<f", x))[0]

class Cfg:
    pk_epi = False
    nt_q = False
    nt_o = False
cfg = Cfg()

V_TMP0 = 0
V_VOFF, V_KADDR, V_VA0, V_VA1, V_LIN, V_OW0, V_OW1, V_QADDR = 1, 2, 3, 4, 5, 6, 7, 8
V_U0, V_U1 = 9, 10
V_QS = [12, 16]
V_RCP = 20
V_MX = 26
V_NEGM = 36
V_S = 56
V_O = 96
A_Q = 0
A_K = 80
A_V = 144
A_L = 208
A_ONE = 228
A_RB = 232
def Oreg(t, dt): return V_O + 32 * t + 4 * dt
def Sreg(t, kt): return V_S + 8 * t + 4 * kt
def Nreg(t): return V_NEGM + 4 * t
def Qreg(t, s): return A_Q + 16 * t + 4 * s
def Kreg(b, kt, s): return A_K + 32 * b + 16 * kt + 4 * s
def Vreg(b, dt): return A_V + 32 * b + 4 * dt
def Lreg(t): return A_L + 4 * t

S_Q, S_K, S_V, S_O = 8, 12, 16, 20
S_W = 24
S_JOB = 25
S_KVC, S_KVN, S_KV19 = 26, 27, 28
S_QN, S_QN4, S_QC, S_QC4, S_OP, S_OP4 = 29, 30, 31, 32, 33, 34
S_LW = 35
S_LST = 36
S_C = 37
S_MASK = 38
S_THR = 39
S_FACC = 40
S_FAIL = 42
S_PBIT, S_CBIT = 43, 44
S_T0, S_T1, S_T2, S_T3 = 45, 46, 47, 48
S_W19 = 49
S_T4OFF = 50
S_QREL = 51
S_H0 = 52
S_X0 = 54

def srd(b): return f"s[{b}:{b+3}]"

def salu(text, rd=(), wr=(), aff=0): return I(text, "salu", rd, wr, aff)
def valu(text, rd=(), wr=(), aff=0, kind="valu"): return I(text, kind, rd, wr, aff)

def mfma(dF, d, aF, a, bF, b, cF, c, dtag, atag, btag, ctag, k16=False, aff=0):
    n = 2 if k16 else 4
    op = "v_mfma_f32_16x16x16_bf16" if k16 else "v_mfma_f32_16x16x32_bf16"
    ctext = "0" if c is None else rs(cF, c, 4)
    A = R(aF, a, n); B = R(bF, b, n); C = [] if c is None else R(cF, c, 4)
    return I(f"{op} {rs(dF,d,4)}, {rs(aF,a,n)}, {rs(bF,b,n)}, {ctext}", "mfma",
             tagged(A, atag) + tagged(B, btag) + tagged(C, ctag), tagged(R(dF, d, 4), dtag), aff, ab=A + B, c=C)

def pv_mfma(j, i, t, dt):
    k16 = i == NSTEP - 1
    c = None if i == 0 else Oreg(t, dt)
    return mfma("v", Oreg(t, dt), "a", Vreg(i & 1, dt), "v", Sreg(t, 0), "v", c,
                ("O", j, i, t, dt), ("Vf", j, i, dt), ("P", j, i, t), ("O", j, i - 1, t, dt), k16, aff=j)
def sum_mfma(j, i, t):
    k16 = i == NSTEP - 1
    c = None if i == 0 else Lreg(t)
    return mfma("a", Lreg(t), "a", A_ONE, "v", Sreg(t, 0), "a", c,
                ("L", j, i, t), ("one", None), ("P", j, i, t), ("L", j, i - 1, t), k16, aff=j)
def qk_mfma(j, i, t, kt, s):
    if s == 0:
        c = None if i == 0 else Nreg(t); ctag = ("negm", j, t)
    else:
        c = Sreg(t, kt); ctag = ("S", j, i, t, kt, s - 1)
    return mfma("v", Sreg(t, kt), "a", Kreg(i & 1, kt, s), "a", Qreg(t, s), "v", c,
                ("S", j, i, t, kt, s), ("Kf", j, i, kt, s), ("Q", j, t, s), ctag, aff=j)

def k_read(j, i, kt, s):
    off = KRING + (i % NS) * 8192 + kt * 4096 + (s >> 1) * 1024 + (s & 1) * 512
    r = Kreg(i & 1, kt, s)
    return I(f"ds_read_b128 {rs('a',r,4)}, v{V_KADDR} offset:{off}", "lds_r",
             [(f"v{V_KADDR}", None), (f"KV{i%NS}", ("Kv", j, i))], tagged(R("a", r, 4), ("Kf", j, i, kt, s)), j)
def v_read(j, i, dt, half):
    off = (i % NS) * 8192 + half * 4096 + (dt >> 2) * 1024 + ((dt >> 1) & 1) * 512
    r = Vreg(i & 1, dt) + 2 * half
    va = V_VA1 if dt & 1 else V_VA0
    wr = [(f"a{r+x}", ("Vf", j, i, dt, 2 * half + x)) for x in range(2)]
    return I(f"ds_read_b64_tr_b16 {rs('a',r,2)}, v{va} offset:{off}", "lds_r",
             [(f"v{va}", None), (f"VV{i%NS}", ("Vv", j, i))], wr, j)
def q_read(j, t, s):
    off = t * 4096 + (s >> 1) * 1024 + (s & 1) * 512
    r = Qreg(t, s)
    need = [(f"ST{t*4+2*rg+(s>>1)}", ("Qs", j, t * 4 + 2 * rg + (s >> 1))) for rg in range(2)]
    return I(f"ds_read_b128 {rs('a',r,4)}, v{V_QADDR} offset:{off}", "lds_r",
             [(f"v{V_QADDR}", None)] + need, tagged(R("a", r, 4), ("Q", j, t, s)), j)

def kv_dma(which, j, tile, a):
    st = S_T0 if which == "K" else S_T1
    sr = S_K if which == "K" else S_V
    ring = KRING if which == "K" else VRING
    out = []
    stag = ("so" + which, j, tile)
    if a == 0:
        if tile == NSTEP - 1:
            assert j == 0
            out.append(salu(f"s_mov_b32 s{st}, s{S_KV19}", [(f"s{S_KV19}", ("kv19", j))], [(f"s{st}", stag)], j))
        else:
            base = S_KVC if j == 0 else S_KVN
            out.append(salu(f"s_add_u32 s{st}, s{base}, {tile*8192}", [(f"s{base}", ("kvb", j))], [(f"s{st}", stag)], j))
    else:
        out.append(None)
    mtag = ("m0" + which, j, tile, a)
    out.append(salu(f"s_add_u32 m0, s{S_LW}, {ring + (tile % NS) * 8192 + a * (1024 - 128)}", [], [("m0", mtag)], j))
    res = ("KR" if which == "K" else "VR") + f"{tile % NS}_{a}"
    free = ("KF" if which == "K" else "VF") + f"{tile % NS}"
    o = " offset:128" if a else ""
    out.append(I(f"buffer_load_dwordx4 v{V_VOFF}, {srd(sr)}, s{st} offen{o} lds", "dma",
                 [("m0", mtag), (f"s{st}", stag), (f"v{V_VOFF}", None), (free, ("free" + which, j, tile))],
                 [(res, (which + "d", j, tile, a))], j))
    return out

def barrier(i):
    kj, kt_ = (0, i + 1) if i + 1 < NSTEP else (1, 0)
    need = [(f"KR{kt_%NS}_{a}", ("Kd", kj, kt_, a)) for a in range(2)] + [(f"VR{i%NS}_{a}", ("Vd", 0, i, a)) for a in range(2)]
    nkt = 1 if i == NSTEP - 1 else 2
    for kt in range(nkt):
        for s in range(4): need += [(r, None) for r in R("a", Kreg(i & 1, kt, s), 4)]
    for dt in range(8): need += [(r, None) for r in R("a", Vreg((i - 1) & 1, dt), 4)]
    fk = i + NS; fv = i - 1 + NS
    wr = [(f"KV{kt_%NS}", ("Kv", kj, kt_)), (f"VV{i%NS}", ("Vv", 0, i)),
          (f"KF{fk%NS}", ("freeK", fk // NSTEP, fk % NSTEP)), (f"VF{fv%NS}", ("freeV", fv // NSTEP, fv % NSTEP)),
          (f"KV{i%NS}", ("dead", None)), (f"VV{(i-1)%NS}", ("dead", None))]
    return I("s_barrier", "barrier", [], wr, 0, need=need)

def blk_goff(b):
    return ((b >> 1) & 1) * 2048 + (b & 1) * 128

def q_dma(j, b, qbase, qbase4, basetag):
    t = b >> 2
    out = []
    stag = ("soQ", j, t)
    if b & 3 == 0:
        if t == 4:
            out.append(salu(f"s_mov_b32 s{S_T2}, s{qbase4}", [(f"s{qbase4}", ("qb4", j))], [(f"s{S_T2}", stag)], j))
        else:
            out.append(salu(f"s_add_u32 s{S_T2}, s{qbase}, {t*4096}", [(f"s{qbase}", ("qb", j))], [(f"s{S_T2}", stag)], j))
    else:
        out.append(None)
    go = blk_goff(b)
    mtag = ("m0Q", j, b)
    out.append(salu(f"s_add_u32 m0, s{S_LST}, {b*1024 - go}", [], [("m0", mtag)], j))
    o = f" offset:{go}" if go else ""
    nt = " nt" if cfg.nt_q else ""
    out.append(I(f"buffer_load_dwordx4 v{V_VOFF}, {srd(S_Q)}, s{S_T2} offen{o}{nt} lds", "dma",
                 [("m0", mtag), (f"s{S_T2}", stag), (f"v{V_VOFF}", None), (f"ST{b}", ("Ofree", j - 2, b))],
                 [(f"ST{b}", ("Qr", j, b))], j))
    return out

def q_scale(j, b, buf):
    q = V_QS[buf]
    rd = I(f"ds_read_b128 {rs('v',q,4)}, v{V_LIN} offset:{b*1024}", "lds_r",
           [(f"v{V_LIN}", None), (f"ST{b}", ("Qr", j, b))], tagged(R("v", q, 4), ("qs0", j, b)), j)
    vs = []
    for x in range(4):
        r = q + x; u = V_U0 if x & 1 == 0 else V_U1
        vs.append(valu(f"v_lshlrev_b32_e32 v{u}, 16, v{r}", [(f"v{r}", ("qs0", j, b, x))], [(f"v{u}", ("u0", j, b, x))], j))
        vs.append(valu(f"v_and_b32_e32 v{r}, s{S_MASK}, v{r}", [(f"v{r}", ("qs0", j, b, x))], [(f"v{r}", ("qs1", j, b, x))], j))
        vs.append(valu(f"v_mul_f32_e32 v{u}, s{S_C}, v{u}", [(f"v{u}", ("u0", j, b, x))], [(f"v{u}", ("u1", j, b, x))], j))
        vs.append(valu(f"v_mul_f32_e32 v{r}, s{S_C}, v{r}", [(f"v{r}", ("qs1", j, b, x))], [(f"v{r}", ("qs2", j, b, x))], j))
        vs.append(valu(f"v_cvt_pk_bf16_f32 v{r}, v{u}, v{r}", [(f"v{u}", ("u1", j, b, x)), (f"v{r}", ("qs2", j, b, x))],
                       [(f"v{r}", ("qs3", j, b, x))], j))
    wr = I(f"ds_write_b128 v{V_LIN}, {rs('v',q,4)} offset:{b*1024}", "lds_w128",
           [(f"v{V_LIN}", None)] + tagged(R("v", q, 4), ("qs3", j, b)), [(f"ST{b}", ("Qs", j, b))], j)
    return rd, vs, wr

def o_drain(j, b, buf):
    t = b >> 2
    r = A_RB + 4 * buf
    stag = ("soO", j, t)
    so = None
    if b & 3 == 0:
        if t == 4:
            so = salu(f"s_mov_b32 s{S_T3}, s{S_OP4}", [(f"s{S_OP4}", ("qb4", j))], [(f"s{S_T3}", stag)], j)
        else:
            so = salu(f"s_add_u32 s{S_T3}, s{S_OP}, {t*4096}", [(f"s{S_OP}", ("qb", j))], [(f"s{S_T3}", stag)], j)
    a = b & 1
    rdeps = [(f"SO{t}_{dt}", ("Ow", j, t, dt)) for dt in range(4 * a, 4 * a + 4)]
    rd = I(f"ds_read_b128 {rs('a',r,4)}, v{V_LIN} offset:{b*1024}", "lds_r",
           [(f"v{V_LIN}", None)] + rdeps, tagged(R("a", r, 4), ("rb", j, b)), j)
    go = blk_goff(b)
    o = f" offset:{go}" if go else ""
    nt = " nt" if cfg.nt_o else ""
    st = I(f"buffer_store_dwordx4 {rs('a',r,4)}, v{V_VOFF}, {srd(S_O)}, s{S_T3} offen{o}{nt}", "vstore",
           tagged(R("a", r, 4), ("rb", j, b)) + [(f"s{S_T3}", stag), (f"v{V_VOFF}", None)], [], j, note=f"free{b}")
    return so, rd, st

def exp_ins(j, i, t, kt, r, srctag):
    reg = Sreg(t, kt) + r
    return valu(f"v_exp_f32_e32 v{reg}, v{reg}", [(f"v{reg}", srctag)], [(f"v{reg}", ("E", j, i, t, kt, r))], j, "trans")
def cvt_ins(j, i, t, p):
    kt = p >> 1; r = (p & 1) * 2
    a = Sreg(t, kt) + r; d = Sreg(t, 0) + p
    return valu(f"v_cvt_pk_bf16_f32 v{d}, v{a}, v{a+1}",
                [(f"v{a}", ("E", j, i, t, kt, r)), (f"v{a+1}", ("E", j, i, t, kt, r + 1))], [(f"v{d}", ("P", j, i, t, p))], j)

def max_chain(j, t):
    m0 = V_MX + 2 * t; m1 = m0 + 1
    s = Sreg(t, 0)
    def st(x): return (f"v{s+x}", ("S", j, 0, t, x >> 2, 3, x & 3))
    T = lambda n: ("mx", j, t, n)
    ch = [
        valu(f"v_max3_f32 v{m0}, v{s}, v{s+1}, v{s+2}", [st(0), st(1), st(2)], [(f"v{m0}", T(0))], j),
        valu(f"v_max3_f32 v{m0}, v{m0}, v{s+3}, v{s+4}", [(f"v{m0}", T(0)), st(3), st(4)], [(f"v{m0}", T(1))], j),
        valu(f"v_max3_f32 v{m0}, v{m0}, v{s+5}, v{s+6}", [(f"v{m0}", T(1)), st(5), st(6)], [(f"v{m0}", T(2))], j),
        valu(f"v_max_f32_e32 v{m1}, v{m0}, v{s+7}", [(f"v{m0}", T(2)), st(7)], [(f"v{m1}", T(3))], j),
        valu(f"v_max_f32_e32 v{m0}, v{m0}, v{s+7}", [(f"v{m0}", T(2)), st(7)], [(f"v{m0}", T(3))], j),
        valu(f"v_permlane32_swap_b32_e32 v{m0}, v{m1}", [(f"v{m0}", T(3)), (f"v{m1}", T(3))], [(f"v{m0}", T(4)), (f"v{m1}", T(5))], j, "perm"),
        valu(f"v_max_f32_e32 v{m0}, v{m0}, v{m1}", [(f"v{m0}", T(4)), (f"v{m1}", T(5))], [(f"v{m0}", T(6))], j),
        valu(f"v_mov_b32_e32 v{m1}, v{m0}", [(f"v{m0}", T(6))], [(f"v{m1}", T(6))], j),
        valu(f"v_permlane16_swap_b32_e32 v{m0}, v{m1}", [(f"v{m0}", T(6)), (f"v{m1}", T(6))], [(f"v{m0}", T(7)), (f"v{m1}", T(8))], j, "perm"),
    ]
    for x in range(4):
        n = Nreg(t) + x
        ch.append(valu(f"v_min_f32_e64 v{n}, -v{m0}, -v{m1}", [(f"v{m0}", T(7)), (f"v{m1}", T(8))], [(f"v{n}", ("negm", j, t, x))], j))
    adds = {}
    for x in range(8):
        n = Nreg(t)
        adds[(x >> 2, x & 3)] = valu(f"v_add_f32_e32 v{s+x}, v{n}, v{s+x}", [(f"v{n}", ("negm", j, t, 0)), st(x)],
                                     [(f"v{s+x}", ("Sm", j, t, x))], j)
    return ch, adds

def epilogue(j, t):
    L = NSTEP - 1
    rc = V_RCP + t
    head = [
        valu(f"v_accvgpr_read_b32 v{rc}, a{Lreg(t)}", [(f"a{Lreg(t)}", ("L", j, L, t, 0))], [(f"v{rc}", ("l", j, t))], j),
        valu(f"v_cmp_nge_f32_e32 vcc, s{S_THR}, v{rc}", [(f"v{rc}", ("l", j, t))], [("vcc", ("chk", j, t))], j),
        valu(f"v_rcp_f32_e32 v{rc}, v{rc}", [(f"v{rc}", ("l", j, t))], [(f"v{rc}", ("rl", j, t))], j, "trans"),
    ]
    acc = salu(f"s_or_b64 s[{S_FACC}:{S_FACC+1}], s[{S_FACC}:{S_FACC+1}], vcc", [("vcc", ("chk", j, t)), ("facc", ("facc", j, t - 1))],
               [("facc", ("facc", j, t)), ("scc", None)], j)
    per = []
    for dt in range(8):
        o = Oreg(t, dt)
        vs = []
        for x in range(4):
            vs.append(valu(f"v_mul_f32_e32 v{o+x}, v{rc}, v{o+x}", [(f"v{rc}", ("rl", j, t)), (f"v{o+x}", ("O", j, L, t, dt, x))],
                           [(f"v{o+x}", ("On", j, t, dt, x))], j))
        vs.append(valu(f"v_cvt_pk_bf16_f32 v{o}, v{o}, v{o+1}", [(f"v{o}", ("On", j, t, dt, 0)), (f"v{o+1}", ("On", j, t, dt, 1))],
                       [(f"v{o}", ("Ob", j, t, dt, 0))], j))
        vs.append(valu(f"v_cvt_pk_bf16_f32 v{o+1}, v{o+2}, v{o+3}", [(f"v{o+2}", ("On", j, t, dt, 2)), (f"v{o+3}", ("On", j, t, dt, 3))],
                       [(f"v{o+1}", ("Ob", j, t, dt, 1))], j))
        ow = V_OW1 if dt & 1 else V_OW0
        off = t * 4096 + (dt >> 2) * 1024 + ((dt >> 1) & 1) * 512
        a = dt >> 2
        w = I(f"ds_write_b64 v{ow}, {rs('v',o,2)} offset:{off}", "lds_w64",
              [(f"v{ow}", None)] + tagged(R("v", o, 2), ("Ob", j, t, dt)),
              [(f"SO{t}_{dt}", ("Ow", j, t, dt)), (f"ST{t*4+a}", ("Ob", j)), (f"ST{t*4+2+a}", ("Ob", j))], j)
        per.append((vs, w))
    return head, acc, per

def fail_commit(j):
    return [
        salu(f"s_cmp_lg_u64 s[{S_FACC}:{S_FACC+1}], 0", [("facc", ("facc", j, 4))], [("scc", ("fc", j))], j),
        salu(f"s_cselect_b32 s{S_X0}, s{S_PBIT}, 0", [("scc", ("fc", j)), (f"s{S_PBIT}", ("bit", j))], [(f"s{S_X0}", None)], j),
        salu(f"s_or_b32 s{S_FAIL}, s{S_FAIL}, s{S_X0}", [], [("scc", None)], j),
        salu(f"s_mov_b64 s[{S_FACC}:{S_FACC+1}], 0", [], [("facc", ("facc", j + 1, -1))], j),
    ]

class Sched:
    def __init__(self):
        self.sp = []
        self.sc = []; self.mem = []; self.val = []
        self.it_start = []
    def add(self, m):
        self.sp.append(m); self.sc.append([]); self.mem.append([]); self.val.append([])
        return len(self.sp) - 1
    @property
    def G(self): return len(self.sp)
    def load(self, g):
        g %= self.G
        return sum(COST[x.kind] for x in self.mem[g] + self.val[g]) + 4 * max(0, len(self.sc[g]) - 1)
    def put(self, ins, g):
        w = g // self.G
        if w: ins = ins.shifted(-w)
        gg = g % self.G
        ins.gap = gg
        if ins.kind in ("salu", "barrier"): self.sc[gg].append(ins)
        elif ins.kind in VALU_KINDS: self.val[gg].append(ins)
        else: self.mem[gg].append(ins)
        return g
    def place(self, ins, lo, hi, cap=8):
        assert lo <= hi, (ins.text, lo, hi)
        c = COST[ins.kind]
        if ins.kind == "salu":
            for g in range(lo, hi + 1):
                if not self.sc[g % self.G]: return self.put(ins, g)
            for g in range(lo, hi + 1):
                if self.load(g) + 4 <= cap: return self.put(ins, g)
            return self.put(ins, lo)
        for g in range(lo, hi + 1):
            l = self.load(g)
            if l + c <= cap or (c > cap and l == 0): return self.put(ins, g)
        best = min(range(lo, hi + 1), key=lambda g: self.load(g))
        return self.put(ins, best)
    def chain(self, items, lo, hi):
        tot = sum(COST[x.kind] for x, _, sd in items if not sd)
        acc = 0; g = lo; res = []
        lastside = lo
        for x, d, side in items:
            if side:
                a = max(g + d, lastside)
                lastside = self.place(x, a, min(hi, a + 3)); res.append(lastside); continue
            acc += COST[x.kind]
            lim = lo + int((hi - 4 - lo) * acc / tot)
            g = self.place(x, g + d, max(g + d, lim)); res.append(g)
        assert max(res) <= hi, (items[0][0].text, lo, hi, max(res))
        return res
    def linear(self, g0, g1):
        out = []
        for g in range(g0, g1):
            out.append(self.sp[g]); out += self.sc[g]; out += self.mem[g]; out += self.val[g]
        return out

def build_schedule():
    S = Sched()
    pv0 = {}; pvend = {}; qkend = {}; qk0 = {}
    for i in range(NSTEP):
        S.it_start.append(S.G)
        for t in range(NT):
            j, st = (-1, NSTEP - 1) if i == 0 else (0, i - 1)
            for dt in range(8):
                g = S.add(pv_mfma(j, st, t, dt))
                if dt == 0: pv0[(i, t)] = g
            pvend[(i, t)] = S.add(sum_mfma(j, st, t))
            for kt in range(1 if i == NSTEP - 1 else 2):
                for s in range(4):
                    g = S.add(qk_mfma(0, i, t, kt, s))
                    if kt == 0 and s == 0: qk0[(i, t)] = g
                qkend[(i, t, kt)] = g
    G = S.G
    its = S.it_start + [G]
    for t in range(NT):
        for d in range(2):
            pv0[(NSTEP + d, t)] = pv0[(d, t)] + G; pvend[(NSTEP + d, t)] = pvend[(d, t)] + G; qk0[(NSTEP + d, t)] = qk0[(d, t)] + G
    LAT = 5
    for i in range(NSTEP):
        S.put(barrier(i), its[i])
    def block_start(i, t):
        i2 = i + t // NT; t2 = t % NT
        return pv0[(i2, t2)]
    late = []
    for i in range(1, NSTEP):
        for t in range(NT):
            nk = 1 if i == NSTEP - 1 else 2
            hi = pv0[(i + 1, t)] - 2
            g = block_start(i, t + 1) + 1
            for kt in range(nk):
                for r in range(4):
                    g = max(g, qkend[(i, t, kt)] + LAT)
                    g = S.place(exp_ins(0, i, t, kt, r, ("S", 0, i, t, kt, 3, r)), g, hi - 3)
                    if r & 1:
                        S.place(cvt_ins(0, i, t, 2 * kt + (r >> 1)), g + 1, hi)
                    g += 2
    for i in range(NSTEP):
        lo = its[i] + 1; n = its[i + 1] - its[i]
        hi = its[i] + int(n * 0.8)
        kj, kti = (0, i + 1) if i + 1 < NSTEP else (1, 0)
        reads = []
        for dt in range(8):
            for half in range(1 if i == NSTEP - 1 else 2): reads.append(v_read(0, i, dt, half))
        for kt in range(1 if kti == NSTEP - 1 else 2):
            for s in range(4): reads.append(k_read(kj, kti, kt, s))
        dm = []
        for which, tile in (("K", i + NS), ("V", i - 1 + NS)):
            for a in range(2): dm.append(kv_dma(which, tile // NSTEP, tile % NSTEP, a))
        g = lo + 1
        step = max(4, n // 6)
        for so, m0, d in dm:
            if so is not None: S.place(so, g - 1, g + 1)
            gm = S.place(m0, g, g + 3)
            gd = S.place(d, gm + 1, gm + 6)
            g = max(gd + 1, g + step)
        cand = [g for g in range(lo, hi) if S.load(g) == 4 and not S.mem[g]]
        empty = [g for g in range(lo, hi) if S.load(g) == 0]
        need2 = max(0, len(reads) - len(cand))
        k = (need2 + 1) // 2
        pick = [empty[int((x + 0.5) * len(empty) / k)] for x in range(k)] if k else []
        slots = sorted(cand + pick + pick)[:len(reads)]
        assert len(slots) == len(reads), (i, len(slots), len(reads))
        for r, g in zip(reads, slots): S.put(r, g)
    for t in range(NT):
        g = qkend[(NSTEP - 1, t, 0)] + 1
        for s in range(4):
            g = S.place(q_read(1, t, s), g, qk0[(NSTEP, t)] - 12)
    for t in range(NT):
        ch, adds = max_chain(0, t)
        lo = qkend[(0, t, 1)] + LAT; hi = pv0[(1, t)] - 2
        items = [(x, 1 if x.kind == "perm" else 0, False) for x in ch]
        for kt in range(2):
            for r in range(4):
                items.append((adds[(kt, r)], 0, False))
                items.append((exp_ins(0, 0, t, kt, r, ("Sm", 0, t, 4 * kt + r)), 0, False))
                if r & 1: items.append((cvt_ins(0, 0, t, 2 * kt + (r >> 1)), 1, True))
        S.chain(items, lo, hi)
        head, acc, per = epilogue(0, t)
        lo = pvend[(NSTEP, t)] + LAT; hi = pv0[(NSTEP + 1, t)] - 2
        items = [(head[0], 0, False), (head[1], 0, False), (acc, 1, True), (head[2], 0, False)]
        first = True
        for vs, w in per:
            for v in vs:
                items.append((v, 1 if first else 0, False)); first = False
            items.append((w, 1, True))
        res = S.chain(items, lo, hi)
        if t == NT - 1:
            for x in fail_commit(0): S.put(x, res[2] + 1)
    g = its[2]
    stg = {}
    for b in range(20):
        so, rd, st = o_drain(-1, b, b & 3)
        g = max(g, its[2] + int(b * cfg.drain_step))
        gr = S.place(rd, g, g + 30)
        if so is not None: S.place(so, max(gr, stg.get(b - 1, 0) + 1), gr + 8)
        stg[b] = S.place(st, max(gr + 9, stg.get(b - 1, 0) + 1), gr + 40)
        st2 = S.mem[stg[b]][-1]
        st2.wr.append((f"ST{b}", ("Ofree", -1, b)))
        g = gr + 1
    return S, its, stg

def used_m0_ranges(S):
    rng = []
    for g in range(S.G):
        for x in S.sc[g]:
            if any(r == "m0" for r, _ in x.wr): rng.append([g, None])
        for x in S.mem[g]:
            if x.kind == "dma": rng[-1][1] = g
    return rng

def add_q_path(S, its, stg):
    busy = set()
    for a, b in used_m0_ranges(S): busy |= set(range(a, b + 1))
    gd = {}
    g = 0
    for b in range(20):
        so, m0, d = q_dma(1, b, S_QN, S_QN4, None)
        g = max(g, stg[b] + 1)
        while True:
            ok = None
            if g not in busy and not S.sc[g]:
                for h in range(g + 1, g + 4):
                    if h in busy: break
                    if S.load(h) == 0: ok = h; break
            if ok: break
            g += 1
        if so is not None: S.place(so, max(gd.get(b - 1, 0) + 1, g - 3), g)
        S.put(m0, g); S.put(d, ok)
        busy |= set(range(g, ok + 1))
        gd[b] = ok; g = ok + 1
    it_of = lambda g: max(i for i in range(NSTEP) if its[i] <= g)
    assert it_of(gd[19]) <= NSTEP - NS, "Q dma too late (vmcnt history)"
    g = 0; wprev = {}
    end = its[NSTEP - 1] - 2
    first = its[it_of(gd[0]) + NS - 1] + 1
    for b in range(20):
        rd, vs, wr = q_scale(1, b, b & 1)
        lo = its[it_of(gd[b]) + NS - 1] + 1
        tgt = first + int(b * (end - first - 40) / 20)
        gr = S.place(rd, max(lo, tgt - 10, wprev.get(b - 2, 0) + 1), end)
        g = max(g, gr + 9)
        for v in vs: g = S.place(v, g, end - 1)
        wprev[b] = S.place(wr, g + 1, end)
    return gd

def raw(text, kind="salu", rd=(), wr=()): return I(text, kind, rd, wr)

def setup_code():
    o = []
    A = lambda t, k="salu", rd=(), wr=(): o.append(raw(t, k, [(r, None) for r in rd], [(r, None) for r in wr]))
    A("s_cmp_ge_u32 s2, 256"); A("s_cbranch_scc1 L_end", "branch")
    A(f"s_load_dwordx4 s[{S_X0+2}:{S_X0+5}], s[0:1], 0")
    A(f"s_load_dwordx4 s[{S_X0+6}:{S_X0+9}], s[0:1], 16")
    V = lambda t, rd=(), wr=(): A(t, "valu", rd, wr)
    V("v_lshrrev_b32_e32 v9, 6, v0", ["v0"], ["v9"])
    V("v_and_b32_e32 v0, 63, v0", ["v0"], ["v0"])
    V(f"v_readfirstlane_b32 s{S_W}, v9", ["v9"], [f"s{S_W}"])
    V("v_bfe_u32 v9, v0, 2, 3", ["v0"], ["v9"])
    V("v_bfe_u32 v10, v0, 3, 2", ["v0"], ["v10"])
    V("v_and_b32_e32 v11, 3, v0", ["v0"], ["v11"])
    V("v_xor_b32_e32 v10, v10, v11", ["v10", "v11"], ["v10"])
    V("v_lshlrev_b32_e32 v10, 4, v10", ["v10"], ["v10"])
    V("v_lshl_add_u32 v10, v9, 8, v10", ["v9", "v10"], ["v10"])
    V("v_lshrrev_b32_e32 v11, 5, v0", ["v0"], ["v11"])
    V(f"v_lshl_add_u32 v{V_VOFF}, v11, 6, v10", ["v11", "v10"], [f"v{V_VOFF}"])
    A(f"s_and_b32 s{S_X0}, s2, 7")
    A(f"s_lshr_b32 s{S_X0+1}, s2, 4")
    A(f"s_lshl_b32 s{S_X0}, s{S_X0}, 4")
    A(f"s_add_u32 s{S_X0}, s{S_X0}, s{S_X0+1}")
    A(f"s_mul_i32 s{S_H0}, s{S_X0}, {HEAD}")
    A(f"s_bfe_u32 s{S_X0}, s2, 0x10003")
    A(f"s_lshl_b32 s{S_LW}, s{S_W}, 11", rd=[f"s{S_W}"])
    A(f"s_mul_i32 s{S_LST}, s{S_W}, 20480")
    A(f"s_mul_i32 s{S_QREL}, s{S_X0}, {320*256}")
    A(f"s_add_u32 s{S_QREL}, s{S_QREL}, s{S_LST}")
    A(f"s_add_u32 s{S_LST}, s{S_LST}, {STAGE}")
    A(f"s_cmp_ge_u32 s{S_W}, 2")
    A(f"s_cselect_b32 s{S_W19}, {OOB}, {19*8192}")
    A(f"s_lshl_b32 s{S_X0}, s{S_X0}, 2")
    A(f"s_add_u32 s{S_X0}, s{S_X0}, s{S_W}")
    A(f"s_cmp_eq_u32 s{S_X0}, 7")
    A(f"s_cselect_b32 s{S_T4OFF}, {OOB}, {4*4096}")
    A(f"s_mov_b32 s{S_C}, {f32bits(CSCALE):#x}")
    A(f"s_mov_b32 s{S_MASK}, 0xffff0000")
    A(f"s_mov_b32 s{S_THR}, {f32bits(THRESH):#x}")
    A(f"s_mov_b64 s[{S_FACC}:{S_FACC+1}], 0")
    A(f"s_mov_b32 s{S_FAIL}, 0")
    A(f"s_mov_b32 s{S_JOB}, 4")
    A(f"s_mov_b32 s{S_CBIT}, 0")
    A(f"s_add_u32 s{S_KVN}, s{S_H0}, s{S_LW}")
    A(f"s_add_u32 s{S_QN}, s{S_H0}, s{S_QREL}")
    A(f"s_add_u32 s{S_QN4}, s{S_QN}, s{S_T4OFF}")
    A(f"s_mov_b32 s{S_QC}, {OOB}")
    A(f"s_mov_b32 s{S_QC4}, {OOB}")
    o.append(I("s_waitcnt lgkmcnt(0)", "wait", note="full"))
    for b, src in ((S_Q, S_X0 + 2), (S_K, S_X0 + 4), (S_V, S_X0 + 6), (S_O, S_X0 + 8)):
        A(f"s_mov_b32 s{b}, s{src}"); A(f"s_mov_b32 s{b+1}, s{src+1}")
        A(f"s_mov_b32 s{b+2}, {TOTAL}"); A(f"s_mov_b32 s{b+3}, 0x20000")
    return o

def setup_addrs():
    o = []
    V = lambda t, rd=(), wr=(): o.append(raw(t, "valu", [(r, None) for r in rd], [(r, None) for r in wr]))
    V("v_bfe_u32 v9, v0, 3, 1", ["v0"], ["v9"])
    V("v_lshlrev_b32_e32 v9, 11, v9", ["v9"], ["v9"])
    V("v_and_b32_e32 v10, 7, v0", ["v0"], ["v10"])
    V("v_lshl_add_u32 v9, v10, 6, v9", ["v9", "v10"], ["v9"])
    V("v_bfe_u32 v10, v0, 1, 2", ["v0"], ["v10"])
    V("v_lshrrev_b32_e32 v11, 4, v0", ["v0"], ["v11"])
    V("v_xor_b32_e32 v12, v10, v11", ["v10", "v11"], ["v12"])
    V(f"v_lshl_add_u32 v{V_KADDR}, v12, 4, v9", ["v12", "v9"], [f"v{V_KADDR}"])
    V(f"v_add_u32_e32 v{V_QADDR}, s{S_LST}, v{V_KADDR}", [f"v{V_KADDR}"], [f"v{V_QADDR}"])
    V("v_lshrrev_b32_e32 v12, 5, v0", ["v0"], ["v12"])
    V("v_xor_b32_e32 v12, v10, v12", ["v10", "v12"], ["v12"])
    V("v_lshl_add_u32 v12, v12, 4, v9", ["v12", "v9"], ["v12"])
    V("v_bfe_u32 v13, v0, 4, 1", ["v0"], ["v13"])
    V("v_lshl_add_u32 v12, v13, 3, v12", ["v13", "v12"], ["v12"])
    V(f"v_add_u32_e32 v{V_OW0}, s{S_LST}, v12", ["v12"], [f"v{V_OW0}"])
    V(f"v_xor_b32_e32 v{V_OW1}, 32, v{V_OW0}", [f"v{V_OW0}"], [f"v{V_OW1}"])
    V("v_lshrrev_b32_e32 v9, 5, v0", ["v0"], ["v9"])
    V("v_lshlrev_b32_e32 v9, 11, v9", ["v9"], ["v9"])
    V("v_bfe_u32 v10, v0, 2, 3", ["v0"], ["v10"])
    V("v_lshl_add_u32 v9, v10, 6, v9", ["v9", "v10"], ["v9"])
    V("v_bfe_u32 v10, v0, 3, 2", ["v0"], ["v10"])
    V("v_bfe_u32 v11, v0, 1, 1", ["v0"], ["v11"])
    V("v_xor_b32_e32 v10, v10, v11", ["v10", "v11"], ["v10"])
    V("v_lshl_add_u32 v9, v10, 4, v9", ["v9", "v10"], ["v9"])
    V("v_and_b32_e32 v10, 1, v0", ["v0"], ["v10"])
    V("v_lshl_add_u32 v9, v10, 3, v9", ["v9", "v10"], ["v9"])
    V(f"v_add_u32_e32 v{V_VA0}, {VRING}, v9", ["v9"], [f"v{V_VA0}"])
    V(f"v_xor_b32_e32 v{V_VA1}, 32, v{V_VA0}", [f"v{V_VA0}"], [f"v{V_VA1}"])
    V("v_lshlrev_b32_e32 v9, 4, v0", ["v0"], ["v9"])
    V(f"v_add_u32_e32 v{V_LIN}, s{S_LST}, v9", ["v9"], [f"v{V_LIN}"])
    V("v_mov_b32_e32 v9, 0x3f803f80", [], ["v9"])
    for x in range(4):
        o.append(I(f"v_accvgpr_write_b32 a{A_ONE+x}, v9", "valu", [("v9", None)], [(f"a{A_ONE+x}", ("one", None, x))]))
    return o

def rotate():
    o = []
    A = lambda t, rd=(), wr=(): o.append(salu(t, rd, wr))
    A(f"s_mov_b32 s{S_OP}, s{S_QC}", [], [(f"s{S_OP}", ("qb", -1))])
    A(f"s_mov_b32 s{S_OP4}, s{S_QC4}", [], [(f"s{S_OP4}", ("qb4", -1))])
    A(f"s_mov_b32 s{S_QC}, s{S_QN}"); A(f"s_mov_b32 s{S_QC4}, s{S_QN4}")
    A(f"s_mov_b32 s{S_KVC}, s{S_KVN}", [], [(f"s{S_KVC}", ("kvb", 0))])
    A(f"s_add_u32 s{S_KV19}, s{S_KVN}, s{S_W19}", [], [(f"s{S_KV19}", ("kv19", 0))])
    A(f"s_mov_b32 s{S_PBIT}, s{S_CBIT}", [], [(f"s{S_PBIT}", ("bit", -1))])
    A(f"s_lshl_b32 s{S_CBIT}, s{S_CBIT}, 1")
    A(f"s_max_u32 s{S_CBIT}, s{S_CBIT}, 1")
    A(f"s_cmp_gt_u32 s{S_JOB}, 1")
    A(f"s_cselect_b32 s{S_X0}, {JOBSTRIDE}, {OOB}")
    A(f"s_add_u32 s{S_KVN}, s{S_KVN}, s{S_X0}", [], [(f"s{S_KVN}", ("kvb", 1))])
    A(f"s_add_u32 s{S_QN}, s{S_QN}, s{S_X0}", [], [(f"s{S_QN}", ("qb", 1))])
    A(f"s_add_u32 s{S_QN4}, s{S_QN4}, s{S_X0}", [], [(f"s{S_QN4}", ("qb4", 1))])
    A(f"s_sub_u32 s{S_JOB}, s{S_JOB}, 1")
    return o

def prologue_loads():
    o = []
    init = [(f"s{S_KVN}", ("kvb", 1)), (f"s{S_QN}", ("qb", 1)), (f"s{S_QN4}", ("qb4", 1)), ("facc", ("facc", 1, -1))]
    for x in range(NS):
        init += [(f"KF{x}", ("freeK", 1, x)), (f"VF{x}", ("freeV", 1, x))]
    for b in range(20): init.append((f"ST{b}", ("Ofree", -1, b)))
    o.append(I("; init state", "label", [], init))
    def emit(tr):
        for x in tr:
            if x is not None: o.append(x)
    def kv(which, tile):
        for a in range(2): emit(kv_dma(which, 1, tile, a))
    kv("K", 0)
    for b in range(20): emit(q_dma(1, b, S_QN, S_QN4, None))
    for x in range(1, NS):
        kv("K", x); kv("V", x - 1)
    return o

def build():
    S, its, stg = build_schedule()
    add_q_path(S, its, stg)
    G = S.G
    it0 = S.linear(0, its[1])
    rest = S.linear(its[1], G)
    setup = setup_code()
    pro1 = prologue_loads() + setup_addrs()
    for b in range(20):
        rd, vs, wr = q_scale(1, b, b & 1)
        pro1 += [rd] + vs + [wr]
    b19 = barrier(NSTEP - 1)
    b19.need = [x for x in b19.need if x[0].startswith("KR")]
    b19.wr = [x for x in b19.wr if x[0] == "KV0"]
    pro1.append(b19)
    for x in S.linear(its[NSTEP - 1], G):
        if x.aff == 1 and x.kind == "lds_r": pro1.append(x.copy())
    rot_p = rotate()
    pro2 = [x.copy() for x in it0 if x.aff >= 0]
    rot = rotate()
    tail = [x.copy() for x in it0 + rest if x.aff == -1]
    lab = lambda n: [I(n + ":", "label")]
    br = lambda t: [I(t, "branch")]
    seg_rest = lab("L_it1") + rest
    seg_rot = rot + br("s_cbranch_scc1 L_tail")
    seg_it0 = it0 + br("s_branch L_it1")
    seg_tail = lab("L_tail") + tail
    seq = [(x, -1, True) for x in setup + pro1] + [(x, 0, True) for x in rot_p + pro2]
    for J in range(4):
        if J:
            seq += [(x, J, True) for x in seg_rot]
            seq += [(x, J, 0 <= J + x.aff) for x in seg_it0]
        seq += [(x, J, 0 <= J + x.aff) for x in seg_rest]
    seq += [(x, 4, True) for x in seg_rot + seg_tail]
    errs = check_dataflow(seq)
    paths = [[setup, pro1, rot_p, pro2, seg_rest, seg_rot, seg_it0, seg_rest, seg_rot, seg_it0, seg_rest, seg_rot, seg_tail]]
    nw = insert_waits(paths)
    nn = insert_nops(paths)
    est = [estimate(S_) for S_ in (pro1 + pro2, seg_it0, seg_rest, seg_tail)]
    sys.stderr.write(f"G={G} waits={nw} nops={nn} est pro/it0/rest/tail={est} job={est[1]+est[2]} mfma_floor={16*G}\n")
    return errs, [setup, pro1, rot_p, pro2, seg_rest, seg_rot, seg_it0, seg_tail], S, its

HEADER = f"""; MHA forward, B=16 H=32 S=624 D=128 bf16.  Generated by gen/gen.py (hand written generator).
; @launch grid=(256,1,1) block=(256,1,1) lds={LDS_BYTES}
.amdgcn_target "amdgcn-amd-amdhsa--gfx950"
.text
.globl {NAME}_kernel
.p2align 8
.type {NAME}_kernel,@function
{NAME}_kernel:
"""
FOOTER = f"""L_end:
    s_endpgm
.section .rodata,"a"
.p2align 6
.amdhsa_kernel {NAME}_kernel
  .amdhsa_next_free_vgpr 512
  .amdhsa_next_free_sgpr 102
  .amdhsa_accum_offset 256
  .amdhsa_group_segment_fixed_size 0
  .amdhsa_kernarg_size 48
  .amdhsa_user_sgpr_count 2
  .amdhsa_user_sgpr_kernarg_segment_ptr 1
  .amdhsa_system_sgpr_workgroup_id_x 1
.end_amdhsa_kernel
"""

def emit(segs, extra=""):
    s = HEADER
    for seg in segs:
        for x in seg:
            if x.kind == "label": s += x.text + "\n"
            else: s += "    " + x.text + "\n"
    return s + extra + FOOTER

if __name__ == "__main__":
    cfg.tcap = 20
    cfg.drain_step = 20
    for a in sys.argv[2:]:
        k, v = a.split("="); setattr(cfg, k, eval(v))
    errs, segs, S, its = build()
    for e in errs[:30]: sys.stderr.write(e + "\n")
    sys.stderr.write(f"{len(errs)} dataflow errors\n")
    from slow import slow_path
    open(sys.argv[1], "w").write(emit(segs, slow_path()))
```

```python
import sys, struct
from core import *

NAME = "standalone__mha_softmax__near_ridge"
HEAD = 624 * 256
TOTAL = 512 * HEAD
OOB = 0x40000000
NS = 5
KRING = 0
VRING = NS * 8192
STAGE = 2 * NS * 8192
LDS_BYTES = STAGE + 4 * 20480
NT = 5
NSTEP = 20
JOBSTRIDE = 128 * HEAD
CSCALE = 0.08838834764831845 * 1.4426950408889634
THRESH = float(2 ** 30)
def f32bits(x): return struct.unpack("<I", struct.pack("<f", x))[0]

class Cfg:
    pk_epi = False
    qflags = 'nt'
    kvflags = 'nt'
    oflags = 'nt'
    prof = False
cfg = Cfg()

V_TMP0 = 0
V_VOFF, V_KADDR, V_VA0, V_VA1, V_LIN, V_OW0, V_OW1, V_QADDR = 1, 2, 3, 4, 5, 6, 7, 8
V_U0, V_U1 = 9, 10
V_VOFF1 = 25
V_QS = [12, 16]
V_RCP = 20
V_MX = 26
V_NEGM = 36
V_S = 56
V_O = 96
A_Q = 0
A_K = 80
A_V = 144
A_L = 208
A_ONE = 228
A_RB = 232
def Oreg(t, dt): return V_O + 32 * t + 4 * dt
def Sreg(t, kt): return V_S + 8 * t + 4 * kt
def Nreg(t): return V_NEGM + 4 * t
def Qreg(t, s): return A_Q + 16 * t + 4 * s
def Kreg(b, kt, s): return A_K + 32 * b + 16 * kt + 4 * s
def Vreg(b, dt): return A_V + 32 * b + 4 * dt
def Lreg(t): return A_L + 4 * t

S_Q, S_K, S_V, S_O = 8, 12, 16, 20
S_W = 24
S_JOB = 25
S_KVC, S_KVN, S_KV19 = 26, 27, 28
S_QN, S_QN4, S_QC, S_QC4, S_OP, S_OP4 = 29, 30, 31, 32, 33, 34
S_LW = 35
S_LST = 36
S_C = 37
S_MASK = 38
S_THR = 39
S_FACC = 40
S_FAIL = 42
S_PBIT, S_CBIT = 43, 44
S_T0, S_T1, S_T2, S_T3 = 45, 46, 47, 48
S_W19 = 49
S_T4OFF = 50
S_QREL = 51
S_H0 = 52
S_X0 = 54

def srd(b): return f"s[{b}:{b+3}]"

def salu(text, rd=(), wr=(), aff=0): return I(text, "salu", rd, wr, aff)
def valu(text, rd=(), wr=(), aff=0, kind="valu"): return I(text, kind, rd, wr, aff)

def mfma(dF, d, aF, a, bF, b, cF, c, dtag, atag, btag, ctag, k16=False, aff=0):
    n = 2 if k16 else 4
    op = "v_mfma_f32_16x16x16_bf16" if k16 else "v_mfma_f32_16x16x32_bf16"
    ctext = "0" if c is None else rs(cF, c, 4)
    A = R(aF, a, n); B = R(bF, b, n); C = [] if c is None else R(cF, c, 4)
    return I(f"{op} {rs(dF,d,4)}, {rs(aF,a,n)}, {rs(bF,b,n)}, {ctext}", "mfma",
             tagged(A, atag) + tagged(B, btag) + tagged(C, ctag), tagged(R(dF, d, 4), dtag), aff, ab=A + B, c=C)

def pv_mfma(j, i, t, dt):
    k16 = i == NSTEP - 1
    c = None if i == 0 else Oreg(t, dt)
    return mfma("v", Oreg(t, dt), "a", Vreg(i & 1, dt), "v", Sreg(t, 0), "v", c,
                ("O", j, i, t, dt), ("Vf", j, i, dt), ("P", j, i, t), ("O", j, i - 1, t, dt), k16, aff=j)
def sum_mfma(j, i, t):
    k16 = i == NSTEP - 1
    c = None if i == 0 else Lreg(t)
    return mfma("a", Lreg(t), "a", A_ONE, "v", Sreg(t, 0), "a", c,
                ("L", j, i, t), ("one", None), ("P", j, i, t), ("L", j, i - 1, t), k16, aff=j)
def qk_mfma(j, i, t, kt, s):
    if s == 0:
        c = None if i == 0 else Nreg(t); ctag = ("negm", j, t)
    else:
        c = Sreg(t, kt); ctag = ("S", j, i, t, kt, s - 1)
    return mfma("v", Sreg(t, kt), "a", Kreg(i & 1, kt, s), "a", Qreg(t, s), "v", c,
                ("S", j, i, t, kt, s), ("Kf", j, i, kt, s), ("Q", j, t, s), ctag, aff=j)

def k_read(j, i, kt, s):
    off = KRING + (i % NS) * 8192 + kt * 4096 + s * 256
    r = Kreg(i & 1, kt, s)
    return I(f"ds_read_b128 {rs('a',r,4)}, v{V_KADDR} offset:{off}", "lds_r",
             [(f"v{V_KADDR}", None), (f"KV{i%NS}", ("Kv", j, i))], tagged(R("a", r, 4), ("Kf", j, i, kt, s)), j)
def v_read(j, i, dt, half):
    off = (i % NS) * 8192 + half * 4096 + (dt >> 1) * 256
    r = Vreg(i & 1, dt) + 2 * half
    va = V_VA1 if dt & 1 else V_VA0
    wr = [(f"a{r+x}", ("Vf", j, i, dt, 2 * half + x)) for x in range(2)]
    return I(f"ds_read_b64_tr_b16 {rs('a',r,2)}, v{va} offset:{off}", "lds_r",
             [(f"v{va}", None), (f"VV{i%NS}", ("Vv", j, i))], wr, j)
def q_read(j, t, s):
    off = t * 4096 + s * 256
    r = Qreg(t, s)
    need = [(f"ST{t*4+rb}", ("Qs", j, t * 4 + rb)) for rb in range(4)]
    return I(f"ds_read_b128 {rs('a',r,4)}, v{V_QADDR} offset:{off}", "lds_r",
             [(f"v{V_QADDR}", None)] + need, tagged(R("a", r, 4), ("Q", j, t, s)), j)

def kv_dma(which, j, tile, a):
    st = S_T0 if which == "K" else S_T1
    sr = S_K if which == "K" else S_V
    ring = KRING if which == "K" else VRING
    out = []
    stag = ("so" + which, j, tile)
    if a == 0:
        if tile == NSTEP - 1:
            assert j == 0
            out.append(salu(f"s_mov_b32 s{st}, s{S_KV19}", [(f"s{S_KV19}", ("kv19", j))], [(f"s{st}", stag)], j))
        else:
            base = S_KVC if j == 0 else S_KVN
            out.append(salu(f"s_add_u32 s{st}, s{base}, {tile*8192}", [(f"s{base}", ("kvb", j))], [(f"s{st}", stag)], j))
    else:
        out.append(None)
    mtag = ("m0" + which, j, tile, a)
    out.append(salu(f"s_add_u32 m0, s{S_LW}, {ring + (tile % NS) * 8192}", [], [("m0", mtag)], j))
    res = ("KR" if which == "K" else "VR") + f"{tile % NS}_{a}"
    free = ("KF" if which == "K" else "VF") + f"{tile % NS}"
    o = " offset:1024" if a else ""
    if cfg.kvflags: o += " " + cfg.kvflags
    out.append(I(f"buffer_load_dwordx4 v{V_VOFF1 if a else V_VOFF}, {srd(sr)}, s{st} offen{o} lds", "dma",
                 [("m0", mtag), (f"s{st}", stag), (f"v{V_VOFF}", None), (free, ("free" + which, j, tile))],
                 [(res, (which + "d", j, tile, a))], j))
    return out

def barrier(i):
    kj, kt_ = (0, i + 1) if i + 1 < NSTEP else (1, 0)
    need = [(f"KR{kt_%NS}_{a}", ("Kd", kj, kt_, a)) for a in range(2)] + [(f"VR{i%NS}_{a}", ("Vd", 0, i, a)) for a in range(2)]
    nkt = 1 if i == NSTEP - 1 else 2
    for kt in range(nkt):
        for s in range(4): need += [(r, None) for r in R("a", Kreg(i & 1, kt, s), 4)]
    for dt in range(8): need += [(r, None) for r in R("a", Vreg((i - 1) & 1, dt), 4)]
    fk = i + NS; fv = i - 1 + NS
    wr = [(f"KV{kt_%NS}", ("Kv", kj, kt_)), (f"VV{i%NS}", ("Vv", 0, i)),
          (f"KF{fk%NS}", ("freeK", fk // NSTEP, fk % NSTEP)), (f"VF{fv%NS}", ("freeV", fv // NSTEP, fv % NSTEP)),
          (f"KV{i%NS}", ("dead", None)), (f"VV{(i-1)%NS}", ("dead", None))]
    return I("s_barrier", "barrier", [], wr, 0, need=need)

def blk_goff(b):
    return (b & 3) * 1024

def q_dma(j, b, qbase, qbase4, basetag):
    t = b >> 2
    out = []
    stag = ("soQ", j, t)
    if b & 3 == 0:
        if t == 4:
            out.append(salu(f"s_mov_b32 s{S_T2}, s{qbase4}", [(f"s{qbase4}", ("qb4", j))], [(f"s{S_T2}", stag)], j))
        else:
            out.append(salu(f"s_add_u32 s{S_T2}, s{qbase}, {t*4096}", [(f"s{qbase}", ("qb", j))], [(f"s{S_T2}", stag)], j))
    else:
        out.append(None)
    go = blk_goff(b)
    mtag = ("m0Q", j, b)
    out.append(salu(f"s_add_u32 m0, s{S_LST}, {b*1024 - go}", [], [("m0", mtag)], j))
    o = f" offset:{go}" if go else ""
    nt = (" " + cfg.qflags) if cfg.qflags else ""
    out.append(I(f"buffer_load_dwordx4 v{V_VOFF1 if b & 1 else V_VOFF}, {srd(S_Q)}, s{S_T2} offen{o}{nt} lds", "dma",
                 [("m0", mtag), (f"s{S_T2}", stag), (f"v{V_VOFF}", None), (f"ST{b}", ("Ofree", j - 2, b))],
                 [(f"ST{b}", ("Qr", j, b))], j))
    return out

def q_scale(j, b, buf):
    q = V_QS[buf]
    rd = I(f"ds_read_b128 {rs('v',q,4)}, v{V_LIN} offset:{b*1024}", "lds_r",
           [(f"v{V_LIN}", None), (f"ST{b}", ("Qr", j, b))], tagged(R("v", q, 4), ("qs0", j, b)), j)
    vs = []
    for x in range(4):
        r = q + x; u = V_U0 if x & 1 == 0 else V_U1
        vs.append(valu(f"v_lshlrev_b32_e32 v{u}, 16, v{r}", [(f"v{r}", ("qs0", j, b, x))], [(f"v{u}", ("u0", j, b, x))], j))
        vs.append(valu(f"v_and_b32_e32 v{r}, s{S_MASK}, v{r}", [(f"v{r}", ("qs0", j, b, x))], [(f"v{r}", ("qs1", j, b, x))], j))
        vs.append(valu(f"v_mul_f32_e32 v{u}, s{S_C}, v{u}", [(f"v{u}", ("u0", j, b, x))], [(f"v{u}", ("u1", j, b, x))], j))
        vs.append(valu(f"v_mul_f32_e32 v{r}, s{S_C}, v{r}", [(f"v{r}", ("qs1", j, b, x))], [(f"v{r}", ("qs2", j, b, x))], j))
        vs.append(valu(f"v_cvt_pk_bf16_f32 v{r}, v{u}, v{r}", [(f"v{u}", ("u1", j, b, x)), (f"v{r}", ("qs2", j, b, x))],
                       [(f"v{r}", ("qs3", j, b, x))], j))
    wr = I(f"ds_write_b128 v{V_LIN}, {rs('v',q,4)} offset:{b*1024}", "lds_w128",
           [(f"v{V_LIN}", None)] + tagged(R("v", q, 4), ("qs3", j, b)), [(f"ST{b}", ("Qs", j, b))], j)
    return rd, vs, wr

def o_drain(j, b, buf):
    t = b >> 2
    r = A_RB + 4 * buf
    stag = ("soO", j, t)
    so = None
    if b & 3 == 0:
        if t == 4:
            so = salu(f"s_mov_b32 s{S_T3}, s{S_OP4}", [(f"s{S_OP4}", ("qb4", j))], [(f"s{S_T3}", stag)], j)
        else:
            so = salu(f"s_add_u32 s{S_T3}, s{S_OP}, {t*4096}", [(f"s{S_OP}", ("qb", j))], [(f"s{S_T3}", stag)], j)
    rdeps = [(f"SO{t}_{dt}", ("Ow", j, t, dt)) for dt in range(8)]
    rd = I(f"ds_read_b128 {rs('a',r,4)}, v{V_LIN} offset:{b*1024}", "lds_r",
           [(f"v{V_LIN}", None)] + rdeps, tagged(R("a", r, 4), ("rb", j, b)), j)
    go = blk_goff(b)
    o = f" offset:{go}" if go else ""
    nt = (" " + cfg.oflags) if cfg.oflags else ""
    st = I(f"buffer_store_dwordx4 {rs('a',r,4)}, v{V_VOFF1 if b & 1 else V_VOFF}, {srd(S_O)}, s{S_T3} offen{o}{nt}", "vstore",
           tagged(R("a", r, 4), ("rb", j, b)) + [(f"s{S_T3}", stag), (f"v{V_VOFF}", None)], [], j, note=f"free{b}")
    return so, rd, st

def exp_ins(j, i, t, kt, r, srctag):
    reg = Sreg(t, kt) + r
    return valu(f"v_exp_f32_e32 v{reg}, v{reg}", [(f"v{reg}", srctag)], [(f"v{reg}", ("E", j, i, t, kt, r))], j, "trans")
def cvt_ins(j, i, t, p):
    kt = p >> 1; r = (p & 1) * 2
    a = Sreg(t, kt) + r; d = Sreg(t, 0) + p
    return valu(f"v_cvt_pk_bf16_f32 v{d}, v{a}, v{a+1}",
                [(f"v{a}", ("E", j, i, t, kt, r)), (f"v{a+1}", ("E", j, i, t, kt, r + 1))], [(f"v{d}", ("P", j, i, t, p))], j)

def max_chain(j, t):
    m0 = V_MX + 2 * t; m1 = m0 + 1
    s = Sreg(t, 0)
    def st(x): return (f"v{s+x}", ("S", j, 0, t, x >> 2, 3, x & 3))
    T = lambda n: ("mx", j, t, n)
    ch = [
        valu(f"v_max3_f32 v{m0}, v{s}, v{s+1}, v{s+2}", [st(0), st(1), st(2)], [(f"v{m0}", T(0))], j),
        valu(f"v_max3_f32 v{m0}, v{m0}, v{s+3}, v{s+4}", [(f"v{m0}", T(0)), st(3), st(4)], [(f"v{m0}", T(1))], j),
        valu(f"v_max3_f32 v{m0}, v{m0}, v{s+5}, v{s+6}", [(f"v{m0}", T(1)), st(5), st(6)], [(f"v{m0}", T(2))], j),
        valu(f"v_max_f32_e32 v{m1}, v{m0}, v{s+7}", [(f"v{m0}", T(2)), st(7)], [(f"v{m1}", T(3))], j),
        valu(f"v_max_f32_e32 v{m0}, v{m0}, v{s+7}", [(f"v{m0}", T(2)), st(7)], [(f"v{m0}", T(3))], j),
        valu(f"v_permlane32_swap_b32_e32 v{m0}, v{m1}", [(f"v{m0}", T(3)), (f"v{m1}", T(3))], [(f"v{m0}", T(4)), (f"v{m1}", T(5))], j, "perm"),
        valu(f"v_max_f32_e32 v{m0}, v{m0}, v{m1}", [(f"v{m0}", T(4)), (f"v{m1}", T(5))], [(f"v{m0}", T(6))], j),
        valu(f"v_mov_b32_e32 v{m1}, v{m0}", [(f"v{m0}", T(6))], [(f"v{m1}", T(6))], j),
        valu(f"v_permlane16_swap_b32_e32 v{m0}, v{m1}", [(f"v{m0}", T(6)), (f"v{m1}", T(6))], [(f"v{m0}", T(7)), (f"v{m1}", T(8))], j, "perm"),
    ]
    for x in range(4):
        n = Nreg(t) + x
        ch.append(valu(f"v_min_f32_e64 v{n}, -v{m0}, -v{m1}", [(f"v{m0}", T(7)), (f"v{m1}", T(8))], [(f"v{n}", ("negm", j, t, x))], j))
    adds = {}
    for x in range(8):
        n = Nreg(t)
        adds[(x >> 2, x & 3)] = valu(f"v_add_f32_e32 v{s+x}, v{n}, v{s+x}", [(f"v{n}", ("negm", j, t, 0)), st(x)],
                                     [(f"v{s+x}", ("Sm", j, t, x))], j)
    return ch, adds

def epilogue(j, t):
    L = NSTEP - 1
    rc = V_RCP + t
    head = [
        valu(f"v_accvgpr_read_b32 v{rc}, a{Lreg(t)}", [(f"a{Lreg(t)}", ("L", j, L, t, 0))], [(f"v{rc}", ("l", j, t))], j),
        valu(f"v_cmp_nge_f32_e32 vcc, s{S_THR}, v{rc}", [(f"v{rc}", ("l", j, t))], [("vcc", ("chk", j, t))], j),
        valu(f"v_rcp_f32_e32 v{rc}, v{rc}", [(f"v{rc}", ("l", j, t))], [(f"v{rc}", ("rl", j, t))], j, "trans"),
    ]
    acc = salu(f"s_or_b64 s[{S_FACC}:{S_FACC+1}], s[{S_FACC}:{S_FACC+1}], vcc", [("vcc", ("chk", j, t)), ("facc", ("facc", j, t - 1))],
               [("facc", ("facc", j, t)), ("scc", None)], j)
    per = []
    for dt in range(8):
        o = Oreg(t, dt)
        vs = []
        for x in range(4):
            vs.append(valu(f"v_mul_f32_e32 v{o+x}, v{rc}, v{o+x}", [(f"v{rc}", ("rl", j, t)), (f"v{o+x}", ("O", j, L, t, dt, x))],
                           [(f"v{o+x}", ("On", j, t, dt, x))], j))
        vs.append(valu(f"v_cvt_pk_bf16_f32 v{o}, v{o}, v{o+1}", [(f"v{o}", ("On", j, t, dt, 0)), (f"v{o+1}", ("On", j, t, dt, 1))],
                       [(f"v{o}", ("Ob", j, t, dt, 0))], j))
        vs.append(valu(f"v_cvt_pk_bf16_f32 v{o+1}, v{o+2}, v{o+3}", [(f"v{o+2}", ("On", j, t, dt, 2)), (f"v{o+3}", ("On", j, t, dt, 3))],
                       [(f"v{o+1}", ("Ob", j, t, dt, 1))], j))
        ow = V_OW1 if dt & 1 else V_OW0
        off = t * 4096 + (dt >> 1) * 256
        w = I(f"ds_write_b64 v{ow}, {rs('v',o,2)} offset:{off}", "lds_w64",
              [(f"v{ow}", None)] + tagged(R("v", o, 2), ("Ob", j, t, dt)),
              [(f"SO{t}_{dt}", ("Ow", j, t, dt))] + [(f"ST{t*4+rb}", ("Ob", j)) for rb in range(4)], j)
        per.append((vs, w))
    return head, acc, per

def fail_commit(j):
    return [
        salu(f"s_cmp_lg_u64 s[{S_FACC}:{S_FACC+1}], 0", [("facc", ("facc", j, 4))], [("scc", ("fc", j))], j),
        salu(f"s_cselect_b32 s{S_X0}, s{S_PBIT}, 0", [("scc", ("fc", j)), (f"s{S_PBIT}", ("bit", j))], [(f"s{S_X0}", None)], j),
        salu(f"s_or_b32 s{S_FAIL}, s{S_FAIL}, s{S_X0}", [], [("scc", None)], j),
        salu(f"s_mov_b64 s[{S_FACC}:{S_FACC+1}], 0", [], [("facc", ("facc", j + 1, -1))], j),
    ]

class Sched:
    def __init__(self):
        self.sp = []
        self.sc = []; self.mem = []; self.val = []
        self.it_start = []
        self.epi_last = {}; self.epi_first = {}
    def add(self, m):
        self.sp.append(m); self.sc.append([]); self.mem.append([]); self.val.append([])
        return len(self.sp) - 1
    @property
    def G(self): return len(self.sp)
    def load(self, g):
        g %= self.G
        return sum(COST[x.kind] for x in self.mem[g] + self.val[g]) + 4 * max(0, len(self.sc[g]) - 1)
    def put(self, ins, g):
        w = g // self.G
        if w: ins = ins.shifted(-w)
        gg = g % self.G
        ins.gap = gg
        if ins.kind in ("salu", "barrier"): self.sc[gg].append(ins)
        elif ins.kind in VALU_KINDS: self.val[gg].append(ins)
        else: self.mem[gg].append(ins)
        return g
    def place(self, ins, lo, hi, cap=8):
        assert lo <= hi, (ins.text, lo, hi)
        c = COST[ins.kind]
        if ins.kind == "salu":
            for g in range(lo, hi + 1):
                if not self.sc[g % self.G]: return self.put(ins, g)
            for g in range(lo, hi + 1):
                if self.load(g) + 4 <= cap: return self.put(ins, g)
            return self.put(ins, lo)
        for g in range(lo, hi + 1):
            l = self.load(g)
            if l + c <= cap or (c > cap and l == 0): return self.put(ins, g)
        best = min(range(lo, hi + 1), key=lambda g: self.load(g))
        return self.put(ins, best)
    def chain(self, items, lo, hi):
        tot = sum(COST[x.kind] for x, _, sd in items if not sd)
        acc = 0; g = lo; res = []
        lastside = lo
        for x, d, side in items:
            if side:
                a = max(g + d, lastside)
                lastside = self.place(x, a, min(hi, a + 3)); res.append(lastside); continue
            acc += COST[x.kind]
            lim = lo + int((hi - 4 - lo) * acc / tot)
            g = self.place(x, g + d, max(g + d, lim)); res.append(g)
        assert max(res) <= hi, (items[0][0].text, lo, hi, max(res))
        return res
    def linear(self, g0, g1):
        out = []
        for g in range(g0, g1):
            out.append(self.sp[g]); out += self.sc[g]; out += self.mem[g]; out += self.val[g]
        return out

def build_schedule():
    S = Sched()
    pv0 = {}; pvend = {}; qkend = {}; qk0 = {}
    for i in range(NSTEP):
        S.it_start.append(S.G)
        for t in range(NT):
            j, st = (-1, NSTEP - 1) if i == 0 else (0, i - 1)
            for dt in range(8):
                g = S.add(pv_mfma(j, st, t, dt))
                if dt == 0: pv0[(i, t)] = g
            pvend[(i, t)] = S.add(sum_mfma(j, st, t))
            for kt in range(1 if i == NSTEP - 1 else 2):
                for s in range(4):
                    g = S.add(qk_mfma(0, i, t, kt, s))
                    if kt == 0 and s == 0: qk0[(i, t)] = g
                qkend[(i, t, kt)] = g
    G = S.G
    its = S.it_start + [G]
    for t in range(NT):
        for d in range(2):
            pv0[(NSTEP + d, t)] = pv0[(d, t)] + G; pvend[(NSTEP + d, t)] = pvend[(d, t)] + G; qk0[(NSTEP + d, t)] = qk0[(d, t)] + G
    LAT = 5
    for i in range(NSTEP):
        S.put(barrier(i), its[i])
    def block_start(i, t):
        i2 = i + t // NT; t2 = t % NT
        return pv0[(i2, t2)]
    late = []
    for i in range(1, NSTEP):
        for t in range(NT):
            nk = 1 if i == NSTEP - 1 else 2
            hi = pv0[(i + 1, t)] - 2
            g = block_start(i, t + 1) + 1
            for kt in range(nk):
                for r in range(4):
                    g = max(g, qkend[(i, t, kt)] + LAT)
                    g = S.place(exp_ins(0, i, t, kt, r, ("S", 0, i, t, kt, 3, r)), g, hi - 3)
                    if r & 1:
                        S.place(cvt_ins(0, i, t, 2 * kt + (r >> 1)), g + 1, hi)
                    g += 2
    for i in range(NSTEP):
        lo = its[i] + 1; n = its[i + 1] - its[i]
        hi = its[i] + int(n * 0.8)
        kj, kti = (0, i + 1) if i + 1 < NSTEP else (1, 0)
        reads = []
        for dt in range(8):
            for half in range(1 if i == NSTEP - 1 else 2): reads.append(v_read(0, i, dt, half))
        for kt in range(1 if kti == NSTEP - 1 else 2):
            for s in range(4): reads.append(k_read(kj, kti, kt, s))
        dm = []
        for which, tile in (("K", i + NS), ("V", i - 1 + NS)):
            for a in range(2): dm.append(kv_dma(which, tile // NSTEP, tile % NSTEP, a))
        g = lo + 1
        step = max(4, n // 6)
        for so, m0, d in dm:
            if so is not None: S.place(so, g - 1, g + 1)
            gm = S.place(m0, g, g + 3)
            gd = S.place(d, gm + 1, gm + 6)
            g = max(gd + 1, g + step)
        cand = [g for g in range(lo, hi) if S.load(g) == 4 and not S.mem[g]]
        empty = [g for g in range(lo, hi) if S.load(g) == 0]
        need2 = max(0, len(reads) - len(cand))
        k = (need2 + 1) // 2
        pick = [empty[int((x + 0.5) * len(empty) / k)] for x in range(k)] if k else []
        slots = sorted(cand + pick + pick)[:len(reads)]
        assert len(slots) == len(reads), (i, len(slots), len(reads))
        for r, g in zip(reads, slots): S.put(r, g)
    for t in range(NT):
        ch, adds = max_chain(0, t)
        lo = qkend[(0, t, 1)] + LAT; hi = pv0[(1, t)] - 2
        items = [(x, 1 if x.kind == "perm" else 0, False) for x in ch]
        for kt in range(2):
            for r in range(4):
                items.append((adds[(kt, r)], 0, False))
                items.append((exp_ins(0, 0, t, kt, r, ("Sm", 0, t, 4 * kt + r)), 0, False))
                if r & 1: items.append((cvt_ins(0, 0, t, 2 * kt + (r >> 1)), 1, True))
        S.chain(items, lo, hi)
        head, acc, per = epilogue(0, t)
        lo = pvend[(NSTEP, t)] + LAT; hi = pv0[(NSTEP + 1, t)] - 2
        items = [(head[0], 0, False), (head[1], 0, False), (acc, 1, True), (head[2], 0, False)]
        first = True
        for vs, w in per:
            for v in vs:
                items.append((v, 1 if first else 0, False)); first = False
            items.append((w, 1, True))
        res = S.chain(items, lo, hi)
        S.epi_first[t] = min(g for g, it in zip(res, items) if it[0].kind == "lds_w64")
        S.epi_last[t] = max(res) - G
        if t == NT - 1:
            for x in fail_commit(0): S.put(x, res[2] + 1)
    stg = {}
    g = 0
    d0 = cfg.drain0
    for b in range(20):
        so, rd, st = o_drain(-1, b, b & 3)
        g = max(g, d0 + int(b * cfg.drain_step), S.epi_last[b >> 2] + 1)
        gr = S.place(rd, g, g + 30)
        if so is not None: S.place(so, max(gr, stg.get(b - 1, 0) + 1), gr + 8)
        stg[b] = S.place(st, max(gr + 9, stg.get(b - 1, 0) + 1), gr + 40)
        st2 = S.mem[stg[b]][-1]
        st2.wr.append((f"ST{b}", ("Ofree", -1, b)))
        g = gr + 1
    S.qkend = qkend; S.qk0 = qk0
    return S, its, stg

def used_m0_ranges(S):
    rng = []
    for g in range(S.G):
        for x in S.sc[g]:
            if any(r == "m0" for r, _ in x.wr): rng.append([g, None])
        for x in S.mem[g]:
            if x.kind == "dma": rng[-1][1] = g
    return rng

def add_q_path(S, its, stg):
    busy = set()
    for a, b in used_m0_ranges(S): busy |= set(range(a, b + 1))
    gd = {}
    g = 0
    for b in range(20):
        so, m0, d = q_dma(1, b, S_QN, S_QN4, None)
        g = max(g, stg[b] + 1)
        while True:
            ok = None
            if g not in busy and not S.sc[g]:
                for h in range(g + 1, g + 4):
                    if h in busy: break
                    if S.load(h) == 0: ok = h; break
            if ok: break
            g += 1
        if so is not None: S.place(so, max(gd.get(b - 1, 0) + 1, g - 3), g)
        S.put(m0, g); S.put(d, ok)
        busy |= set(range(g, ok + 1))
        gd[b] = ok; g = ok + 1
    G = S.G
    g = 0; wprev = {}
    for b in range(20):
        t = b >> 2
        rd, vs, wr = q_scale(1, b, b & 1)
        end = min(G - 1, S.qk0[(NSTEP, t)] - 30) - (3 - (b & 3)) * 12
        lo = min(gd[b] + cfg.qlag, end - 24)
        gr = S.place(rd, max(lo, wprev.get(b - 2, 0) + 1), end - 20)
        g0 = max(g, gr + 9)
        hi = min(end, max(g0 + 14, g0 + int(cfg.drain_step) + 10))
        res = S.chain([(v, 0, False) for v in vs] + [(wr, 1, True)], g0, hi)
        g = res[-2]; wprev[b] = res[-1]
    for t in range(NT):
        g = max(S.qkend[(NSTEP - 1, t, 0)] + 1, wprev[4 * t + 3] + 1)
        for s_ in range(4):
            g = S.place(q_read(1, t, s_), g, min(S.qk0[(NSTEP, t)] - 12, S.epi_first[t] - 1))
    sys.stderr.write("Q dma gaps " + str([gd[b] for b in range(20)]) + " scale done " + str([wprev[b] for b in range(20)]) + "\n")
    return gd

def raw(text, kind="salu", rd=(), wr=()): return I(text, kind, rd, wr)

def setup_code():
    o = []
    A = lambda t, k="salu", rd=(), wr=(): o.append(raw(t, k, [(r, None) for r in rd], [(r, None) for r in wr]))
    A("s_cmp_ge_u32 s2, 256"); A("s_cbranch_scc1 L_end", "branch")
    A(f"s_load_dwordx4 s[{S_X0+2}:{S_X0+5}], s[0:1], 0")
    A(f"s_load_dwordx4 s[{S_X0+6}:{S_X0+9}], s[0:1], 16")
    V = lambda t, rd=(), wr=(): A(t, "valu", rd, wr)
    V("v_lshrrev_b32_e32 v9, 6, v0", ["v0"], ["v9"])
    V("v_and_b32_e32 v0, 63, v0", ["v0"], ["v0"])
    V(f"v_readfirstlane_b32 s{S_W}, v9", ["v9"], [f"s{S_W}"])
    V("v_bfe_u32 v9, v0, 2, 2", ["v0"], ["v9"])
    V("v_bfe_u32 v10, v0, 3, 1", ["v0"], ["v10"])
    V("v_and_b32_e32 v11, 3, v0", ["v0"], ["v11"])
    V("v_xor_b32_e32 v10, v10, v11", ["v10", "v11"], ["v10"])
    V("v_lshlrev_b32_e32 v10, 4, v10", ["v10"], ["v10"])
    V("v_lshl_add_u32 v10, v9, 8, v10", ["v9", "v10"], ["v10"])
    V("v_lshrrev_b32_e32 v11, 4, v0", ["v0"], ["v11"])
    V(f"v_lshl_add_u32 v{V_VOFF}, v11, 6, v10", ["v11", "v10"], [f"v{V_VOFF}"])
    V(f"v_xor_b32_e32 v{V_VOFF1}, 32, v{V_VOFF}", [f"v{V_VOFF}"], [f"v{V_VOFF1}"])
    A(f"s_and_b32 s{S_X0}, s2, 7")
    A(f"s_lshr_b32 s{S_X0+1}, s2, 4")
    A(f"s_lshl_b32 s{S_X0}, s{S_X0}, 4")
    A(f"s_add_u32 s{S_X0}, s{S_X0}, s{S_X0+1}")
    A(f"s_mul_i32 s{S_H0}, s{S_X0}, {HEAD}")
    A(f"s_bfe_u32 s{S_X0}, s2, 0x10003")
    A(f"s_lshl_b32 s{S_LW}, s{S_W}, 11", rd=[f"s{S_W}"])
    A(f"s_mul_i32 s{S_LST}, s{S_W}, 20480")
    A(f"s_mul_i32 s{S_QREL}, s{S_X0}, {320*256}")
    A(f"s_add_u32 s{S_QREL}, s{S_QREL}, s{S_LST}")
    A(f"s_add_u32 s{S_LST}, s{S_LST}, {STAGE}")
    A(f"s_cmp_ge_u32 s{S_W}, 2")
    A(f"s_cselect_b32 s{S_W19}, {OOB}, {19*8192}")
    A(f"s_lshl_b32 s{S_X0}, s{S_X0}, 2")
    A(f"s_add_u32 s{S_X0}, s{S_X0}, s{S_W}")
    A(f"s_cmp_eq_u32 s{S_X0}, 7")
    A(f"s_cselect_b32 s{S_T4OFF}, {OOB}, {4*4096}")
    A(f"s_mov_b32 s{S_C}, {f32bits(CSCALE):#x}")
    A(f"s_mov_b32 s{S_MASK}, 0xffff0000")
    A(f"s_mov_b32 s{S_THR}, {f32bits(THRESH):#x}")
    A(f"s_mov_b64 s[{S_FACC}:{S_FACC+1}], 0")
    A(f"s_mov_b32 s{S_FAIL}, 0")
    A(f"s_mov_b32 s{S_JOB}, 4")
    A(f"s_mov_b32 s{S_CBIT}, 0")
    A(f"s_add_u32 s{S_KVN}, s{S_H0}, s{S_LW}")
    A(f"s_add_u32 s{S_QN}, s{S_H0}, s{S_QREL}")
    A(f"s_add_u32 s{S_QN4}, s{S_QN}, s{S_T4OFF}")
    A(f"s_mov_b32 s{S_QC}, {OOB}")
    A(f"s_mov_b32 s{S_QC4}, {OOB}")
    o.append(I("s_waitcnt lgkmcnt(0)", "wait", note="full"))
    for b, src in ((S_Q, S_X0 + 2), (S_K, S_X0 + 4), (S_V, S_X0 + 6), (S_O, S_X0 + 8)):
        A(f"s_mov_b32 s{b}, s{src}"); A(f"s_mov_b32 s{b+1}, s{src+1}")
        A(f"s_mov_b32 s{b+2}, {TOTAL}"); A(f"s_mov_b32 s{b+3}, 0x20000")
    return o

def setup_addrs():
    o = []
    V = lambda t, rd=(), wr=(): o.append(raw(t, "valu", [(r, None) for r in rd], [(r, None) for r in wr]))
    V("v_bfe_u32 v9, v0, 2, 2", ["v0"], ["v9"])
    V("v_lshlrev_b32_e32 v9, 10, v9", ["v9"], ["v9"])
    V("v_and_b32_e32 v10, 3, v0", ["v0"], ["v10"])
    V("v_lshl_add_u32 v9, v10, 6, v9", ["v9", "v10"], ["v9"])
    V("v_bfe_u32 v10, v0, 1, 2", ["v0"], ["v10"])
    V("v_lshrrev_b32_e32 v11, 4, v0", ["v0"], ["v11"])
    V("v_xor_b32_e32 v12, v10, v11", ["v10", "v11"], ["v12"])
    V(f"v_lshl_add_u32 v{V_KADDR}, v12, 4, v9", ["v12", "v9"], [f"v{V_KADDR}"])
    V(f"v_add_u32_e32 v{V_QADDR}, s{S_LST}, v{V_KADDR}", [f"v{V_KADDR}"], [f"v{V_QADDR}"])
    V("v_lshrrev_b32_e32 v12, 5, v0", ["v0"], ["v12"])
    V("v_xor_b32_e32 v12, v10, v12", ["v10", "v12"], ["v12"])
    V("v_lshl_add_u32 v12, v12, 4, v9", ["v12", "v9"], ["v12"])
    V("v_bfe_u32 v13, v0, 4, 1", ["v0"], ["v13"])
    V("v_lshl_add_u32 v12, v13, 3, v12", ["v13", "v12"], ["v12"])
    V(f"v_add_u32_e32 v{V_OW0}, s{S_LST}, v12", ["v12"], [f"v{V_OW0}"])
    V(f"v_xor_b32_e32 v{V_OW1}, 32, v{V_OW0}", [f"v{V_OW0}"], [f"v{V_OW1}"])
    V("v_lshrrev_b32_e32 v9, 4, v0", ["v0"], ["v9"])
    V("v_lshlrev_b32_e32 v9, 10, v9", ["v9"], ["v9"])
    V("v_bfe_u32 v10, v0, 2, 2", ["v0"], ["v10"])
    V("v_lshl_add_u32 v9, v10, 6, v9", ["v9", "v10"], ["v9"])
    V("v_bfe_u32 v10, v0, 3, 2", ["v0"], ["v10"])
    V("v_bfe_u32 v11, v0, 1, 1", ["v0"], ["v11"])
    V("v_xor_b32_e32 v10, v10, v11", ["v10", "v11"], ["v10"])
    V("v_lshl_add_u32 v9, v10, 4, v9", ["v9", "v10"], ["v9"])
    V("v_and_b32_e32 v10, 1, v0", ["v0"], ["v10"])
    V("v_lshl_add_u32 v9, v10, 3, v9", ["v9", "v10"], ["v9"])
    V(f"v_add_u32_e32 v{V_VA0}, {VRING}, v9", ["v9"], [f"v{V_VA0}"])
    V(f"v_xor_b32_e32 v{V_VA1}, 32, v{V_VA0}", [f"v{V_VA0}"], [f"v{V_VA1}"])
    V("v_lshlrev_b32_e32 v9, 4, v0", ["v0"], ["v9"])
    V(f"v_add_u32_e32 v{V_LIN}, s{S_LST}, v9", ["v9"], [f"v{V_LIN}"])
    V("v_mov_b32_e32 v9, 0x3f803f80", [], ["v9"])
    for x in range(4):
        o.append(I(f"v_accvgpr_write_b32 a{A_ONE+x}, v9", "valu", [("v9", None)], [(f"a{A_ONE+x}", ("one", None, x))]))
    return o

def rotate():
    o = []
    A = lambda t, rd=(), wr=(): o.append(salu(t, rd, wr))
    A(f"s_mov_b32 s{S_OP}, s{S_QC}", [], [(f"s{S_OP}", ("qb", -1))])
    A(f"s_mov_b32 s{S_OP4}, s{S_QC4}", [], [(f"s{S_OP4}", ("qb4", -1))])
    A(f"s_mov_b32 s{S_QC}, s{S_QN}"); A(f"s_mov_b32 s{S_QC4}, s{S_QN4}")
    A(f"s_mov_b32 s{S_KVC}, s{S_KVN}", [], [(f"s{S_KVC}", ("kvb", 0))])
    A(f"s_add_u32 s{S_KV19}, s{S_KVN}, s{S_W19}", [], [(f"s{S_KV19}", ("kv19", 0))])
    A(f"s_mov_b32 s{S_PBIT}, s{S_CBIT}", [], [(f"s{S_PBIT}", ("bit", -1))])
    A(f"s_lshl_b32 s{S_CBIT}, s{S_CBIT}, 1")
    A(f"s_max_u32 s{S_CBIT}, s{S_CBIT}, 1")
    A(f"s_cmp_gt_u32 s{S_JOB}, 1")
    A(f"s_cselect_b32 s{S_X0}, {JOBSTRIDE}, {OOB}")
    A(f"s_add_u32 s{S_KVN}, s{S_KVN}, s{S_X0}", [], [(f"s{S_KVN}", ("kvb", 1))])
    A(f"s_add_u32 s{S_QN}, s{S_QN}, s{S_X0}", [], [(f"s{S_QN}", ("qb", 1))])
    A(f"s_add_u32 s{S_QN4}, s{S_QN4}, s{S_X0}", [], [(f"s{S_QN4}", ("qb4", 1))])
    A(f"s_sub_u32 s{S_JOB}, s{S_JOB}, 1")
    return o

def prologue_loads():
    o = []
    init = [(f"s{S_KVN}", ("kvb", 1)), (f"s{S_QN}", ("qb", 1)), (f"s{S_QN4}", ("qb4", 1)), ("facc", ("facc", 1, -1))]
    for x in range(NS):
        init += [(f"KF{x}", ("freeK", 1, x)), (f"VF{x}", ("freeV", 1, x))]
    for b in range(20): init.append((f"ST{b}", ("Ofree", -1, b)))
    o.append(I("; init state", "label", [], init))
    def emit(tr):
        for x in tr:
            if x is not None: o.append(x)
    def kv(which, tile):
        for a in range(2): emit(kv_dma(which, 1, tile, a))
    kv("K", 0)
    for b in range(20): emit(q_dma(1, b, S_QN, S_QN4, None))
    for x in range(1, NS):
        kv("K", x); kv("V", x - 1)
    return o

def build():
    S, its, stg = build_schedule()
    add_q_path(S, its, stg)
    G = S.G
    it0 = S.linear(0, its[1])
    rest = S.linear(its[1], G)
    setup = setup_code()
    pro1 = prologue_loads() + setup_addrs()
    for b in range(20):
        rd, vs, wr = q_scale(1, b, b & 1)
        pro1 += [rd] + vs + [wr]
    b19 = barrier(NSTEP - 1)
    b19.need = [x for x in b19.need if x[0].startswith("KR")]
    b19.wr = [x for x in b19.wr if x[0] == "KV0"]
    pro1.append(b19)
    for x in S.linear(its[NSTEP - 1], G):
        if x.aff == 1 and x.kind == "lds_r" and x.wr[0][0][0] == "a": pro1.append(x.copy())
    rot_p = rotate()
    pro2 = [x.copy() for x in it0 if x.aff >= 0]
    rot = rotate()
    tail = [x.copy() for x in it0 + rest if x.aff == -1]
    lab = lambda n: [I(n + ":", "label")]
    br = lambda t: [I(t, "branch")]
    seg_rest = lab("L_it1") + rest
    seg_rot = rot + br("s_cbranch_scc1 L_tail")
    seg_it0 = it0 + br("s_branch L_it1")
    seg_tail = lab("L_tail") + tail
    seq = [(x, -1, True) for x in setup + pro1] + [(x, 0, True) for x in rot_p + pro2]
    for J in range(4):
        if J:
            seq += [(x, J, True) for x in seg_rot]
            seq += [(x, J, 0 <= J + x.aff) for x in seg_it0]
        seq += [(x, J, 0 <= J + x.aff) for x in seg_rest]
    seq += [(x, 4, True) for x in seg_rot + seg_tail]
    errs = check_dataflow(seq)
    paths = [[setup, pro1, rot_p, pro2, seg_rest, seg_rot, seg_it0, seg_rest, seg_rot, seg_it0, seg_rest, seg_rot, seg_tail]]
    nw = insert_waits(paths)
    nn = insert_nops(paths)
    if cfg.prof:
        def stamp(seg, first):
            out = []; i = first
            for x in seg:
                out.append(x)
                if x.kind == "barrier":
                    out.append(raw(f"s_memtime s[{60+2*i}:{61+2*i}]")); i += 1
            seg[:] = out
        stamp(seg_rest, 1); stamp(seg_it0, 0); stamp(pro2, 0)
        out = []; i = 0; nv = 0
        for x in pro1:
            if x.kind == "wait" and "vmcnt" in x.text:
                if nv in (0, 1, 4, 8, 12, 16, 19):
                    out.append(raw(f"s_memtime s[{60+2*i}:{61+2*i}]")); i += 1
                out.append(x)
                if nv in (0, 1, 4, 8, 12, 16, 19):
                    out.append(raw(f"s_memtime s[{60+2*i}:{61+2*i}]")); i += 1
                nv += 1
            elif x.kind == "barrier":
                out.append(raw(f"s_memtime s[{60+2*i}:{61+2*i}]")); i += 1
                out.append(x)
                out.append(raw(f"s_memtime s[{60+2*i}:{61+2*i}]")); i += 1
            else: out.append(x)
        pro1[:] = out
        setup.insert(2, raw("s_memtime s[98:99]"))
        setup.insert(2, raw("s_load_dwordx2 s[4:5], s[0:1], 40"))
        setup += [raw("s_mov_b32 s6, 327155712"), raw("s_mov_b32 s7, 0x20000"), raw("s_mov_b32 s100, s98"),
                  raw(f"s_lshl_b32 s3, s2, 2"), raw(f"s_add_u32 s3, s3, s{S_W}"), raw("s_mul_i32 s3, s3, 2048")]
        def dump():
            o = [raw("s_memtime s[56:57]"), raw("s_memrealtime s[58:59]"), raw("s_waitcnt lgkmcnt(0)", "wait")]
            for i in range(20): o.append(raw(f"v_writelane_b32 v11, s{60+2*i}, {i}", "valu"))
            o += [raw("v_writelane_b32 v11, s56, 20", "valu"), raw("v_writelane_b32 v11, s58, 21", "valu"), raw("v_writelane_b32 v11, s100, 22", "valu"),
                  raw("v_lshlrev_b32_e32 v0, 2, v0", "valu"),
                  raw("buffer_store_dword v11, v0, s[4:7], s3 offen", "vstore"), raw("s_nop 1"), raw("v_lshrrev_b32_e32 v0, 2, v0", "valu"), raw("s_add_u32 s3, s3, 256")]
            return o
        seg_rot[0:0] = dump()
        rot_p[0:0] = dump()
        seg_tail += [raw("s_waitcnt vmcnt(0)", "wait")] + dump()
    est = [estimate(S_) for S_ in (pro1 + pro2, seg_it0, seg_rest, seg_tail)]
    sys.stderr.write(f"G={G} waits={nw} nops={nn} est pro/it0/rest/tail={est} job={est[1]+est[2]} mfma_floor={16*G}\n")
    return errs, [setup, pro1, rot_p, pro2, seg_rest, seg_rot, seg_it0, seg_tail], S, its

HEADER = f"""; MHA forward, B=16 H=32 S=624 D=128 bf16.  Generated by gen/gen.py (hand written generator).
; @launch grid=(256,1,1) block=(256,1,1) lds={LDS_BYTES}
.amdgcn_target "amdgcn-amd-amdhsa--gfx950"
.text
.globl {NAME}_kernel
.p2align 8
.type {NAME}_kernel,@function
{NAME}_kernel:
"""
FOOTER = f"""L_end:
    s_endpgm
.section .rodata,"a"
.p2align 6
.amdhsa_kernel {NAME}_kernel
  .amdhsa_next_free_vgpr 512
  .amdhsa_next_free_sgpr 102
  .amdhsa_accum_offset 256
  .amdhsa_group_segment_fixed_size 0
  .amdhsa_kernarg_size 48
  .amdhsa_user_sgpr_count 2
  .amdhsa_user_sgpr_kernarg_segment_ptr 1
  .amdhsa_system_sgpr_workgroup_id_x 1
.end_amdhsa_kernel
"""

def emit(segs, extra=""):
    s = HEADER
    for seg in segs:
        for x in seg:
            if x.kind == "label": s += x.text + "\n"
            else: s += "    " + x.text + "\n"
    return s + extra + FOOTER

if __name__ == "__main__":
    cfg.tcap = 20
    cfg.drain_step = 62
    cfg.drain0 = 100
    cfg.qlag = 290
    for a in sys.argv[2:]:
        k, v = a.split("="); setattr(cfg, k, eval(v))
    errs, segs, S, its = build()
    for e in errs[:30]: sys.stderr.write(e + "\n")
    sys.stderr.write(f"{len(errs)} dataflow errors\n")
    from slow import slow_path
    open(sys.argv[1], "w").write(emit(segs, slow_path()))
```

```python
import re

def R(f, lo, n=1):
    return [f"{f}{lo+i}" for i in range(n)]
def rs(f, lo, n=1):
    return f"{f}{lo}" if n == 1 else f"{f}[{lo}:{lo+n-1}]"

COST = dict(mfma=8, valu=4, trans=8, pk=4, lds_r=4, lds_w64=12, lds_w128=20, dma=16, dma2=8, vload=16, vstore=20,
            salu=4, wait=4, barrier=4, nop=4, branch=4, label=0, salu0=0, perm=8, lds_w32=8)

class I:
    __slots__ = ("text", "kind", "rd", "wr", "aff", "ab", "c", "note", "gap", "need")
    def __init__(self, text, kind, rd=(), wr=(), aff=0, ab=(), c=(), note="", need=()):
        self.text = text; self.kind = kind
        self.rd = list(rd); self.wr = list(wr); self.aff = aff
        self.ab = list(ab); self.c = list(c)
        self.note = note; self.gap = None
        self.need = list(need)
    def shifted(self, d):
        def sh(l):
            return [(r, (t[0], t[1] + d) + tuple(t[2:]) if t is not None and t[1] is not None else t) for r, t in l]
        n = I(self.text, self.kind, sh(self.rd), sh(self.wr), self.aff + d, self.ab, self.c, self.note, sh(self.need))
        n.gap = self.gap
        return n
    def copy(self):
        return self.shifted(0)
    def __repr__(self):
        return self.text

def tagged(regs, tag):
    if tag is None:
        return [(r, None) for r in regs]
    return [(r, tag + (i,)) for i, r in enumerate(regs)]

VALU_KINDS = ("valu", "trans", "pk", "perm")
LDS_KINDS = ("lds_r", "lds_w64", "lds_w128", "lds_w32")
VMEM_KINDS = ("dma", "dma2", "vload", "vstore")

def check_dataflow(seq):
    cur = {}
    errs = []
    def ab(t, j):
        return None if t is None else ((t[0], None if t[1] is None else t[1] + j) + tuple(t[2:]))
    for idx, (ins, j, live) in enumerate(seq):
        if live:
            for r, t in ins.rd + ins.need:
                if t is None: continue
                want = ab(t, j)
                if cur.get(r) != want:
                    errs.append(f"[{idx}] job{j} '{ins.text}' reads {r}: want {want} has {cur.get(r)}")
        for r, t in ins.wr:
            cur[r] = ab(t, j)
    return errs

def states(ins):
    if ins.kind == "label": return 0
    if ins.kind == "nop":
        return int(ins.text.split()[1]) + 1
    return 1

def hazard_need(p, c):
    need = 0
    pw = {r for r, _ in p.wr}; pr = {r for r, _ in p.rd}
    cw = {r for r, _ in c.wr}; cr = {r for r, _ in c.rd}
    if p.kind in VALU_KINDS:
        if c.kind == "mfma" and pw & cr: need = max(need, 2)
        if c.kind == "perm" and pw & cr: need = max(need, 2)
        if p.kind == "trans" and c.kind in ("valu", "pk", "perm") and pw & cr: need = max(need, 1)
        if "readfirstlane" in c.text or "readlane" in c.text:
            if pw & cr: need = max(need, 1)
        sw = {r for r in pw if r[0] == "s" or r == "vcc"}
        if sw & cr:
            if c.kind in VMEM_KINDS: need = max(need, 5)
            elif c.kind in VALU_KINDS: need = max(need, 2)
            else: need = max(need, 1)
    if p.kind == "mfma":
        if c.kind == "mfma":
            if pw & set(c.ab): need = max(need, 8)
            if pw & set(c.c) and ([r for r, _ in p.wr] != list(c.c) or p.text.split()[0] != c.text.split()[0]): need = max(need, 8)
        else:
            if pw & (cr | cw): need = max(need, 8)
            if c.kind in VALU_KINDS and set(p.c) & cw: need = max(need, 3)
    if p.kind == "salu" and "m0" in pw and c.kind in ("dma", "dma2"): need = max(need, 1)
    if p.kind in ("vstore", "lds_w64", "lds_w128", "lds_w32") and pr & cw: need = max(need, 2)
    return need

def insert_nops(segs_paths, verbose=False):
    total = 0
    changed = True
    while changed:
        changed = False
        for path in segs_paths:
            flat = [(seg, k) for seg in path for k in range(len(seg))]
            for n in range(len(flat)):
                seg, k = flat[n]
                c = seg[k]
                if c.kind in ("label", "nop", "wait", "barrier", "branch"): continue
                dist = 0
                short = 0
                m = n - 1
                while m >= 0 and dist < 8:
                    p = flat[m][0][flat[m][1]]
                    nd = hazard_need(p, c)
                    if nd > dist:
                        short = max(short, nd - dist)
                        why = p
                    dist += states(p)
                    m -= 1
                if short:
                    seg.insert(k, I(f"s_nop {short-1}", "nop", note=f"hz: {why.text[:40]}"))
                    total += short
                    if verbose: print("nop", short, "before", c.text, "after", why.text)
                    changed = True
                    break
            if changed: break
    return total

def insert_waits(segs_paths):
    req = {}
    for path in segs_paths:
        flat = [ins for seg in path for ins in seg]
        vmq = []; lgq = []
        for ins in flat:
            used = {r for r, _ in ins.rd} | {r for r, _ in ins.need} | {r for r, _ in ins.wr}
            if ins.kind == "wait" and ins.note == "full":
                lgq = []; continue
            nv = nl = None
            for qi in range(len(vmq) - 1, -1, -1):
                if vmq[qi] & used:
                    nv = len(vmq) - 1 - qi; break
            for qi in range(len(lgq) - 1, -1, -1):
                if lgq[qi] & used:
                    nl = len(lgq) - 1 - qi; break
            cur = req.setdefault(id(ins), [None, None])
            if nv is not None: cur[0] = nv if cur[0] is None else min(cur[0], nv)
            if nl is not None: cur[1] = nl if cur[1] is None else min(cur[1], nl)
            if nv is not None: vmq = vmq[len(vmq) - nv:] if nv else []
            if nl is not None: lgq = lgq[len(lgq) - nl:] if nl else []
            if ins.kind in VMEM_KINDS:
                vmq.append(set() if ins.kind == "vstore" else {r for r, _ in ins.wr})
            elif ins.kind in LDS_KINDS:
                lgq.append({r for r, _ in ins.wr if r[0] in "va" and r[1:].isdigit()})
    done = set()
    n = 0
    for path in segs_paths:
        for seg in path:
            if id(seg) in done: continue
            done.add(id(seg))
            out = []
            for ins in seg:
                v, l = req.get(id(ins), (None, None))
                if v is not None or l is not None:
                    parts = []
                    if v is not None:
                        assert v <= 62
                        parts.append(f"vmcnt({v})")
                    if l is not None:
                        l = min(l, 14)
                        parts.append(f"lgkmcnt({l})")
                    if parts:
                        k = len(out); v2, l2 = v, l
                        ok = False
                        while k > 0 and len(out) - k < 6 and ins.kind != "barrier":
                            p = out[k - 1]
                            if p.kind == "mfma": ok = True; break
                            if p.kind in ("label", "branch", "barrier", "wait", "salu", "nop"): break
                            if p.kind in VMEM_KINDS and v2 is not None:
                                if v2 == 0: break
                                v2 -= 1
                            if p.kind in LDS_KINDS and l2 is not None:
                                if l2 == 0: break
                                l2 -= 1
                            k -= 1
                        if ok:
                            parts = ([f"vmcnt({v2})"] if v2 is not None else []) + ([f"lgkmcnt({l2})"] if l2 is not None else [])
                            out.insert(k, I("s_waitcnt " + " ".join(parts), "wait"))
                        else:
                            out.append(I("s_waitcnt " + " ".join(parts), "wait"))
                        n += 1
                out.append(ins)
            seg[:] = out
    return n

def estimate(seq):
    t = 0
    vec_free = 0
    pipe_free = 0
    last_valu = False
    pk_end = 0
    for ins in seq:
        k = ins.kind
        if k == "label": continue
        if k == "mfma":
            s = max(t, vec_free, pipe_free, pk_end)
            pipe_free = s + 16; vec_free = s + 8; t = s + 4; last_valu = False
        elif k == "pk":
            s = max(t, vec_free, pipe_free + 12)
            t = vec_free = s + 4; last_valu = True
        elif k in VALU_KINDS:
            s = max(t, vec_free); t = vec_free = s + COST[k]; last_valu = True
        elif k in LDS_KINDS or k in VMEM_KINDS:
            s = max(t, vec_free) + (8 if last_valu else 0); t = vec_free = s + COST[k]; last_valu = False
        elif k == "nop":
            t += 4 * states(ins)
        elif k == "barrier":
            t += 44
        else:
            t += 4
    return max(t, pipe_free)
```

```python
from core import *

def slow_path(G):
    cfg = G.cfg
    S_J, S_HO, S_KO, S_CNT = G.S_X0 + 2, G.S_X0 + 3, G.S_X0 + 4, G.S_X0 + 5
    VA0, VA1 = 12, 13
    MX = 28
    def raw(t, k="salu", rd=(), wr=()): return I(t, k, [(r, None) for r in rd], [(r, None) for r in wr])
    full = lambda: raw("s_waitcnt vmcnt(0) lgkmcnt(0)", "wait")
    lab = lambda n: I(n + ":", "label")
    def dma(srd, ldsoff):
        o = [raw(f"s_add_u32 m0, s{G.S_LST}, {ldsoff}", wr=["m0"])]
        for b in range(4):
            off = f" offset:{b*1024}" if b else ""
            o.append(raw(f"buffer_load_dwordx4 v{G.V_VOFF1 if b & 1 else G.V_VOFF}, {G.srd(srd)}, s{S_KO} offen{off} lds", "dma", ["m0"]))
        return o
    def kreads():
        return [raw(f"ds_read_b128 {rs('a', G.Kreg(0,0,s), 4)}, v{G.V_QADDR} offset:{s*256}", "lds_r", [], R("a", G.Kreg(0, 0, s), 4)) for s in range(4)]
    def qk(t, withm):
        o = []
        for s in range(4):
            c = G.Sreg(t, 0) if s else (G.Nreg(t) if withm else None)
            o.append(G.mfma("v", G.Sreg(t, 0), "a", G.Kreg(0, 0, s), "a", G.Qreg(t, s), "v", c, None, None, None, None))
        return o
    head = [raw(f"s_cmp_eq_u32 s{G.S_FAIL}, 0"), raw("s_cbranch_scc1 L_end", "branch"), full(),
            raw(f"s_mov_b32 s{S_J}, 0"), raw(f"s_mov_b32 s{S_HO}, s{G.S_H0}"),
            raw(f"s_add_u32 s{S_KO}, s{G.S_LST}, {4096 - G.VRING}"),
            raw(f"v_add_u32_e32 v{VA0}, s{S_KO}, v{G.V_VA0}", "valu", [], [f"v{VA0}"]),
            raw(f"v_add_u32_e32 v{VA1}, s{S_KO}, v{G.V_VA1}", "valu", [], [f"v{VA1}"])]
    job = [lab("L_sj"), raw(f"s_bitcmp1_b32 s{G.S_FAIL}, s{S_J}"), raw("s_cbranch_scc0 L_snext", "branch"),
           raw(f"s_add_u32 s{G.S_QC}, s{S_HO}, s{G.S_QREL}"), raw(f"s_add_u32 s{G.S_QC4}, s{G.S_QC}, s{G.S_T4OFF}"),
           raw(f"s_mov_b32 s{G.S_OP}, s{G.S_QC}"), raw(f"s_mov_b32 s{G.S_OP4}, s{G.S_QC4}")]
    land = lambda b: G.V_O + 4 * b
    for b in range(20): job += [x for x in G.q_load(0, b, land(b)) if x is not None]
    job.append(full())
    for b in range(20):
        vs, wr = G.q_scale(0, b, land(b), tmp=(14, 15)); job += vs + [wr]
    job += [G.q_read(0, t, s) for t in range(G.NT) for s in range(4)]
    for t in range(G.NT): job.append(raw(f"v_mov_b32_e32 v{MX+t}, 0xff800000", "valu", [], [f"v{MX+t}"]))
    job += [raw(f"s_mov_b32 s{S_KO}, s{S_HO}"), raw(f"s_mov_b32 s{S_CNT}, 39"), full()]
    p1 = [lab("L_sp1")] + dma(G.S_K, 0) + [full()] + kreads() + [full()]
    for t in range(G.NT): p1 += qk(t, False)
    for t in range(G.NT):
        s = G.Sreg(t, 0); m = f"v{MX+t}"
        p1.append(raw(f"v_max3_f32 {m}, {m}, v{s}, v{s+1}", "valu", [m, f"v{s}", f"v{s+1}"], [m]))
        p1.append(raw(f"v_max3_f32 {m}, {m}, v{s+2}, v{s+3}", "valu", [m, f"v{s+2}", f"v{s+3}"], [m]))
    loopend = lambda l: [raw(f"s_add_u32 s{S_KO}, s{S_KO}, 4096"), raw(f"s_sub_u32 s{S_CNT}, s{S_CNT}, 1"),
                         raw(f"s_cmp_lg_u32 s{S_CNT}, 0"), raw(f"s_cbranch_scc1 {l}", "branch")]
    p1 += loopend("L_sp1")
    mid = []
    tmp = f"v{MX+5}"
    for t in range(G.NT):
        m = f"v{MX+t}"
        for sw in ("v_permlane32_swap_b32_e32", "v_permlane16_swap_b32_e32"):
            mid.append(raw(f"v_mov_b32_e32 {tmp}, {m}", "valu", [m], [tmp]))
            mid.append(raw(f"{sw} {m}, {tmp}", "perm", [m, tmp], [m, tmp]))
            mid.append(raw(f"v_max_f32_e32 {m}, {m}, {tmp}", "valu", [m, tmp], [m]))
        for x in range(4):
            n = f"v{G.Nreg(t)+x}"
            mid.append(raw(f"v_sub_f32_e32 {n}, 0, {m}", "valu", [m], [n]))
    for r in range(160): mid.append(raw(f"v_mov_b32_e32 v{G.V_O+r}, 0", "valu", [], [f"v{G.V_O+r}"]))
    for r in range(20): mid.append(raw(f"v_accvgpr_write_b32 a{G.A_L+r}, 0", "valu", [], [f"a{G.A_L+r}"]))
    mid += [raw(f"s_mov_b32 s{S_KO}, s{S_HO}"), raw(f"s_mov_b32 s{S_CNT}, 39")]
    L = G.NSTEP - 1
    vb = L & 1
    p2 = [lab("L_sp2")] + dma(G.S_K, 0) + dma(G.S_V, 4096) + [full()] + kreads()
    for dt in range(8):
        r = G.Vreg(vb, dt)
        p2.append(raw(f"ds_read_b64_tr_b16 {rs('a', r, 2)}, v{VA1 if dt & 1 else VA0} offset:{(dt>>1)*256}", "lds_r", [], R("a", r, 2)))
    p2.append(full())
    for t in range(G.NT): p2 += qk(t, True)
    for t in range(G.NT):
        p2 += [G.exp_ins(0, L, t, 0, r, None) for r in range(4)]
    for t in range(G.NT):
        p2 += [G.cvt_ins(0, L, t, p) for p in range(2)]
    for t in range(G.NT):
        p2 += [G.pv_mfma(0, L, t, dt) for dt in range(8)] + [G.sum_mfma(0, L, t)]
    p2 += loopend("L_sp2")
    fin = []
    for t in range(G.NT):
        hd, acc, per = G.epilogue(0, t)
        fin += [hd[0], hd[2]]
        for vs, w in per: fin += vs + [w]
    for b0 in range(0, 20, 4):
        dr = [G.o_drain(0, b, b & 3) for b in range(b0, b0 + 4)]
        fin += [d[1] for d in dr] + [dr[0][0], full()] + [d[2] for d in dr]
    fin.append(full())
    nxt = [lab("L_snext"), raw(f"s_add_u32 s{S_J}, s{S_J}, 1"), raw(f"s_add_u32 s{S_HO}, s{S_HO}, {G.JOBSTRIDE}"),
           raw(f"s_cmp_lt_u32 s{S_J}, 4"), raw("s_cbranch_scc1 L_sj", "branch")]
    insert_nops([[head, job, p1, p1, mid, p2, p2, fin, nxt, job]])
    return [head, job, p1, mid, p2, fin, nxt]
```

```python
import sys, struct
from core import *

NAME = "standalone__mha_softmax__near_ridge"
HEAD = 624 * 256
TOTAL = 512 * HEAD
OOB = 0x40000000
NS = 5
KRING = 0
VRING = NS * 8192
STAGE = 2 * NS * 8192
LDS_BYTES = STAGE + 4 * 20480
NT = 5
NSTEP = 20
JOBSTRIDE = 128 * HEAD
CSCALE = 0.08838834764831845 * 1.4426950408889634
THRESH = float(2 ** 30)
def f32bits(x): return struct.unpack("<I", struct.pack("<f", x))[0]

class Cfg:
    pk_epi = False
    qflags = 'nt'
    kvflags = 'nt'
    oflags = 'nt'
    prof = False
cfg = Cfg()

V_TMP0 = 0
V_VOFF, V_KADDR, V_VA0, V_VA1, V_LIN, V_OW0, V_OW1, V_QADDR = 1, 2, 3, 4, 5, 6, 7, 8
V_U0, V_U1 = 9, 10
V_VOFF1 = 25
V_QS = [12, 16, 28, 32]
V_RCP = 20
V_MX = 26
V_NEGM = 36
V_S = 56
V_O = 96
A_Q = 0
A_K = 80
A_V = 144
A_L = 208
A_ONE = 228
A_RB = 232
def Oreg(t, dt): return V_O + 32 * t + 4 * dt
def Sreg(t, kt): return V_S + 8 * t + 4 * kt
def Nreg(t): return V_NEGM + 4 * t
def Qreg(t, s): return A_Q + 16 * t + 4 * s
def Kreg(b, kt, s): return A_K + 32 * b + 16 * kt + 4 * s
def Vreg(b, dt): return A_V + 32 * b + 4 * dt
def Lreg(t): return A_L + 4 * t

S_Q, S_K, S_V, S_O = 8, 12, 16, 20
S_W = 24
S_JOB = 25
S_KVC, S_KVN, S_KV19 = 26, 27, 28
S_QN, S_QN4, S_QC, S_QC4, S_OP, S_OP4 = 29, 30, 31, 32, 33, 34
S_LW = 35
S_LST = 36
S_C = 37
S_MASK = 38
S_THR = 39
S_FACC = 40
S_FAIL = 42
S_PBIT, S_CBIT = 43, 44
S_T0, S_T1, S_T2, S_T3 = 45, 46, 47, 48
S_W19 = 49
S_T4OFF = 50
S_QREL = 51
S_H0 = 52
S_X0 = 54

def srd(b): return f"s[{b}:{b+3}]"

def salu(text, rd=(), wr=(), aff=0): return I(text, "salu", rd, wr, aff)
def valu(text, rd=(), wr=(), aff=0, kind="valu"): return I(text, kind, rd, wr, aff)

def mfma(dF, d, aF, a, bF, b, cF, c, dtag, atag, btag, ctag, k16=False, aff=0):
    n = 2 if k16 else 4
    op = "v_mfma_f32_16x16x16_bf16" if k16 else "v_mfma_f32_16x16x32_bf16"
    ctext = "0" if c is None else rs(cF, c, 4)
    A = R(aF, a, n); B = R(bF, b, n); C = [] if c is None else R(cF, c, 4)
    return I(f"{op} {rs(dF,d,4)}, {rs(aF,a,n)}, {rs(bF,b,n)}, {ctext}", "mfma",
             tagged(A, atag) + tagged(B, btag) + tagged(C, ctag), tagged(R(dF, d, 4), dtag), aff, ab=A + B, c=C)

def pv_mfma(j, i, t, dt):
    k16 = i == NSTEP - 1
    c = None if i == 0 else Oreg(t, dt)
    return mfma("v", Oreg(t, dt), "a", Vreg(i & 1, dt), "v", Sreg(t, 0), "v", c,
                ("O", j, i, t, dt), ("Vf", j, i, dt), ("P", j, i, t), ("O", j, i - 1, t, dt), k16, aff=j)
def sum_mfma(j, i, t):
    k16 = i == NSTEP - 1
    c = None if i == 0 else Lreg(t)
    return mfma("a", Lreg(t), "a", A_ONE, "v", Sreg(t, 0), "a", c,
                ("L", j, i, t), ("one", None), ("P", j, i, t), ("L", j, i - 1, t), k16, aff=j)
def qk_mfma(j, i, t, kt, s):
    if s == 0:
        c = None if i == 0 else Nreg(t); ctag = ("negm", j, t)
    else:
        c = Sreg(t, kt); ctag = ("S", j, i, t, kt, s - 1)
    return mfma("v", Sreg(t, kt), "a", Kreg(i & 1, kt, s), "a", Qreg(t, s), "v", c,
                ("S", j, i, t, kt, s), ("Kf", j, i, kt, s), ("Q", j, t, s), ctag, aff=j)

def k_read(j, i, kt, s):
    off = KRING + (i % NS) * 8192 + kt * 4096 + s * 256
    r = Kreg(i & 1, kt, s)
    return I(f"ds_read_b128 {rs('a',r,4)}, v{V_KADDR} offset:{off}", "lds_r",
             [(f"v{V_KADDR}", None), (f"KV{i%NS}", ("Kv", j, i))], tagged(R("a", r, 4), ("Kf", j, i, kt, s)), j)
def v_read(j, i, dt, half):
    off = (i % NS) * 8192 + half * 4096 + (dt >> 1) * 256
    r = Vreg(i & 1, dt) + 2 * half
    va = V_VA1 if dt & 1 else V_VA0
    wr = [(f"a{r+x}", ("Vf", j, i, dt, 2 * half + x)) for x in range(2)]
    return I(f"ds_read_b64_tr_b16 {rs('a',r,2)}, v{va} offset:{off}", "lds_r",
             [(f"v{va}", None), (f"VV{i%NS}", ("Vv", j, i))], wr, j)
def q_read(j, t, s):
    off = t * 4096 + s * 256
    r = Qreg(t, s)
    need = [(f"ST{t*4+rb}", ("Qs", j, t * 4 + rb)) for rb in range(4)]
    return I(f"ds_read_b128 {rs('a',r,4)}, v{V_QADDR} offset:{off}", "lds_r",
             [(f"v{V_QADDR}", None)] + need, tagged(R("a", r, 4), ("Q", j, t, s)), j)

def kv_dma(which, j, tile):
    st = S_T0 if which == "K" else S_T1
    sr = S_K if which == "K" else S_V
    ring = KRING if which == "K" else VRING
    out = []
    stag = ("so" + which, j, tile)
    if tile == NSTEP - 1:
        assert j == 0
        out.append(salu(f"s_mov_b32 s{st}, s{S_KV19}", [(f"s{S_KV19}", ("kv19", j))], [(f"s{st}", stag)], j))
    else:
        base = S_KVC if j == 0 else S_KVN
        out.append(salu(f"s_add_u32 s{st}, s{base}, {tile*8192}", [(f"s{base}", ("kvb", j))], [(f"s{st}", stag)], j))
    mtag = ("m0" + which, j, tile)
    out.append(salu(f"s_add_u32 m0, s{S_LW}, {ring + (tile % NS) * 8192}", [], [("m0", mtag)], j))
    for a in range(2):
        res = ("KR" if which == "K" else "VR") + f"{tile % NS}_{a}"
        free = ("KF" if which == "K" else "VF") + f"{tile % NS}"
        o = " offset:1024" if a else ""
        if cfg.kvflags: o += " " + cfg.kvflags
        out.append(I(f"buffer_load_dwordx4 v{V_VOFF1 if a else V_VOFF}, {srd(sr)}, s{st} offen{o} lds", "dma2" if a else "dma",
                     [("m0", mtag), (f"s{st}", stag), (f"v{V_VOFF}", None), (free, ("free" + which, j, tile))],
                     [(res, (which + "d", j, tile, a))], j))
    return out

def barrier(i):
    kj, kt_ = (0, i + 1) if i + 1 < NSTEP else (1, 0)
    need = [(f"KR{kt_%NS}_{a}", ("Kd", kj, kt_, a)) for a in range(2)] + [(f"VR{i%NS}_{a}", ("Vd", 0, i, a)) for a in range(2)]
    nkt = 1 if i == NSTEP - 1 else 2
    for kt in range(nkt):
        for s in range(4): need += [(r, None) for r in R("a", Kreg(i & 1, kt, s), 4)]
    for dt in range(8): need += [(r, None) for r in R("a", Vreg((i - 1) & 1, dt), 4)]
    fk = i + NS; fv = i - 1 + NS
    wr = [(f"KV{kt_%NS}", ("Kv", kj, kt_)), (f"VV{i%NS}", ("Vv", 0, i)),
          (f"KF{fk%NS}", ("freeK", fk // NSTEP, fk % NSTEP)), (f"VF{fv%NS}", ("freeV", fv // NSTEP, fv % NSTEP)),
          (f"KV{i%NS}", ("dead", None)), (f"VV{(i-1)%NS}", ("dead", None))]
    return I("s_barrier", "barrier", [], wr, 0, need=need)

def blk_goff(b):
    return (b & 3) * 1024

def q_load(j, b, q):
    t = b >> 2
    stag = ("soQ", j, t)
    so = None
    if b & 3 == 0:
        if t == 4:
            bs = S_QN4 if j == 1 else S_QC4
            so = salu(f"s_mov_b32 s{S_T2}, s{bs}", [(f"s{bs}", ("qb4", j))], [(f"s{S_T2}", stag)], j)
        else:
            bs = S_QN if j == 1 else S_QC
            so = salu(f"s_add_u32 s{S_T2}, s{bs}, {t*4096}", [(f"s{bs}", ("qb", j))], [(f"s{S_T2}", stag)], j)
    go = blk_goff(b)
    o = f" offset:{go}" if go else ""
    nt = (" " + cfg.qflags) if cfg.qflags else ""
    ld = I(f"buffer_load_dwordx4 {rs('v',q,4)}, v{V_VOFF1 if b & 1 else V_VOFF}, {srd(S_Q)}, s{S_T2} offen{o}{nt}", "vload",
           [(f"s{S_T2}", stag), (f"v{V_VOFF}", None)], tagged(R("v", q, 4), ("qs0", j, b)), j)
    return so, ld

def q_scale(j, b, q):
    vs = []
    for x in range(4):
        r = q + x; u = V_U0 if x & 1 == 0 else V_U1
        vs.append(valu(f"v_lshlrev_b32_e32 v{u}, 16, v{r}", [(f"v{r}", ("qs0", j, b, x))], [(f"v{u}", ("u0", j, b, x))], j))
        vs.append(valu(f"v_and_b32_e32 v{r}, s{S_MASK}, v{r}", [(f"v{r}", ("qs0", j, b, x))], [(f"v{r}", ("qs1", j, b, x))], j))
        vs.append(valu(f"v_mul_f32_e32 v{u}, s{S_C}, v{u}", [(f"v{u}", ("u0", j, b, x))], [(f"v{u}", ("u1", j, b, x))], j))
        vs.append(valu(f"v_mul_f32_e32 v{r}, s{S_C}, v{r}", [(f"v{r}", ("qs1", j, b, x))], [(f"v{r}", ("qs2", j, b, x))], j))
        vs.append(valu(f"v_cvt_pk_bf16_f32 v{r}, v{u}, v{r}", [(f"v{u}", ("u1", j, b, x)), (f"v{r}", ("qs2", j, b, x))],
                       [(f"v{r}", ("qs3", j, b, x))], j))
    wr = I(f"ds_write_b128 v{V_LIN}, {rs('v',q,4)} offset:{b*1024}", "lds_w128",
           [(f"v{V_LIN}", None), (f"ST{b}", ("Ofree", j - 2, b))] + tagged(R("v", q, 4), ("qs3", j, b)), [(f"ST{b}", ("Qs", j, b))], j)
    return vs, wr

def o_drain(j, b, buf):
    t = b >> 2
    r = A_RB + 4 * buf
    stag = ("soO", j, t)
    so = None
    if b & 3 == 0:
        if t == 4:
            so = salu(f"s_mov_b32 s{S_T3}, s{S_OP4}", [(f"s{S_OP4}", ("qb4", j))], [(f"s{S_T3}", stag)], j)
        else:
            so = salu(f"s_add_u32 s{S_T3}, s{S_OP}, {t*4096}", [(f"s{S_OP}", ("qb", j))], [(f"s{S_T3}", stag)], j)
    rdeps = [(f"SO{t}_{dt}", ("Ow", j, t, dt)) for dt in range(8)]
    rd = I(f"ds_read_b128 {rs('a',r,4)}, v{V_LIN} offset:{b*1024}", "lds_r",
           [(f"v{V_LIN}", None)] + rdeps, tagged(R("a", r, 4), ("rb", j, b)) + [(f"ST{b}", ("Ofree", j, b))], j)
    go = blk_goff(b)
    o = f" offset:{go}" if go else ""
    nt = (" " + cfg.oflags) if cfg.oflags else ""
    st = I(f"buffer_store_dwordx4 {rs('a',r,4)}, v{V_VOFF1 if b & 1 else V_VOFF}, {srd(S_O)}, s{S_T3} offen{o}{nt}", "vstore",
           tagged(R("a", r, 4), ("rb", j, b)) + [(f"s{S_T3}", stag), (f"v{V_VOFF}", None)], [], j, note=f"free{b}")
    return so, rd, st

def exp_ins(j, i, t, kt, r, srctag):
    reg = Sreg(t, kt) + r
    return valu(f"v_exp_f32_e32 v{reg}, v{reg}", [(f"v{reg}", srctag)], [(f"v{reg}", ("E", j, i, t, kt, r))], j, "trans")
def cvt_ins(j, i, t, p):
    kt = p >> 1; r = (p & 1) * 2
    a = Sreg(t, kt) + r; d = Sreg(t, 0) + p
    return valu(f"v_cvt_pk_bf16_f32 v{d}, v{a}, v{a+1}",
                [(f"v{a}", ("E", j, i, t, kt, r)), (f"v{a+1}", ("E", j, i, t, kt, r + 1))], [(f"v{d}", ("P", j, i, t, p))], j)

def max_chain(j, t):
    m0 = V_MX; m1 = m0 + 1
    s = Sreg(t, 0)
    def st(x): return (f"v{s+x}", ("S", j, 0, t, x >> 2, 3, x & 3))
    T = lambda n: ("mx", j, t, n)
    ch = [
        valu(f"v_max3_f32 v{m0}, v{s}, v{s+1}, v{s+2}", [st(0), st(1), st(2)], [(f"v{m0}", T(0))], j),
        valu(f"v_max3_f32 v{m0}, v{m0}, v{s+3}, v{s+4}", [(f"v{m0}", T(0)), st(3), st(4)], [(f"v{m0}", T(1))], j),
        valu(f"v_max3_f32 v{m0}, v{m0}, v{s+5}, v{s+6}", [(f"v{m0}", T(1)), st(5), st(6)], [(f"v{m0}", T(2))], j),
        valu(f"v_max_f32_e32 v{m1}, v{m0}, v{s+7}", [(f"v{m0}", T(2)), st(7)], [(f"v{m1}", T(3))], j),
        valu(f"v_max_f32_e32 v{m0}, v{m0}, v{s+7}", [(f"v{m0}", T(2)), st(7)], [(f"v{m0}", T(3))], j),
        valu(f"v_permlane32_swap_b32_e32 v{m0}, v{m1}", [(f"v{m0}", T(3)), (f"v{m1}", T(3))], [(f"v{m0}", T(4)), (f"v{m1}", T(5))], j, "perm"),
        valu(f"v_max_f32_e32 v{m0}, v{m0}, v{m1}", [(f"v{m0}", T(4)), (f"v{m1}", T(5))], [(f"v{m0}", T(6))], j),
        valu(f"v_mov_b32_e32 v{m1}, v{m0}", [(f"v{m0}", T(6))], [(f"v{m1}", T(6))], j),
        valu(f"v_permlane16_swap_b32_e32 v{m0}, v{m1}", [(f"v{m0}", T(6)), (f"v{m1}", T(6))], [(f"v{m0}", T(7)), (f"v{m1}", T(8))], j, "perm"),
    ]
    for x in range(4):
        n = Nreg(t) + x
        ch.append(valu(f"v_min_f32_e64 v{n}, -v{m0}, -v{m1}", [(f"v{m0}", T(7)), (f"v{m1}", T(8))], [(f"v{n}", ("negm", j, t, x))], j))
    adds = {}
    for x in range(8):
        n = Nreg(t)
        adds[(x >> 2, x & 3)] = valu(f"v_add_f32_e32 v{s+x}, v{n}, v{s+x}", [(f"v{n}", ("negm", j, t, 0)), st(x)],
                                     [(f"v{s+x}", ("Sm", j, t, x))], j)
    return ch, adds

def epilogue(j, t, pk=False):
    L = NSTEP - 1
    rc = V_RCP + t
    head = [
        valu(f"v_accvgpr_read_b32 v{rc}, a{Lreg(t)}", [(f"a{Lreg(t)}", ("L", j, L, t, 0))], [(f"v{rc}", ("l", j, t))], j),
        valu(f"v_cmp_nge_f32_e32 vcc, s{S_THR}, v{rc}", [(f"v{rc}", ("l", j, t))], [("vcc", ("chk", j, t))], j),
        valu(f"v_rcp_f32_e32 v{rc}, v{rc}", [(f"v{rc}", ("l", j, t))], [(f"v{rc}", ("rl", j, t))], j, "trans"),
    ]
    acc = salu(f"s_or_b64 s[{S_FACC}:{S_FACC+1}], s[{S_FACC}:{S_FACC+1}], vcc", [("vcc", ("chk", j, t)), ("facc", ("facc", j, t - 1))],
               [("facc", ("facc", j, t)), ("scc", None)], j)
    per = []
    for dt in range(8):
        o = Oreg(t, dt)
        vs = []
        if pk:
            rb = rc & ~1
            sel = "op_sel:[0,1] op_sel_hi:[1,1]" if rc & 1 else "op_sel_hi:[1,0]"
            for x in (0, 2):
                vs.append(valu(f"v_pk_mul_f32 v[{o+x}:{o+x+1}], v[{o+x}:{o+x+1}], v[{rb}:{rb+1}] {sel}",
                               [(f"v{rc}", ("rl", j, t))] + [(f"v{o+x+y}", ("O", j, L, t, dt, x + y)) for y in range(2)],
                               [(f"v{o+x+y}", ("On", j, t, dt, x + y)) for y in range(2)], j, "pk"))
        else:
          for x in range(4):
            vs.append(valu(f"v_mul_f32_e32 v{o+x}, v{rc}, v{o+x}", [(f"v{rc}", ("rl", j, t)), (f"v{o+x}", ("O", j, L, t, dt, x))],
                           [(f"v{o+x}", ("On", j, t, dt, x))], j))
        vs.append(valu(f"v_cvt_pk_bf16_f32 v{o}, v{o}, v{o+1}", [(f"v{o}", ("On", j, t, dt, 0)), (f"v{o+1}", ("On", j, t, dt, 1))],
                       [(f"v{o}", ("Ob", j, t, dt, 0))], j))
        vs.append(valu(f"v_cvt_pk_bf16_f32 v{o+1}, v{o+2}, v{o+3}", [(f"v{o+2}", ("On", j, t, dt, 2)), (f"v{o+3}", ("On", j, t, dt, 3))],
                       [(f"v{o+1}", ("Ob", j, t, dt, 1))], j))
        ow = V_OW1 if dt & 1 else V_OW0
        off = t * 4096 + (dt >> 1) * 256
        w = I(f"ds_write_b64 v{ow}, {rs('v',o,2)} offset:{off}", "lds_w64",
              [(f"v{ow}", None)] + tagged(R("v", o, 2), ("Ob", j, t, dt)),
              [(f"SO{t}_{dt}", ("Ow", j, t, dt))] + [(f"ST{t*4+rb}", ("Ob", j)) for rb in range(4)], j)
        per.append((vs, w))
    return head, acc, per

def fail_commit(j):
    return [
        salu(f"s_cmp_lg_u64 s[{S_FACC}:{S_FACC+1}], 0", [("facc", ("facc", j, 4))], [("scc", ("fc", j))], j),
        salu(f"s_cselect_b32 s{S_X0}, s{S_PBIT}, 0", [("scc", ("fc", j)), (f"s{S_PBIT}", ("bit", j))], [(f"s{S_X0}", None)], j),
        salu(f"s_or_b32 s{S_FAIL}, s{S_FAIL}, s{S_X0}", [], [("scc", None)], j),
        salu(f"s_mov_b64 s[{S_FACC}:{S_FACC+1}], 0", [], [("facc", ("facc", j + 1, -1))], j),
    ]

class Task:
    n = 0
    def __init__(self, ins, rel, dl, preds=(), zone=False):
        self.ins = ins if isinstance(ins, list) else [ins]
        self.kind = self.ins[0].kind
        self.cost = sum(COST[x.kind] for x in self.ins)
        self.rel = rel; self.dl = dl; self.preds = list(preds); self.succ = []
        self.zone = zone
        self.g = None; self.id = Task.n; Task.n += 1
        for p, d in self.preds: p.succ.append((self, d))

class Sched:
    def __init__(self):
        self.sp = []
        self.sc = []; self.mem = []; self.val = []
        self.it_start = []
        self.tasks = []
        self.bars = []
    def add(self, m):
        self.sp.append(m); self.sc.append([]); self.mem.append([]); self.val.append([])
        return len(self.sp) - 1
    @property
    def G(self): return len(self.sp)
    def load(self, g):
        g %= self.G
        return sum(COST[x.kind] for x in self.mem[g] + self.val[g]) + 4 * max(0, len(self.sc[g]) - 1)
    def put(self, ins, g):
        w = g // self.G
        if w: ins = ins.shifted(-w)
        gg = g % self.G
        ins.gap = gg
        if ins.kind in ("salu", "barrier"): self.sc[gg].append(ins)
        elif ins.kind in VALU_KINDS: self.val[gg].append(ins)
        else: self.mem[gg].append(ins)
        return g
    def task(self, ins, rel, dl, preds=(), zone=False):
        t = Task(ins, rel, dl, preds, zone); self.tasks.append(t); return t
    def forbidden(self, g):
        g %= self.G
        for b in self.bars + [self.bars[0] + self.G]:
            if b - cfg.zpre <= g <= b + cfg.zpost: return True
        return False
    def run(self, cut):
        G = self.G
        for t in self.tasks:
            for p, d in t.preds: t.rel = max(t.rel, p.rel + d)
        for t in self.tasks:
            t.off = -((t.rel - cut) // G) * G
            t.r = t.rel + t.off; t.d = min(t.dl + t.off, cut + G - 1)
        for t in self.tasks:
            t.lp = [(p, d) for p, d in t.preds if p.off == t.off]
            for p, d in t.preds:
                if p.off != t.off:
                    assert p.off == t.off + G, (t.ins[0].text, p.ins[0].text)
                    p.d = min(p.d, t.r + G - d)
        for t in reversed(self.tasks):
            for s_, d in t.succ:
                if s_.off == t.off: t.d = min(t.d, s_.d - d)
            if t.zone:
                while self.forbidden(t.d): t.d -= 1
            assert t.d >= t.r, ("infeasible", t.ins[0].text, t.r, t.d)
        pend = sorted(self.tasks, key=lambda t: t.r)
        act = []; pi = 0
        lastz = [-99]
        def ready(t, g):
            if t.zone and (self.forbidden(g) or (g - lastz[0] < cfg.bigsep and t.d > g)): return False
            return all(p.g is not None and p.g + d <= g for p, d in t.lp)
        def commit(t, g):
            t.g = g; act.remove(t)
            if t.zone: lastz[0] = g
            for x in t.ins: self.put(x, g - t.off)
        for g in range(cut, cut + G):
            while pi < len(pend) and pend[pi].r <= g: act.append(pend[pi]); pi += 1
            key = lambda t: (t.d, t.id)
            isbar = (g % G) in self.bars
            while True:
                rs_ = sorted([t for t in act if t.kind == "salu" and ready(t, g)], key=key)
                if rs_ and (not self.sc[g % G] or rs_[0].d <= g): commit(rs_[0], g)
                else: break
            while not isbar:
                free = 8 - self.load(g)
                if free <= 0: break
                rd = sorted([t for t in act if t.kind not in ("salu", "pk") and ready(t, g)], key=key)
                if free == 8:
                    if not rd: break
                    t = rd[0]
                    if t.cost == 4:
                        partner = any(u.cost == 4 for u in rd[1:]) or any(s_.cost == 4 and d == 0 and s_.kind != "salu" for s_, d in t.succ)
                        full = [u for u in rd if u.cost >= 8]
                        if not partner and full and t.d > g + 2: t = full[0]
                    commit(t, g)
                else:
                    rd = [t for t in rd if t.cost <= free]
                    if not rd: break
                    commit(rd[0], g)
            while True:
                f = sorted([t for t in act if ready(t, g) and (t.d <= g or (t.kind == "pk" and not isbar))], key=key)
                if not f: break
                commit(f[0], g)
            late = [t for t in act if t.d <= g]
            assert not late, ("missed", g, late[0].ins[0].text, late[0].d)
        assert not act and pi == len(pend)
    def linear(self, g0, g1):
        out = []
        for g in range(g0, g1):
            out.append(self.sp[g]); out += self.sc[g]; out += self.mem[g]; out += self.val[g]
        return out

def build_schedule():
    S = Sched()
    pv0 = {}; pvend = {}; qkend = {}; qk0 = {}
    for i in range(NSTEP):
        S.it_start.append(S.G)
        for t in range(NT):
            j, st = (-1, NSTEP - 1) if i == 0 else (0, i - 1)
            for dt in range(8):
                g = S.add(pv_mfma(j, st, t, dt))
                if dt == 0: pv0[(i, t)] = g
            pvend[(i, t)] = S.add(sum_mfma(j, st, t))
            for kt in range(1 if i == NSTEP - 1 else 2):
                for s in range(4):
                    g = S.add(qk_mfma(0, i, t, kt, s))
                    if kt == 0 and s == 0: qk0[(i, t)] = g
                qkend[(i, t, kt)] = g
    G = S.G
    its = S.it_start + [G]
    for t in range(NT):
        for d in range(2):
            pv0[(NSTEP + d, t)] = pv0[(d, t)] + G; pvend[(NSTEP + d, t)] = pvend[(d, t)] + G; qk0[(NSTEP + d, t)] = qk0[(d, t)] + G
    LAT = cfg.lat
    T = S.task
    for i in range(NSTEP):
        S.put(barrier(i), its[i]); S.bars.append(its[i])
    mprev = None
    for i in range(NSTEP):
        for t in range(NT):
            nk = 1 if i == NSTEP - 1 else 2
            hi = pv0[(i + 1, t)] - 2
            if i == 0:
                ch, adds = max_chain(0, t)
                p = mprev
                lo = qkend[(0, t, 1)] + LAT
                negs = []
                for n, x in enumerate(ch):
                    isneg = n >= len(ch) - 4
                    q = T(x, lo, lo + cfg.maxwin, [] if p is None else [(p, 1 if x.kind == "perm" else 0)])
                    p = q
                    if isneg: negs.append(q)
                mprev = p
            pc = None
            for kt in range(nk):
                es = []
                for r in range(4):
                    if i == 0:
                        a_ = T(adds[(kt, r)], lo, hi, [(negs[0], 0)])
                        es.append(T(exp_ins(0, 0, t, kt, r, ("Sm", 0, t, 4 * kt + r)), lo, hi, [(a_, 0)]))
                    else:
                        es.append(T(exp_ins(0, i, t, kt, r, ("S", 0, i, t, kt, 3, r)), qkend[(i, t, kt)] + LAT, hi))
                    if r & 1:
                        pc = T(cvt_ins(0, i, t, 2 * kt + (r >> 1)), 0, hi, [(es[r - 1], 1), (es[r], 1)] + ([(pc, 0)] if pc else []))
    pd = None
    for i in range(NSTEP):
        lo = its[i] + 1; n = its[i + 1] - its[i]
        hi = its[i + 1] - cfg.rdmargin
        kj, kti = (0, i + 1) if i + 1 < NSTEP else (1, 0)
        vr = [v_read(0, i, dt, half) for dt in range(8) for half in range(1 if i == NSTEP - 1 else 2)]
        kr = [k_read(kj, kti, kt, s) for kt in range(1 if kti == NSTEP - 1 else 2) for s in range(4)]
        rds = weave2(vr, kr)
        pr_ = None
        for k, x in enumerate(rds):
            r = lo + int(k * (hi - lo - cfg.rdwin) / len(rds))
            pr_ = T(x, r, min(hi, r + cfg.rdwin), [(pr_, cfg.rdgap)] if pr_ else [])
        for x, (which, tile) in enumerate((("K", i + NS), ("V", i - 1 + NS))):
            so, m0, d0, d1 = kv_dma(which, tile // NSTEP, tile % NSTEP)
            r = lo + x * (n // 3)
            a_ = T(so, lo, hi)
            b_ = T(m0, r, hi, [(pd, 1)] if x else [])
            pd = T([d0, d1], r, r + cfg.zpost + 8, [(a_, 1), (b_, 1)], zone=True)
    epi_w = {}
    pacc = None; qr = {}
    c0 = its[2] + cfg.c0
    step = (G - cfg.zpre - 2 - c0) / 20
    NQ = len(V_QS)
    wt = {}; lt = {}; drt = {}
    def mkload(b, rel, preds):
        so, ld = q_load(1, b, V_QS[b % NQ])
        if so is not None:
            preds = preds + [(T(so, max(1, rel - 4), rel + 30, [(lt[b - 1], 1)] if b else []), 1)]
        if b: preds = preds + [(lt[b - 1], 0)]
        lt[b] = T(ld, rel, rel + cfg.qldwin, preds, zone=True)
    for b in range(NQ): mkload(b, 6 + b * cfg.q0step, [])
    epi = {t: epilogue(0, t, pk=cfg.pk_epi) for t in range(NT)}
    pst = None; pv_ = None
    for b in range(20):
        lo = c0 + int(b * step); hi = c0 + int((b + 1) * step) - 1
        so, rd, st = o_drain(-1, b, b & 3)
        drt[b] = T(rd, lo - cfg.dlead if b else lo, hi - 1)
        pr = [(drt[b], 9)]
        if so is not None: pr.append((T(so, lo - cfg.dlead if b else lo, hi + 30, [(pst, 1)] if pst else []), 1))
        if pst: pr.append((pst, 0))
        pst = T(st, 0, min(hi + 30, G - 1), pr, zone=True)
        vs, wr = q_scale(1, b, V_QS[b % NQ])
        p = pv_
        for v in vs:
            p = T(v, lo, hi + cfg.qslack, [(p, 0)] if p else [])
        pv_ = p
        wt[b] = T(wr, lo, min(hi + cfg.qslack, G - 1), [(p, 1), (drt[b], 0)], zone=True)
        if b + NQ < 20: mkload(b + NQ, hi + cfg.qslack + 1, [(wt[b], 1)])
    for t in range(NT):
        for s_ in range(4):
            qr[(t, s_)] = T(q_read(1, t, s_), qkend[(NSTEP - 1, t, 0)] + 1, qk0[(NSTEP, t)] - 12, [(wt[4 * t + 3], 0)] + ([(qr[(t, s_ - 1)], 2)] if s_ else []))
    wslot = 0
    for t in range(NT):
        head, acc, per = epi[t]
        lo = pvend[(NSTEP, t)] + LAT
        hi = pv0[(NSTEP + 1, t)] - 2
        h0 = T(head[0], lo, lo + 2)
        h1 = T(head[1], lo, lo + 2, [(h0, 0)] + ([(pacc, 0)] if pacc else []))
        pacc = T(acc, lo, lo + 12, [(h1, 1)])
        h2 = T(head[2], lo, lo + 2, [(h1, 0)])
        if cfg.pk_epi:
            burst = [v for vs, w in per for v in vs[:2]] + per[0][0][2:] + per[1][0][2:]
            bt = T(burst, lo, hi, [(h2, 1)])
        for dt, (vs, w) in enumerate(per):
            wslot = max(wslot + cfg.epistep, lo + cfg.epi0)
            while S.forbidden(wslot): wslot += 1
            h = min(hi + dt, wslot)
            if cfg.pk_epi:
                if dt < 2: p = bt
                else:
                    p = T(vs[2], lo, h, [(bt, 0)]); p = T(vs[3], lo, h, [(p, 0)])
            else:
                ms = [T(v, lo, h, [(h2, 1)]) for v in vs[:4]]
                p = T(vs[4], lo, h, [(ms[0], 0), (ms[1], 0)])
                p = T(vs[5], lo, h, [(ms[2], 0), (ms[3], 0), (p, 0)])
            T(w, h - 1, h, [(p, 1)] + [(qr[(t, s_)], 0) for s_ in range(4)], zone=True)
        if t == NT - 1:
            T(fail_commit(0), lo, hi, [(pacc, 1)])
    cutb = 10
    S.run(c0 + int(cutb * step) if cfg.cut is None else cfg.cut)
    S.qkend = qkend; S.qk0 = qk0; S.pv0 = pv0
    sys.stderr.write(f"Q loads {[lt[b].g - lt[b].off for b in range(20)]} writes {[wt[b].g - wt[b].off for b in range(20)]}\n")
    return S, its

def raw(text, kind="salu", rd=(), wr=()): return I(text, kind, rd, wr)

def setup_code():
    o = []
    A = lambda t, k="salu", rd=(), wr=(): o.append(raw(t, k, [(r, None) for r in rd], [(r, None) for r in wr]))
    A("s_cmp_ge_u32 s2, 256"); A("s_cbranch_scc1 L_end", "branch")
    for b, off in ((S_K, 8), (S_Q, 0), (S_V, 16), (S_O, 24)):
        A(f"s_load_dwordx2 s[{b}:{b+1}], s[0:1], {off}")
    o.extend(code_prefetch())
    V = lambda t, rd=(), wr=(): A(t, "valu", rd, wr)
    V("v_lshrrev_b32_e32 v9, 6, v0", ["v0"], ["v9"])
    V("v_and_b32_e32 v0, 63, v0", ["v0"], ["v0"])
    V(f"v_readfirstlane_b32 s{S_W}, v9", ["v9"], [f"s{S_W}"])
    V("v_bfe_u32 v9, v0, 2, 2", ["v0"], ["v9"])
    V("v_bfe_u32 v10, v0, 3, 1", ["v0"], ["v10"])
    V("v_and_b32_e32 v11, 3, v0", ["v0"], ["v11"])
    V("v_xor_b32_e32 v10, v10, v11", ["v10", "v11"], ["v10"])
    V("v_lshlrev_b32_e32 v10, 4, v10", ["v10"], ["v10"])
    V("v_lshl_add_u32 v10, v9, 8, v10", ["v9", "v10"], ["v10"])
    V("v_lshrrev_b32_e32 v11, 4, v0", ["v0"], ["v11"])
    V(f"v_lshl_add_u32 v{V_VOFF}, v11, 6, v10", ["v11", "v10"], [f"v{V_VOFF}"])
    V(f"v_xor_b32_e32 v{V_VOFF1}, 32, v{V_VOFF}", [f"v{V_VOFF}"], [f"v{V_VOFF1}"])
    A(f"s_and_b32 s{S_X0}, s2, 7")
    A(f"s_lshr_b32 s{S_X0+1}, s2, 4")
    A(f"s_lshl_b32 s{S_X0}, s{S_X0}, 4")
    A(f"s_add_u32 s{S_X0}, s{S_X0}, s{S_X0+1}")
    A(f"s_mul_i32 s{S_H0}, s{S_X0}, {HEAD}")
    A(f"s_bfe_u32 s{S_X0}, s2, 0x10003")
    A(f"s_lshl_b32 s{S_LW}, s{S_W}, 11", rd=[f"s{S_W}"])
    A(f"s_mul_i32 s{S_LST}, s{S_W}, 20480")
    A(f"s_mul_i32 s{S_QREL}, s{S_X0}, {320*256}")
    A(f"s_add_u32 s{S_QREL}, s{S_QREL}, s{S_LST}")
    A(f"s_add_u32 s{S_LST}, s{S_LST}, {STAGE}")
    A(f"s_cmp_ge_u32 s{S_W}, 2")
    A(f"s_cselect_b32 s{S_W19}, {OOB}, {19*8192}")
    A(f"s_lshl_b32 s{S_X0}, s{S_X0}, 2")
    A(f"s_add_u32 s{S_X0}, s{S_X0}, s{S_W}")
    A(f"s_cmp_eq_u32 s{S_X0}, 7")
    A(f"s_cselect_b32 s{S_T4OFF}, {OOB}, {4*4096}")
    A(f"s_mov_b32 s{S_C}, {f32bits(CSCALE):#x}")
    A(f"s_mov_b32 s{S_MASK}, 0xffff0000")
    A(f"s_mov_b32 s{S_THR}, {f32bits(THRESH):#x}")
    A(f"s_mov_b64 s[{S_FACC}:{S_FACC+1}], 0")
    A(f"s_mov_b32 s{S_FAIL}, 0")
    A(f"s_mov_b32 s{S_JOB}, 4")
    A(f"s_mov_b32 s{S_CBIT}, 0")
    A(f"s_add_u32 s{S_KVN}, s{S_H0}, s{S_LW}")
    A(f"s_add_u32 s{S_QN}, s{S_H0}, s{S_QREL}")
    A(f"s_add_u32 s{S_QN4}, s{S_QN}, s{S_T4OFF}")
    A(f"s_mov_b32 s{S_QC}, {OOB}")
    A(f"s_mov_b32 s{S_QC4}, {OOB}")
    for b in (S_Q, S_K, S_V, S_O):
        A(f"s_mov_b32 s{b+2}, {TOTAL}"); A(f"s_mov_b32 s{b+3}, 0x20000")
    return o

def setup_addrs():
    o = []
    V = lambda t, rd=(), wr=(): o.append(raw(t, "valu", [(r, None) for r in rd], [(r, None) for r in wr]))
    V("v_bfe_u32 v9, v0, 2, 2", ["v0"], ["v9"])
    V("v_lshlrev_b32_e32 v9, 10, v9", ["v9"], ["v9"])
    V("v_and_b32_e32 v10, 3, v0", ["v0"], ["v10"])
    V("v_lshl_add_u32 v9, v10, 6, v9", ["v9", "v10"], ["v9"])
    V("v_bfe_u32 v10, v0, 1, 2", ["v0"], ["v10"])
    V("v_lshrrev_b32_e32 v11, 4, v0", ["v0"], ["v11"])
    V("v_xor_b32_e32 v12, v10, v11", ["v10", "v11"], ["v12"])
    V(f"v_lshl_add_u32 v{V_KADDR}, v12, 4, v9", ["v12", "v9"], [f"v{V_KADDR}"])
    V(f"v_add_u32_e32 v{V_QADDR}, s{S_LST}, v{V_KADDR}", [f"v{V_KADDR}"], [f"v{V_QADDR}"])
    V("v_lshrrev_b32_e32 v12, 5, v0", ["v0"], ["v12"])
    V("v_xor_b32_e32 v12, v10, v12", ["v10", "v12"], ["v12"])
    V("v_lshl_add_u32 v12, v12, 4, v9", ["v12", "v9"], ["v12"])
    V("v_bfe_u32 v13, v0, 4, 1", ["v0"], ["v13"])
    V("v_lshl_add_u32 v12, v13, 3, v12", ["v13", "v12"], ["v12"])
    V(f"v_add_u32_e32 v{V_OW0}, s{S_LST}, v12", ["v12"], [f"v{V_OW0}"])
    V(f"v_xor_b32_e32 v{V_OW1}, 32, v{V_OW0}", [f"v{V_OW0}"], [f"v{V_OW1}"])
    V("v_lshrrev_b32_e32 v9, 4, v0", ["v0"], ["v9"])
    V("v_lshlrev_b32_e32 v9, 10, v9", ["v9"], ["v9"])
    V("v_bfe_u32 v10, v0, 2, 2", ["v0"], ["v10"])
    V("v_lshl_add_u32 v9, v10, 6, v9", ["v9", "v10"], ["v9"])
    V("v_bfe_u32 v10, v0, 3, 2", ["v0"], ["v10"])
    V("v_bfe_u32 v11, v0, 1, 1", ["v0"], ["v11"])
    V("v_xor_b32_e32 v10, v10, v11", ["v10", "v11"], ["v10"])
    V("v_lshl_add_u32 v9, v10, 4, v9", ["v9", "v10"], ["v9"])
    V("v_and_b32_e32 v10, 1, v0", ["v0"], ["v10"])
    V("v_lshl_add_u32 v9, v10, 3, v9", ["v9", "v10"], ["v9"])
    V(f"v_add_u32_e32 v{V_VA0}, {VRING}, v9", ["v9"], [f"v{V_VA0}"])
    V(f"v_xor_b32_e32 v{V_VA1}, 32, v{V_VA0}", [f"v{V_VA0}"], [f"v{V_VA1}"])
    V("v_lshlrev_b32_e32 v9, 4, v0", ["v0"], ["v9"])
    V(f"v_add_u32_e32 v{V_LIN}, s{S_LST}, v9", ["v9"], [f"v{V_LIN}"])
    V("v_mov_b32_e32 v9, 0x3f803f80", [], ["v9"])
    for x in range(4):
        o.append(I(f"v_accvgpr_write_b32 a{A_ONE+x}, v9", "valu", [("v9", None)], [(f"a{A_ONE+x}", ("one", None, x))]))
    return o

def rotate():
    o = []
    A = lambda t, rd=(), wr=(): o.append(salu(t, rd, wr))
    A(f"s_mov_b32 s{S_OP}, s{S_QC}", [], [(f"s{S_OP}", ("qb", -1))])
    A(f"s_mov_b32 s{S_OP4}, s{S_QC4}", [], [(f"s{S_OP4}", ("qb4", -1))])
    A(f"s_mov_b32 s{S_QC}, s{S_QN}", [], [(f"s{S_QC}", ("qb", 0))]); A(f"s_mov_b32 s{S_QC4}, s{S_QN4}", [], [(f"s{S_QC4}", ("qb4", 0))])
    A(f"s_mov_b32 s{S_KVC}, s{S_KVN}", [], [(f"s{S_KVC}", ("kvb", 0))])
    A(f"s_add_u32 s{S_KV19}, s{S_KVN}, s{S_W19}", [], [(f"s{S_KV19}", ("kv19", 0))])
    A(f"s_mov_b32 s{S_PBIT}, s{S_CBIT}", [], [(f"s{S_PBIT}", ("bit", -1))])
    A(f"s_lshl_b32 s{S_CBIT}, s{S_CBIT}, 1")
    A(f"s_max_u32 s{S_CBIT}, s{S_CBIT}, 1")
    A(f"s_cmp_gt_u32 s{S_JOB}, 1")
    A(f"s_cselect_b32 s{S_X0}, {JOBSTRIDE}, {OOB}")
    A(f"s_add_u32 s{S_KVN}, s{S_KVN}, s{S_X0}", [], [(f"s{S_KVN}", ("kvb", 1))])
    A(f"s_add_u32 s{S_QN}, s{S_QN}, s{S_X0}", [], [(f"s{S_QN}", ("qb", 1))])
    A(f"s_add_u32 s{S_QN4}, s{S_QN4}, s{S_X0}", [], [(f"s{S_QN4}", ("qb4", 1))])
    A(f"s_sub_u32 s{S_JOB}, s{S_JOB}, 1")
    return o

def tile_of(x):
    tg = x.wr[0][1]
    if tg[0] in ("S", "E", "P", "O", "L"): return (tg[2], tg[3])
    if tg[0] in ("mx", "negm", "Sm"): return (0, tg[2])
    return None

def code_prefetch():
    o = []
    A = lambda t, k="salu", rd=(), wr=(): o.append(raw(t, k, [(r, None) for r in rd], [(r, None) for r in wr]))
    if not cfg.cpf: return o
    A(f"s_getpc_b64 s[{S_X0+12}:{S_X0+13}]")
    A("L_pc:", "label")
    A("v_lshlrev_b32_e32 v20, 7, v0", "valu", ["v0"], ["v20"])
    for k in range(cfg.cpf):
        A(f"v_min_u32_e32 v21, L_slow-L_pc, v20", "valu", ["v20"], ["v21"])
        A(f"global_load_dword v22, v21, s[{S_X0+12}:{S_X0+13}]", "vload", ["v21"], [])
        if k + 1 < cfg.cpf: A("v_add_u32_e32 v20, 32768, v20", "valu", ["v20"], ["v20"])
    return o

def weave2(vs, ms):
    out = []; n = len(vs); k = len(ms); mi = 0
    for i, v in enumerate(vs):
        while mi < k and mi * n <= i * k: out.append(ms[mi]); mi += 1
        out.append(v)
    return out + ms[mi:]

def build_prologue(it01):
    o = []
    init = [("facc", ("facc", 0, -1))]
    for x in range(NS):
        init += [(f"KF{x}", ("freeK", 0, x)), (f"VF{x}", ("freeV", 0, x))]
    for b in range(20): init.append((f"ST{b}", ("Ofree", -2, b)))
    o.append(I("; init state", "label", [], init))
    land = lambda b: Oreg(b >> 2, b & 3)
    pend = []
    def kv(which, tile): pend.append(kv_dma(which, 0, tile))
    def qt(t):
        for b in range(4 * t, 4 * t + 4): pend.append([x for x in q_load(0, b, land(b)) if x is not None])
    kv("K", 0); qt(0); qt(1); kv("K", 1); kv("V", 0); qt(2); qt(3); kv("K", 2); kv("V", 1); qt(4)
    for x in range(3, NS):
        kv("K", x); kv("V", x - 1)
    order = [x for g in pend for x in g if x.kind in VMEM_KINDS]
    qidx = {x.wr[0][1][2]: n for n, x in enumerate(order) if x.kind == "vload"}
    cnt = [0]
    def issue(upto):
        r = []
        while pend and cnt[0] < upto:
            g = pend.pop(0); r.extend(g); cnt[0] += sum(1 for x in g if x.kind in VMEM_KINDS)
        return r
    o.extend(issue(cfg.pro_first))
    o.extend(setup_addrs())
    mine = [x.copy() for x in it01 if x.aff >= 0]
    isv = lambda x: x.kind in VALU_KINDS and x.aff == 0
    C = {t: [x for x in mine if isv(x) and tile_of(x) == (0, t)] for t in range(NT)}
    E = {t: [x for x in mine if isv(x) and tile_of(x) == (1, t)] for t in range(NT)}
    B = {t: [x for x in mine if x.kind == "mfma" and x.wr[0][1][0] == "S" and tile_of(x) == (0, t)] for t in range(NT)}
    D = {t: [x for x in mine if x.kind == "mfma" and x not in B[t] and tile_of(x)[1] == t] for t in range(NT)}
    bars = [x for x in mine if x.kind == "barrier"]
    fr = lambda nm, i: [x for x in mine if x.kind == "lds_r" and x.wr[0][1][0] == nm and x.wr[0][1][2] == i]
    late = [x for x in mine if x.kind in VMEM_KINDS or x.kind == "salu"]
    acc = sum(len(d[t]) for d in (B, C, D, E) for t in range(NT)) + len(bars) + len(late) + sum(len(fr(*z)) for z in (("Kf", 1), ("Kf", 2), ("Vf", 0), ("Vf", 1)))
    nqr = len([x for x in mine if x.kind == "lds_r" and x.wr[0][1][0] == "Q"])
    assert acc + nqr == len(mine) and len(bars) == 2, (acc, nqr, len(mine))
    def blk(b):
        vs, wr = q_scale(0, b, land(b))
        return vs[:1] + issue(qidx[b] + 1 + cfg.pro_depth) + vs[1:] + [wr]
    qrd = lambda t: [q_read(0, t, s_) for s_ in range(4)]
    for b in range(4): o.extend(blk(b))
    o.extend(qrd(0))
    o.extend(blk(4))
    bk = barrier(NSTEP - 1).shifted(-1)
    bk.need = [x for x in bk.need if x[0].startswith("KR")]
    bk.wr = [x for x in bk.wr if x[0] == "KV0"]
    x = blk(5)
    o.extend(x[:-1]); o.append(bk)
    o.extend([k_read(0, 0, kt, s_) for kt in range(2) for s_ in range(4)])
    o.append(x[-1])
    o.extend(blk(6)); o.extend(weave2(blk(7), B[0])); o.extend(qrd(1))
    o.extend(C[0][:12]); o.extend(weave2(C[0][12:], B[1])); o.extend(C[1])
    o.append(bars[0]); o.extend(fr("Vf", 0) + fr("Kf", 1))
    o.extend(blk(8)); o.extend(weave2(blk(9) + blk(10) + blk(11), D[0] + D[1])); o.extend(qrd(2))
    o.extend(E[0])
    for t in (3, 4):
        p = t - 1
        x = blk(4 * t)
        o.extend(x[:8] + weave2(x[8:], B[p]))
        o.extend(E[p - 1]); o.extend(C[p])
        if t == 4: o.append(bars[1]); o.extend(fr("Vf", 1))
        o.extend(weave2(blk(4 * t + 1) + blk(4 * t + 2) + blk(4 * t + 3), D[p]))
        o.extend(qrd(t))
    o.extend(E[3])
    o.extend(issue(99))
    o.extend(B[4]); o.extend(fr("Kf", 2)); o.extend(C[4]); o.extend(weave2(late, D[4])); o.extend(E[4])
    return o

def build_tail(it0, rest):
    left = [x.copy() for x in it0 + rest if x.aff == -1 and x.kind in VALU_KINDS and x.wr[0][1][0] in ("E", "P")]
    J = {t: [pv_mfma(-1, NSTEP - 1, t, dt) for dt in range(8)] + [sum_mfma(-1, NSTEP - 1, t)] for t in range(NT)}
    o = []
    def weave(ms, fill, per):
        for m in ms:
            o.append(m)
            k = 0
            while fill and k < per:
                o.append(fill.pop(0)); k += 1
        return fill
    lists = {}
    for t in range(NT):
        head, acc, per = epilogue(-1, t, pk=(t >= cfg.tail_pk))
        l = [head[0], head[1], head[2], acc]
        pw = None
        for vs, w in per:
            l += vs[:2]
            if pw is not None: l.append(pw)
            l += vs[2:]; pw = w
        l.append(pw)
        lists[t] = l
    dr = {b: o_drain(-1, b, b & 3) for b in range(20)}
    fill = weave(J[0] + J[1][:5], left, 1)
    o.extend(fill)
    stream = []
    for t in range(NT):
        l = lists[t]
        if t >= 1:
            bs = range(4 * t - 4, 4 * t)
            l = [dr[b][1] for b in bs] + [dr[bs[0]][0]] + l
            for n, b in enumerate(bs): l.insert(24 + 7 * n, dr[b][2])
        stream += l
    stream += fail_commit(-1)
    bs = range(16, 20)
    stream += [dr[b][1] for b in bs] + [dr[16][0]] + [dr[b][2] for b in bs]
    fill = weave(J[1][5:] + J[2] + J[3] + J[4], stream, 2)
    o.extend(fill)
    return o

def build():
    S, its = build_schedule()
    G = S.G
    it0 = S.linear(0, its[2])
    rest = S.linear(its[2], G)
    setup = setup_code()
    rot_p = rotate() + [I("s_waitcnt lgkmcnt(0)", "wait", note="full")]
    pro = build_prologue(it0)
    rot = rotate()
    tail = build_tail(it0, rest)
    lab = lambda n: [I(n + ":", "label")]
    br = lambda t: [I(t, "branch")]
    seg_rest = lab("L_it1") + rest
    seg_rot = rot + br("s_cbranch_scc1 L_tail")
    seg_it0 = it0 + br("s_branch L_it1")
    seg_tail = lab("L_tail") + tail
    seq = [(x, 0, True) for x in setup + rot_p + pro]
    for J in range(4):
        if J:
            seq += [(x, J, True) for x in seg_rot]
            seq += [(x, J, 0 <= J + x.aff) for x in seg_it0]
        seq += [(x, J, 0 <= J + x.aff) for x in seg_rest]
    seq += [(x, 4, True) for x in seg_rot + seg_tail]
    errs = check_dataflow(seq)
    paths = [[setup, rot_p, pro, seg_rest, seg_rot, seg_it0, seg_rest, seg_rot, seg_it0, seg_rest, seg_rot, seg_tail]]
    nw = insert_waits(paths)
    nn = insert_nops(paths)
    if cfg.prof:
        def stamp(seg, first):
            out = []; i = first
            for x in seg:
                out.append(x)
                if x.kind == "barrier":
                    out.append(raw(f"s_memtime s[{60+2*i}:{61+2*i}]")); i += 1
            seg[:] = out
        stamp(seg_rest, 2); stamp(seg_it0, 0)
        out = [raw("s_memtime s[60:61]")]; i = 1; fw = True
        for x in pro:
            if fw and x.kind == "wait":
                out.append(raw(f"s_memtime s[{60+2*i}:{61+2*i}]")); i += 1
                out.append(x)
                out.append(raw(f"s_memtime s[{60+2*i}:{61+2*i}]")); i += 1
                fw = False; continue
            out.append(x)
            if (x.kind == "lds_w128" and int(x.text.split(":")[-1]) // 1024 % 2 == 1) or x.kind == "barrier":
                out.append(raw(f"s_memtime s[{60+2*i}:{61+2*i}]")); i += 1
        pro[:] = out
        setup.insert(2, raw("s_memtime s[98:99]"))
        setup.insert(2, raw("s_load_dwordx2 s[4:5], s[0:1], 40"))
        rot_p += [raw("s_mov_b32 s6, 327155712"), raw("s_mov_b32 s7, 0x20000"), raw("s_mov_b32 s100, s98"),
                  raw(f"s_lshl_b32 s3, s2, 2"), raw(f"s_add_u32 s3, s3, s{S_W}"), raw("s_mul_i32 s3, s3, 2048")]
        def dump():
            o = [raw("s_memtime s[56:57]"), raw("s_memrealtime s[58:59]"), raw("s_waitcnt lgkmcnt(0)", "wait")]
            for i in range(20): o.append(raw(f"v_writelane_b32 v11, s{60+2*i}, {i}", "valu"))
            o += [raw("v_writelane_b32 v11, s56, 20", "valu"), raw("v_writelane_b32 v11, s58, 21", "valu"), raw("v_writelane_b32 v11, s100, 22", "valu"),
                  raw("v_lshlrev_b32_e32 v0, 2, v0", "valu"),
                  raw("buffer_store_dword v11, v0, s[4:7], s3 offen", "vstore"), raw("s_nop 1"), raw("v_lshrrev_b32_e32 v0, 2, v0", "valu"), raw("s_add_u32 s3, s3, 256")]
            return o
        seg_rot[0:0] = dump()
        pro += dump() + [raw('s_memtime s[60:61]'), raw('s_memtime s[62:63]')]
        seg_tail += [raw("s_waitcnt vmcnt(0)", "wait")] + dump()
    est = [estimate(S_) for S_ in (pro, seg_it0, seg_rest, seg_tail)]
    per = []; cur = []
    for x in seg_it0[1:] + seg_rest + seg_rot + seg_it0[:1]:
        if x.kind == "barrier" and cur and len(cur) > 5: per.append(estimate(cur)); cur = []
        cur.append(x)
    per.append(estimate(cur))
    sys.stderr.write(f"per-iter est {per}\n")
    for i in range(NSTEP):
        l = [S.load(g) for g in range(its[i], (its + [G])[i + 1])]
        sys.stderr.write(f" it{i}: idle={sum(max(0,8-x) for x in l)} over={sum(max(0,x-8) for x in l)} " + "".join("0123456789abcdefghijklmnopqrstuvwxyz"[min(35,x//4)] for x in l) + "\n")
    sys.stderr.write(f"G={G} waits={nw} nops={nn} est pro/it0/rest/tail={est} job={est[1]+est[2]} mfma_floor={16*G}\n")
    return errs, [setup, rot_p, pro, seg_rest, seg_rot, seg_it0, seg_tail], S, its

HEADER = f"""; MHA forward, B=16 H=32 S=624 D=128 bf16.  Generated by gen/gen.py (hand written generator).
; @launch grid=(256,1,1) block=(256,1,1) lds={LDS_BYTES}
.amdgcn_target "amdgcn-amd-amdhsa--gfx950"
.text
.globl {NAME}_kernel
.p2align 8
.type {NAME}_kernel,@function
{NAME}_kernel:
"""
FOOTER = f"""L_end:
    s_endpgm
.section .rodata,"a"
.p2align 6
.amdhsa_kernel {NAME}_kernel
  .amdhsa_next_free_vgpr 512
  .amdhsa_next_free_sgpr 102
  .amdhsa_accum_offset 256
  .amdhsa_group_segment_fixed_size 0
  .amdhsa_kernarg_size 48
  .amdhsa_user_sgpr_count 2
  .amdhsa_user_sgpr_kernarg_segment_ptr 1
  .amdhsa_system_sgpr_workgroup_id_x 1
.end_amdhsa_kernel
"""

def emit(segs, extra=""):
    s = HEADER
    for seg in segs:
        for x in seg:
            if x.kind == "label": s += x.text + "\n"
            else: s += "    " + x.text + "\n"
    return s + extra + FOOTER

if __name__ == "__main__":
    cfg.c0 = 0
    cfg.lat = 5
    cfg.bigsep = 3
    cfg.epi0 = 5
    cfg.epistep = 3
    cfg.rdwin = 8
    cfg.rdgap = 1
    cfg.zpre = 10
    cfg.zpost = 5
    cfg.maxwin = 16
    cfg.rdmargin = 10
    cfg.qslack = 10
    cfg.qldwin = 24
    cfg.cut = None
    cfg.pk_epi = True
    cfg.q0step = 40
    cfg.dlead = 20
    cfg.cpf = 2
    cfg.pro_first = 10
    cfg.pro_depth = 10
    cfg.tail_pk = 2
    for a in sys.argv[2:]:
        k, v = a.split("="); setattr(cfg, k, eval(v))
    errs, segs, S, its = build()
    for e in errs[:30]: sys.stderr.write(e + "\n")
    sys.stderr.write(f"{len(errs)} dataflow errors\n")
    from slow import slow_path
    segs += [[I("L_slow:", "label")]] + slow_path(sys.modules["__main__"])
    open(sys.argv[1], "w").write(emit(segs))
```

```python
import sys, struct
from core import *

NAME = "standalone__mha_softmax__near_ridge"
HEAD = 624 * 256
TOTAL = 512 * HEAD
OOB = 0x40000000
NS = 5
KRING = 0
VRING = NS * 8192
STAGE = 2 * NS * 8192
LDS_BYTES = STAGE + 4 * 20480
NT = 5
NSTEP = 20
JOBSTRIDE = 128 * HEAD
CSCALE = 0.08838834764831845 * 1.4426950408889634
THRESH = float(2 ** 30)
def f32bits(x): return struct.unpack("<I", struct.pack("<f", x))[0]

class Cfg:
    pk_epi = False
    qflags = 'nt'
    kvflags = 'nt'
    oflags = 'nt'
    prof = False
    dbgt = False
cfg = Cfg()

V_TMP0 = 0
V_VOFF, V_KADDR, V_VA0, V_VA1, V_LIN, V_OW0, V_OW1, V_QADDR = 1, 2, 3, 4, 5, 6, 7, 8
V_U0, V_U1 = 9, 10
V_VOFF1 = 25
V_QS = [12, 16, 28, 32]
V_RCP = 20
V_MX = 26
V_NEGM = 36
V_S = 56
V_O = 96
A_Q = 0
A_K = 80
A_V = 144
A_L = 208
A_ONE = 228
A_RB = 232
def Oreg(t, dt): return V_O + 32 * t + 4 * dt
def Sreg(t, kt): return V_S + 8 * t + 4 * kt
def Nreg(t): return V_NEGM + 4 * t
def Qreg(t, s): return A_Q + 16 * t + 4 * s
def Kreg(b, kt, s): return A_K + 32 * b + 16 * kt + 4 * s
def Vreg(b, dt): return A_V + 32 * b + 4 * dt
def Lreg(t): return A_L + 4 * t

S_Q, S_K, S_V, S_O = 8, 12, 16, 20
S_W = 24
S_JOB = 25
S_KVC, S_KVN, S_KV19 = 26, 27, 28
S_QN, S_QN4, S_QC, S_QC4, S_OP, S_OP4 = 29, 30, 31, 32, 33, 34
S_LW = 35
S_LST = 36
S_C = 37
S_MASK = 38
S_THR = 39
S_FACC = 40
S_FAIL = 42
S_PBIT, S_CBIT = 43, 44
S_T0, S_T1, S_T2, S_T3 = 45, 46, 47, 48
S_W19 = 49
S_T4OFF = 50
S_QREL = 51
S_H0 = 52
S_X0 = 54

def srd(b): return f"s[{b}:{b+3}]"

def salu(text, rd=(), wr=(), aff=0): return I(text, "salu", rd, wr, aff)
def valu(text, rd=(), wr=(), aff=0, kind="valu"): return I(text, kind, rd, wr, aff)

def mfma(dF, d, aF, a, bF, b, cF, c, dtag, atag, btag, ctag, k16=False, aff=0):
    n = 2 if k16 else 4
    op = "v_mfma_f32_16x16x16_bf16" if k16 else "v_mfma_f32_16x16x32_bf16"
    ctext = "0" if c is None else rs(cF, c, 4)
    A = R(aF, a, n); B = R(bF, b, n); C = [] if c is None else R(cF, c, 4)
    return I(f"{op} {rs(dF,d,4)}, {rs(aF,a,n)}, {rs(bF,b,n)}, {ctext}", "mfma",
             tagged(A, atag) + tagged(B, btag) + tagged(C, ctag), tagged(R(dF, d, 4), dtag), aff, ab=A + B, c=C)

def pv_mfma(j, i, t, dt):
    k16 = i == NSTEP - 1
    c = None if i == 0 else Oreg(t, dt)
    return mfma("v", Oreg(t, dt), "a", Vreg(i & 1, dt), "v", Sreg(t, 0), "v", c,
                ("O", j, i, t, dt), ("Vf", j, i, dt), ("P", j, i, t), ("O", j, i - 1, t, dt), k16, aff=j)
def sum_mfma(j, i, t):
    k16 = i == NSTEP - 1
    c = None if i == 0 else Lreg(t)
    return mfma("a", Lreg(t), "a", A_ONE, "v", Sreg(t, 0), "a", c,
                ("L", j, i, t), ("one", None), ("P", j, i, t), ("L", j, i - 1, t), k16, aff=j)
def qk_mfma(j, i, t, kt, s):
    if s == 0:
        c = None if i == 0 else Nreg(t); ctag = ("negm", j, t)
    else:
        c = Sreg(t, kt); ctag = ("S", j, i, t, kt, s - 1)
    return mfma("v", Sreg(t, kt), "a", Kreg(i & 1, kt, s), "a", Qreg(t, s), "v", c,
                ("S", j, i, t, kt, s), ("Kf", j, i, kt, s), ("Q", j, t, s), ctag, aff=j)

def k_read(j, i, kt, s):
    off = KRING + (i % NS) * 8192 + kt * 4096 + s * 256
    r = Kreg(i & 1, kt, s)
    return I(f"ds_read_b128 {rs('a',r,4)}, v{V_KADDR} offset:{off}", "lds_r",
             [(f"v{V_KADDR}", None), (f"KV{i%NS}", ("Kv", j, i))], tagged(R("a", r, 4), ("Kf", j, i, kt, s)), j)
def v_read(j, i, dt, half):
    off = (i % NS) * 8192 + half * 4096 + (dt >> 1) * 256
    r = Vreg(i & 1, dt) + 2 * half
    va = V_VA1 if dt & 1 else V_VA0
    wr = [(f"a{r+x}", ("Vf", j, i, dt, 2 * half + x)) for x in range(2)]
    return I(f"ds_read_b64_tr_b16 {rs('a',r,2)}, v{va} offset:{off}", "lds_r",
             [(f"v{va}", None), (f"VV{i%NS}", ("Vv", j, i))], wr, j)
def q_read(j, t, s):
    off = t * 4096 + s * 256
    r = Qreg(t, s)
    need = [(f"ST{t*4+rb}", ("Qs", j, t * 4 + rb)) for rb in range(4)]
    return I(f"ds_read_b128 {rs('a',r,4)}, v{V_QADDR} offset:{off}", "lds_r",
             [(f"v{V_QADDR}", None)] + need, tagged(R("a", r, 4), ("Q", j, t, s)), j)

def kv_dma(which, j, tile):
    st = S_T0 if which == "K" else S_T1
    sr = S_K if which == "K" else S_V
    ring = KRING if which == "K" else VRING
    out = []
    stag = ("so" + which, j, tile)
    if tile == NSTEP - 1:
        assert j == 0
        out.append(salu(f"s_mov_b32 s{st}, s{S_KV19}", [(f"s{S_KV19}", ("kv19", j))], [(f"s{st}", stag)], j))
    else:
        base = S_KVC if j == 0 else S_KVN
        out.append(salu(f"s_add_u32 s{st}, s{base}, {tile*8192}", [(f"s{base}", ("kvb", j))], [(f"s{st}", stag)], j))
    mtag = ("m0" + which, j, tile)
    out.append(salu(f"s_add_u32 m0, s{S_LW}, {ring + (tile % NS) * 8192}", [], [("m0", mtag)], j))
    for a in range(2):
        res = ("KR" if which == "K" else "VR") + f"{tile % NS}_{a}"
        free = ("KF" if which == "K" else "VF") + f"{tile % NS}"
        o = " offset:1024" if a else ""
        if cfg.kvflags: o += " " + cfg.kvflags
        out.append(I(f"buffer_load_dwordx4 v{V_VOFF1 if a else V_VOFF}, {srd(sr)}, s{st} offen{o} lds", "dma2" if a else "dma",
                     [("m0", mtag), (f"s{st}", stag), (f"v{V_VOFF}", None), (free, ("free" + which, j, tile))],
                     [(res, (which + "d", j, tile, a))], j))
    return out

def barrier(i):
    kj, kt_ = (0, i + 1) if i + 1 < NSTEP else (1, 0)
    need = [(f"KR{kt_%NS}_{a}", ("Kd", kj, kt_, a)) for a in range(2)] + [(f"VR{i%NS}_{a}", ("Vd", 0, i, a)) for a in range(2)]
    nkt = 1 if i == NSTEP - 1 else 2
    for kt in range(nkt):
        for s in range(4): need += [(r, None) for r in R("a", Kreg(i & 1, kt, s), 4)]
    for dt in range(8): need += [(r, None) for r in R("a", Vreg((i - 1) & 1, dt), 4)]
    fk = i + NS; fv = i - 1 + NS
    wr = [(f"KV{kt_%NS}", ("Kv", kj, kt_)), (f"VV{i%NS}", ("Vv", 0, i)),
          (f"KF{fk%NS}", ("freeK", fk // NSTEP, fk % NSTEP)), (f"VF{fv%NS}", ("freeV", fv // NSTEP, fv % NSTEP)),
          (f"KV{i%NS}", ("dead", None)), (f"VV{(i-1)%NS}", ("dead", None))]
    return I("s_barrier", "barrier", [], wr, 0, need=need)

def blk_goff(b):
    return (b & 3) * 1024

def q_load(j, b, q):
    t = b >> 2
    stag = ("soQ", j, t)
    so = None
    if b & 3 == 0:
        if t == 4:
            bs = S_QN4 if j == 1 else S_QC4
            so = salu(f"s_mov_b32 s{S_T2}, s{bs}", [(f"s{bs}", ("qb4", j))], [(f"s{S_T2}", stag)], j)
        else:
            bs = S_QN if j == 1 else S_QC
            so = salu(f"s_add_u32 s{S_T2}, s{bs}, {t*4096}", [(f"s{bs}", ("qb", j))], [(f"s{S_T2}", stag)], j)
    go = blk_goff(b)
    o = f" offset:{go}" if go else ""
    nt = (" " + cfg.qflags) if cfg.qflags else ""
    ld = I(f"buffer_load_dwordx4 {rs('v',q,4)}, v{V_VOFF1 if b & 1 else V_VOFF}, {srd(S_Q)}, s{S_T2} offen{o}{nt}", "vload",
           [(f"s{S_T2}", stag), (f"v{V_VOFF}", None)], tagged(R("v", q, 4), ("qs0", j, b)), j)
    return so, ld

def q_scale(j, b, q):
    vs = []
    for x in range(4):
        r = q + x; u = V_U0 if x & 1 == 0 else V_U1
        vs.append(valu(f"v_lshlrev_b32_e32 v{u}, 16, v{r}", [(f"v{r}", ("qs0", j, b, x))], [(f"v{u}", ("u0", j, b, x))], j))
        vs.append(valu(f"v_and_b32_e32 v{r}, s{S_MASK}, v{r}", [(f"v{r}", ("qs0", j, b, x))], [(f"v{r}", ("qs1", j, b, x))], j))
        vs.append(valu(f"v_mul_f32_e32 v{u}, s{S_C}, v{u}", [(f"v{u}", ("u0", j, b, x))], [(f"v{u}", ("u1", j, b, x))], j))
        vs.append(valu(f"v_mul_f32_e32 v{r}, s{S_C}, v{r}", [(f"v{r}", ("qs1", j, b, x))], [(f"v{r}", ("qs2", j, b, x))], j))
        vs.append(valu(f"v_cvt_pk_bf16_f32 v{r}, v{u}, v{r}", [(f"v{u}", ("u1", j, b, x)), (f"v{r}", ("qs2", j, b, x))],
                       [(f"v{r}", ("qs3", j, b, x))], j))
    wr = I(f"ds_write_b128 v{V_LIN}, {rs('v',q,4)} offset:{b*1024}", "lds_w128",
           [(f"v{V_LIN}", None), (f"ST{b}", ("Ofree", j - 2, b))] + tagged(R("v", q, 4), ("qs3", j, b)), [(f"ST{b}", ("Qs", j, b))], j)
    return vs, wr

def o_drain(j, b, buf):
    t = b >> 2
    r = A_RB + 4 * buf
    stag = ("soO", j, t)
    so = None
    if b & 3 == 0:
        if t == 4:
            so = salu(f"s_mov_b32 s{S_T3}, s{S_OP4}", [(f"s{S_OP4}", ("qb4", j))], [(f"s{S_T3}", stag)], j)
        else:
            so = salu(f"s_add_u32 s{S_T3}, s{S_OP}, {t*4096}", [(f"s{S_OP}", ("qb", j))], [(f"s{S_T3}", stag)], j)
    rdeps = [(f"SO{t}_{dt}", ("Ow", j, t, dt)) for dt in range(8)]
    rd = I(f"ds_read_b128 {rs('a',r,4)}, v{V_LIN} offset:{b*1024}", "lds_r",
           [(f"v{V_LIN}", None)] + rdeps, tagged(R("a", r, 4), ("rb", j, b)) + [(f"ST{b}", ("Ofree", j, b))], j)
    go = blk_goff(b)
    o = f" offset:{go}" if go else ""
    nt = (" " + cfg.oflags) if cfg.oflags else ""
    st = I(f"buffer_store_dwordx4 {rs('a',r,4)}, v{V_VOFF1 if b & 1 else V_VOFF}, {srd(S_O)}, s{S_T3} offen{o}{nt}", "vstore",
           tagged(R("a", r, 4), ("rb", j, b)) + [(f"s{S_T3}", stag), (f"v{V_VOFF}", None)], [], j, note=f"free{b}")
    return so, rd, st

def exp_ins(j, i, t, kt, r, srctag):
    reg = Sreg(t, kt) + r
    return valu(f"v_exp_f32_e32 v{reg}, v{reg}", [(f"v{reg}", srctag)], [(f"v{reg}", ("E", j, i, t, kt, r))], j, "trans")
def cvt_ins(j, i, t, p):
    kt = p >> 1; r = (p & 1) * 2
    a = Sreg(t, kt) + r; d = Sreg(t, 0) + p
    return valu(f"v_cvt_pk_bf16_f32 v{d}, v{a}, v{a+1}",
                [(f"v{a}", ("E", j, i, t, kt, r)), (f"v{a+1}", ("E", j, i, t, kt, r + 1))], [(f"v{d}", ("P", j, i, t, p))], j)

def max_chain(j, t):
    m0 = V_MX; m1 = m0 + 1
    s = Sreg(t, 0)
    def st(x): return (f"v{s+x}", ("S", j, 0, t, x >> 2, 3, x & 3))
    T = lambda n: ("mx", j, t, n)
    ch = [
        valu(f"v_max3_f32 v{m0}, v{s}, v{s+1}, v{s+2}", [st(0), st(1), st(2)], [(f"v{m0}", T(0))], j),
        valu(f"v_max3_f32 v{m0}, v{m0}, v{s+3}, v{s+4}", [(f"v{m0}", T(0)), st(3), st(4)], [(f"v{m0}", T(1))], j),
        valu(f"v_max3_f32 v{m0}, v{m0}, v{s+5}, v{s+6}", [(f"v{m0}", T(1)), st(5), st(6)], [(f"v{m0}", T(2))], j),
        valu(f"v_max_f32_e32 v{m1}, v{m0}, v{s+7}", [(f"v{m0}", T(2)), st(7)], [(f"v{m1}", T(3))], j),
        valu(f"v_max_f32_e32 v{m0}, v{m0}, v{s+7}", [(f"v{m0}", T(2)), st(7)], [(f"v{m0}", T(3))], j),
        valu(f"v_permlane32_swap_b32_e32 v{m0}, v{m1}", [(f"v{m0}", T(3)), (f"v{m1}", T(3))], [(f"v{m0}", T(4)), (f"v{m1}", T(5))], j, "perm"),
        valu(f"v_max_f32_e32 v{m0}, v{m0}, v{m1}", [(f"v{m0}", T(4)), (f"v{m1}", T(5))], [(f"v{m0}", T(6))], j),
        valu(f"v_mov_b32_e32 v{m1}, v{m0}", [(f"v{m0}", T(6))], [(f"v{m1}", T(6))], j),
        valu(f"v_permlane16_swap_b32_e32 v{m0}, v{m1}", [(f"v{m0}", T(6)), (f"v{m1}", T(6))], [(f"v{m0}", T(7)), (f"v{m1}", T(8))], j, "perm"),
    ]
    for x in range(4):
        n = Nreg(t) + x
        ch.append(valu(f"v_min_f32_e64 v{n}, -v{m0}, -v{m1}", [(f"v{m0}", T(7)), (f"v{m1}", T(8))], [(f"v{n}", ("negm", j, t, x))], j))
    adds = {}
    for x in range(8):
        n = Nreg(t)
        adds[(x >> 2, x & 3)] = valu(f"v_add_f32_e32 v{s+x}, v{n}, v{s+x}", [(f"v{n}", ("negm", j, t, 0)), st(x)],
                                     [(f"v{s+x}", ("Sm", j, t, x))], j)
    return ch, adds

def epilogue(j, t, pk=False):
    L = NSTEP - 1
    rc = V_RCP + t
    head = [
        valu(f"v_accvgpr_read_b32 v{rc}, a{Lreg(t)}", [(f"a{Lreg(t)}", ("L", j, L, t, 0))], [(f"v{rc}", ("l", j, t))], j),
        valu(f"v_cmp_nge_f32_e32 vcc, s{S_THR}, v{rc}", [(f"v{rc}", ("l", j, t))], [("vcc", ("chk", j, t))], j),
        valu(f"v_rcp_f32_e32 v{rc}, v{rc}", [(f"v{rc}", ("l", j, t))], [(f"v{rc}", ("rl", j, t))], j, "trans"),
    ]
    acc = salu(f"s_or_b64 s[{S_FACC}:{S_FACC+1}], s[{S_FACC}:{S_FACC+1}], vcc", [("vcc", ("chk", j, t)), ("facc", ("facc", j, t - 1))],
               [("facc", ("facc", j, t)), ("scc", None)], j)
    per = []
    for dt in range(8):
        o = Oreg(t, dt)
        vs = []
        if pk:
            rb = rc & ~1
            sel = "op_sel:[0,1] op_sel_hi:[1,1]" if rc & 1 else "op_sel_hi:[1,0]"
            for x in (0, 2):
                vs.append(valu(f"v_pk_mul_f32 v[{o+x}:{o+x+1}], v[{o+x}:{o+x+1}], v[{rb}:{rb+1}] {sel}",
                               [(f"v{rc}", ("rl", j, t))] + [(f"v{o+x+y}", ("O", j, L, t, dt, x + y)) for y in range(2)],
                               [(f"v{o+x+y}", ("On", j, t, dt, x + y)) for y in range(2)], j, "pk"))
        else:
          for x in range(4):
            vs.append(valu(f"v_mul_f32_e32 v{o+x}, v{rc}, v{o+x}", [(f"v{rc}", ("rl", j, t)), (f"v{o+x}", ("O", j, L, t, dt, x))],
                           [(f"v{o+x}", ("On", j, t, dt, x))], j))
        vs.append(valu(f"v_cvt_pk_bf16_f32 v{o}, v{o}, v{o+1}", [(f"v{o}", ("On", j, t, dt, 0)), (f"v{o+1}", ("On", j, t, dt, 1))],
                       [(f"v{o}", ("Ob", j, t, dt, 0))], j))
        vs.append(valu(f"v_cvt_pk_bf16_f32 v{o+1}, v{o+2}, v{o+3}", [(f"v{o+2}", ("On", j, t, dt, 2)), (f"v{o+3}", ("On", j, t, dt, 3))],
                       [(f"v{o+1}", ("Ob", j, t, dt, 1))], j))
        ow = V_OW1 if dt & 1 else V_OW0
        off = t * 4096 + (dt >> 1) * 256
        w = I(f"ds_write_b64 v{ow}, {rs('v',o,2)} offset:{off}", "lds_w64",
              [(f"v{ow}", None)] + tagged(R("v", o, 2), ("Ob", j, t, dt)),
              [(f"SO{t}_{dt}", ("Ow", j, t, dt))] + [(f"ST{t*4+rb}", ("Ob", j)) for rb in range(4)], j)
        per.append((vs, w))
    return head, acc, per

def fail_commit(j):
    return [
        salu(f"s_cmp_lg_u64 s[{S_FACC}:{S_FACC+1}], 0", [("facc", ("facc", j, 4))], [("scc", ("fc", j))], j),
        salu(f"s_cselect_b32 s{S_X0}, s{S_PBIT}, 0", [("scc", ("fc", j)), (f"s{S_PBIT}", ("bit", j))], [(f"s{S_X0}", None)], j),
        salu(f"s_or_b32 s{S_FAIL}, s{S_FAIL}, s{S_X0}", [], [("scc", None)], j),
        salu(f"s_mov_b64 s[{S_FACC}:{S_FACC+1}], 0", [], [("facc", ("facc", j + 1, -1))], j),
    ]

class Task:
    n = 0
    def __init__(self, ins, rel, dl, preds=(), zone=False):
        self.ins = ins if isinstance(ins, list) else [ins]
        self.kind = self.ins[0].kind
        self.cost = sum(COST[x.kind] for x in self.ins)
        self.rel = rel; self.dl = dl; self.preds = list(preds); self.succ = []
        self.zone = zone
        self.g = None; self.id = Task.n; Task.n += 1
        for p, d in self.preds: p.succ.append((self, d))

class Sched:
    def __init__(self):
        self.sp = []
        self.sc = []; self.mem = []; self.val = []
        self.it_start = []
        self.tasks = []
        self.bars = []
    def add(self, m):
        self.sp.append(m); self.sc.append([]); self.mem.append([]); self.val.append([])
        return len(self.sp) - 1
    @property
    def G(self): return len(self.sp)
    def load(self, g):
        g %= self.G
        return sum(COST[x.kind] for x in self.mem[g] + self.val[g]) + 4 * max(0, len(self.sc[g]) - 1)
    def put(self, ins, g):
        w = g // self.G
        if w: ins = ins.shifted(-w)
        gg = g % self.G
        ins.gap = gg
        if ins.kind in ("salu", "barrier"): self.sc[gg].append(ins)
        elif ins.kind in VALU_KINDS: self.val[gg].append(ins)
        else: self.mem[gg].append(ins)
        return g
    def task(self, ins, rel, dl, preds=(), zone=False):
        t = Task(ins, rel, dl, preds, zone); self.tasks.append(t); return t
    def forbidden(self, g):
        g %= self.G
        for b in self.bars + [self.bars[0] + self.G]:
            if b - cfg.zpre <= g <= b + cfg.zpost: return True
        return False
    def run(self, cut):
        G = self.G
        for t in self.tasks:
            for p, d in t.preds: t.rel = max(t.rel, p.rel + d)
        for t in self.tasks:
            t.off = -((t.rel - cut) // G) * G
            t.r = t.rel + t.off; t.d = min(t.dl + t.off, cut + G - 1)
        for t in self.tasks:
            t.lp = [(p, d) for p, d in t.preds if p.off == t.off]
            for p, d in t.preds:
                if p.off != t.off:
                    assert p.off == t.off + G, (t.ins[0].text, p.ins[0].text)
                    p.d = min(p.d, t.r + G - d)
        for t in reversed(self.tasks):
            for s_, d in t.succ:
                if s_.off == t.off: t.d = min(t.d, s_.d - d)
            if t.zone:
                while self.forbidden(t.d): t.d -= 1
            assert t.d >= t.r, ("infeasible", t.ins[0].text, t.r, t.d)
        pend = sorted(self.tasks, key=lambda t: t.r)
        act = []; pi = 0
        lastz = [-99]
        def ready(t, g):
            if t.zone and (self.forbidden(g) or (g - lastz[0] < cfg.bigsep and t.d > g)): return False
            return all(p.g is not None and p.g + d <= g for p, d in t.lp)
        def commit(t, g):
            t.g = g; act.remove(t)
            if t.zone: lastz[0] = g
            for x in t.ins: self.put(x, g - t.off)
        for g in range(cut, cut + G):
            while pi < len(pend) and pend[pi].r <= g: act.append(pend[pi]); pi += 1
            key = lambda t: (t.d, t.id)
            isbar = (g % G) in self.bars
            while True:
                rs_ = sorted([t for t in act if t.kind == "salu" and ready(t, g)], key=key)
                if rs_ and (not self.sc[g % G] or rs_[0].d <= g): commit(rs_[0], g)
                else: break
            while not isbar:
                free = 8 - self.load(g)
                if free <= 0: break
                rd = sorted([t for t in act if t.kind not in ("salu", "pk") and ready(t, g)], key=key)
                if free == 8:
                    if not rd: break
                    t = rd[0]
                    if t.cost == 4:
                        partner = any(u.cost == 4 for u in rd[1:]) or any(s_.cost == 4 and d == 0 and s_.kind != "salu" for s_, d in t.succ)
                        full = [u for u in rd if u.cost >= 8]
                        if not partner and full and t.d > g + 2: t = full[0]
                    commit(t, g)
                else:
                    rd = [t for t in rd if t.cost <= free]
                    if not rd: break
                    commit(rd[0], g)
            while True:
                f = sorted([t for t in act if ready(t, g) and (t.d <= g or (t.kind == "pk" and not isbar))], key=key)
                if not f: break
                commit(f[0], g)
            late = [t for t in act if t.d <= g]
            assert not late, ("missed", g, late[0].ins[0].text, late[0].d)
        assert not act and pi == len(pend)
    def linear(self, g0, g1):
        out = []
        for g in range(g0, g1):
            out.append(self.sp[g]); out += self.sc[g]; out += self.mem[g]; out += self.val[g]
        return out

def build_schedule():
    S = Sched()
    pv0 = {}; pvend = {}; qkend = {}; qk0 = {}
    for i in range(NSTEP):
        S.it_start.append(S.G)
        for t in range(NT):
            j, st = (-1, NSTEP - 1) if i == 0 else (0, i - 1)
            for dt in range(8):
                g = S.add(pv_mfma(j, st, t, dt))
                if dt == 0: pv0[(i, t)] = g
            pvend[(i, t)] = S.add(sum_mfma(j, st, t))
            for kt in range(1 if i == NSTEP - 1 else 2):
                for s in range(4):
                    g = S.add(qk_mfma(0, i, t, kt, s))
                    if kt == 0 and s == 0: qk0[(i, t)] = g
                qkend[(i, t, kt)] = g
    G = S.G
    its = S.it_start + [G]
    for t in range(NT):
        for d in range(2):
            pv0[(NSTEP + d, t)] = pv0[(d, t)] + G; pvend[(NSTEP + d, t)] = pvend[(d, t)] + G; qk0[(NSTEP + d, t)] = qk0[(d, t)] + G
    LAT = cfg.lat
    T = S.task
    for i in range(NSTEP):
        S.put(barrier(i), its[i]); S.bars.append(its[i])
    mprev = None
    for i in range(NSTEP):
        for t in range(NT):
            nk = 1 if i == NSTEP - 1 else 2
            hi = pv0[(i + 1, t)] - 2
            if i == 0:
                ch, adds = max_chain(0, t)
                p = mprev
                lo = qkend[(0, t, 1)] + LAT
                negs = []
                for n, x in enumerate(ch):
                    isneg = n >= len(ch) - 4
                    q = T(x, lo, lo + cfg.maxwin, [] if p is None else [(p, 1 if x.kind == "perm" else 0)])
                    p = q
                    if isneg: negs.append(q)
                mprev = p
            pc = None
            for kt in range(nk):
                es = []
                for r in range(4):
                    if i == 0:
                        a_ = T(adds[(kt, r)], lo, hi, [(negs[0], 0)])
                        es.append(T(exp_ins(0, 0, t, kt, r, ("Sm", 0, t, 4 * kt + r)), lo, hi, [(a_, 0)]))
                    else:
                        es.append(T(exp_ins(0, i, t, kt, r, ("S", 0, i, t, kt, 3, r)), qkend[(i, t, kt)] + LAT, hi))
                    if r & 1:
                        pc = T(cvt_ins(0, i, t, 2 * kt + (r >> 1)), 0, hi, [(es[r - 1], 1), (es[r], 1)] + ([(pc, 0)] if pc else []))
    pd = None
    for i in range(NSTEP):
        lo = its[i] + 1; n = its[i + 1] - its[i]
        hi = its[i + 1] - cfg.rdmargin
        kj, kti = (0, i + 1) if i + 1 < NSTEP else (1, 0)
        vr = [v_read(0, i, dt, half) for dt in range(8) for half in range(1 if i == NSTEP - 1 else 2)]
        kr = [k_read(kj, kti, kt, s) for kt in range(1 if kti == NSTEP - 1 else 2) for s in range(4)]
        rds = weave2(vr, kr)
        pr_ = None
        for k, x in enumerate(rds):
            r = lo + int(k * (hi - lo - cfg.rdwin) / len(rds))
            pr_ = T(x, r, min(hi, r + cfg.rdwin), [(pr_, cfg.rdgap)] if pr_ else [])
        for x, (which, tile) in enumerate((("K", i + NS), ("V", i - 1 + NS))):
            so, m0, d0, d1 = kv_dma(which, tile // NSTEP, tile % NSTEP)
            r = lo + x * (n // 3)
            a_ = T(so, lo, hi)
            b_ = T(m0, r, hi, [(pd, 1)] if x else [])
            pd = T([d0, d1], r, r + cfg.zpost + 8, [(a_, 1), (b_, 1)], zone=True)
    epi_w = {}
    pacc = None; qr = {}
    c0 = its[2] + cfg.c0
    step = (G - cfg.zpre - 2 - c0) / 20
    NQ = len(V_QS)
    wt = {}; lt = {}; drt = {}
    def mkload(b, rel, preds):
        so, ld = q_load(1, b, V_QS[b % NQ])
        if so is not None:
            preds = preds + [(T(so, max(1, rel - 4), rel + 30, [(lt[b - 1], 1)] if b else []), 1)]
        if b: preds = preds + [(lt[b - 1], 0)]
        lt[b] = T(ld, rel, rel + cfg.qldwin, preds, zone=True)
    for b in range(NQ): mkload(b, 6 + b * cfg.q0step, [])
    epi = {t: epilogue(0, t, pk=cfg.pk_epi) for t in range(NT)}
    pst = None; pv_ = None
    for b in range(20):
        lo = c0 + int(b * step); hi = c0 + int((b + 1) * step) - 1
        so, rd, st = o_drain(-1, b, b & 3)
        drt[b] = T(rd, lo - cfg.dlead if b else lo, hi - 1)
        pr = [(drt[b], 9)]
        if so is not None: pr.append((T(so, lo - cfg.dlead if b else lo, hi + 30, [(pst, 1)] if pst else []), 1))
        if pst: pr.append((pst, 0))
        pst = T(st, 0, min(hi + 30, G - 1), pr, zone=True)
        vs, wr = q_scale(1, b, V_QS[b % NQ])
        p = pv_
        for v in vs:
            p = T(v, lo, hi + cfg.qslack, [(p, 0)] if p else [])
        pv_ = p
        wt[b] = T(wr, lo, min(hi + cfg.qslack, G - 1), [(p, 1), (drt[b], 0)], zone=True)
        if b + NQ < 20: mkload(b + NQ, hi + cfg.qslack + 1, [(wt[b], 1)])
    for t in range(NT):
        for s_ in range(4):
            qr[(t, s_)] = T(q_read(1, t, s_), qkend[(NSTEP - 1, t, 0)] + 1, qk0[(NSTEP, t)] - 12, [(wt[4 * t + 3], 0)] + ([(qr[(t, s_ - 1)], 2)] if s_ else []))
    wslot = 0
    for t in range(NT):
        head, acc, per = epi[t]
        lo = pvend[(NSTEP, t)] + LAT
        hi = pv0[(NSTEP + 1, t)] - 2
        h0 = T(head[0], lo, lo + 2)
        h1 = T(head[1], lo, lo + 2, [(h0, 0)] + ([(pacc, 0)] if pacc else []))
        pacc = T(acc, lo, lo + 12, [(h1, 1)])
        h2 = T(head[2], lo, lo + 2, [(h1, 0)])
        if cfg.pk_epi:
            burst = [v for vs, w in per for v in vs[:2]] + per[0][0][2:] + per[1][0][2:]
            bt = T(burst, lo, hi, [(h2, 1)])
        for dt, (vs, w) in enumerate(per):
            wslot = max(wslot + cfg.epistep, lo + cfg.epi0)
            while S.forbidden(wslot): wslot += 1
            h = min(hi + dt, wslot)
            if cfg.pk_epi:
                if dt < 2: p = bt
                else:
                    p = T(vs[2], lo, h, [(bt, 0)]); p = T(vs[3], lo, h, [(p, 0)])
            else:
                ms = [T(v, lo, h, [(h2, 1)]) for v in vs[:4]]
                p = T(vs[4], lo, h, [(ms[0], 0), (ms[1], 0)])
                p = T(vs[5], lo, h, [(ms[2], 0), (ms[3], 0), (p, 0)])
            T(w, h - 1, h, [(p, 1)] + [(qr[(t, s_)], 0) for s_ in range(4)], zone=True)
        if t == NT - 1:
            T(fail_commit(0), lo, hi, [(pacc, 1)])
    cutb = 10
    S.run(c0 + int(cutb * step) if cfg.cut is None else cfg.cut)
    S.qkend = qkend; S.qk0 = qk0; S.pv0 = pv0
    sys.stderr.write(f"Q loads {[lt[b].g - lt[b].off for b in range(20)]} writes {[wt[b].g - wt[b].off for b in range(20)]}\n")
    return S, its

def raw(text, kind="salu", rd=(), wr=()): return I(text, kind, rd, wr)

def setup_code():
    o = []
    A = lambda t, k="salu", rd=(), wr=(): o.append(raw(t, k, [(r, None) for r in rd], [(r, None) for r in wr]))
    A("s_cmp_ge_u32 s2, 256"); A("s_cbranch_scc1 L_end", "branch")
    for b, off in ((S_K, 8), (S_Q, 0), (S_V, 16), (S_O, 24)):
        A(f"s_load_dwordx2 s[{b}:{b+1}], s[0:1], {off}")
    o.extend(code_prefetch())
    V = lambda t, rd=(), wr=(): A(t, "valu", rd, wr)
    V("v_lshrrev_b32_e32 v9, 6, v0", ["v0"], ["v9"])
    V("v_and_b32_e32 v0, 63, v0", ["v0"], ["v0"])
    V(f"v_readfirstlane_b32 s{S_W}, v9", ["v9"], [f"s{S_W}"])
    V("v_bfe_u32 v9, v0, 2, 2", ["v0"], ["v9"])
    V("v_bfe_u32 v10, v0, 3, 1", ["v0"], ["v10"])
    V("v_and_b32_e32 v11, 3, v0", ["v0"], ["v11"])
    V("v_xor_b32_e32 v10, v10, v11", ["v10", "v11"], ["v10"])
    V("v_lshlrev_b32_e32 v10, 4, v10", ["v10"], ["v10"])
    V("v_lshl_add_u32 v10, v9, 8, v10", ["v9", "v10"], ["v10"])
    V("v_lshrrev_b32_e32 v11, 4, v0", ["v0"], ["v11"])
    V(f"v_lshl_add_u32 v{V_VOFF}, v11, 6, v10", ["v11", "v10"], [f"v{V_VOFF}"])
    V(f"v_xor_b32_e32 v{V_VOFF1}, 32, v{V_VOFF}", [f"v{V_VOFF}"], [f"v{V_VOFF1}"])
    A(f"s_and_b32 s{S_X0}, s2, 7")
    A(f"s_lshr_b32 s{S_X0+1}, s2, 4")
    A(f"s_lshl_b32 s{S_X0}, s{S_X0}, 4")
    A(f"s_add_u32 s{S_X0}, s{S_X0}, s{S_X0+1}")
    A(f"s_mul_i32 s{S_H0}, s{S_X0}, {HEAD}")
    A(f"s_bfe_u32 s{S_X0}, s2, 0x10003")
    A(f"s_lshl_b32 s{S_LW}, s{S_W}, 11", rd=[f"s{S_W}"])
    A(f"s_mul_i32 s{S_LST}, s{S_W}, 20480")
    A(f"s_mul_i32 s{S_QREL}, s{S_X0}, {320*256}")
    A(f"s_add_u32 s{S_QREL}, s{S_QREL}, s{S_LST}")
    A(f"s_add_u32 s{S_LST}, s{S_LST}, {STAGE}")
    A(f"s_cmp_ge_u32 s{S_W}, 2")
    A(f"s_cselect_b32 s{S_W19}, {OOB}, {19*8192}")
    A(f"s_lshl_b32 s{S_X0}, s{S_X0}, 2")
    A(f"s_add_u32 s{S_X0}, s{S_X0}, s{S_W}")
    A(f"s_cmp_eq_u32 s{S_X0}, 7")
    A(f"s_cselect_b32 s{S_T4OFF}, {OOB}, {4*4096}")
    A(f"s_mov_b32 s{S_C}, {f32bits(CSCALE):#x}")
    A(f"s_mov_b32 s{S_MASK}, 0xffff0000")
    A(f"s_mov_b32 s{S_THR}, {f32bits(THRESH):#x}")
    A(f"s_mov_b64 s[{S_FACC}:{S_FACC+1}], 0")
    A(f"s_mov_b32 s{S_FAIL}, 0")
    A(f"s_mov_b32 s{S_JOB}, 4")
    A(f"s_mov_b32 s{S_CBIT}, 0")
    A(f"s_add_u32 s{S_KVN}, s{S_H0}, s{S_LW}")
    A(f"s_add_u32 s{S_QN}, s{S_H0}, s{S_QREL}")
    A(f"s_add_u32 s{S_QN4}, s{S_QN}, s{S_T4OFF}")
    A(f"s_mov_b32 s{S_QC}, {OOB}")
    A(f"s_mov_b32 s{S_QC4}, {OOB}")
    for b in (S_Q, S_K, S_V, S_O):
        A(f"s_mov_b32 s{b+2}, {TOTAL}"); A(f"s_mov_b32 s{b+3}, 0x20000")
    return o

def setup_addrs():
    o = []
    V = lambda t, rd=(), wr=(): o.append(raw(t, "valu", [(r, None) for r in rd], [(r, None) for r in wr]))
    V("v_bfe_u32 v9, v0, 2, 2", ["v0"], ["v9"])
    V("v_lshlrev_b32_e32 v9, 10, v9", ["v9"], ["v9"])
    V("v_and_b32_e32 v10, 3, v0", ["v0"], ["v10"])
    V("v_lshl_add_u32 v9, v10, 6, v9", ["v9", "v10"], ["v9"])
    V("v_bfe_u32 v10, v0, 1, 2", ["v0"], ["v10"])
    V("v_lshrrev_b32_e32 v11, 4, v0", ["v0"], ["v11"])
    V("v_xor_b32_e32 v12, v10, v11", ["v10", "v11"], ["v12"])
    V(f"v_lshl_add_u32 v{V_KADDR}, v12, 4, v9", ["v12", "v9"], [f"v{V_KADDR}"])
    V(f"v_add_u32_e32 v{V_QADDR}, s{S_LST}, v{V_KADDR}", [f"v{V_KADDR}"], [f"v{V_QADDR}"])
    V("v_lshrrev_b32_e32 v12, 5, v0", ["v0"], ["v12"])
    V("v_xor_b32_e32 v12, v10, v12", ["v10", "v12"], ["v12"])
    V("v_lshl_add_u32 v12, v12, 4, v9", ["v12", "v9"], ["v12"])
    V("v_bfe_u32 v13, v0, 4, 1", ["v0"], ["v13"])
    V("v_lshl_add_u32 v12, v13, 3, v12", ["v13", "v12"], ["v12"])
    V(f"v_add_u32_e32 v{V_OW0}, s{S_LST}, v12", ["v12"], [f"v{V_OW0}"])
    V(f"v_xor_b32_e32 v{V_OW1}, 32, v{V_OW0}", [f"v{V_OW0}"], [f"v{V_OW1}"])
    V("v_lshrrev_b32_e32 v9, 4, v0", ["v0"], ["v9"])
    V("v_lshlrev_b32_e32 v9, 10, v9", ["v9"], ["v9"])
    V("v_bfe_u32 v10, v0, 2, 2", ["v0"], ["v10"])
    V("v_lshl_add_u32 v9, v10, 6, v9", ["v9", "v10"], ["v9"])
    V("v_bfe_u32 v10, v0, 3, 2", ["v0"], ["v10"])
    V("v_bfe_u32 v11, v0, 1, 1", ["v0"], ["v11"])
    V("v_xor_b32_e32 v10, v10, v11", ["v10", "v11"], ["v10"])
    V("v_lshl_add_u32 v9, v10, 4, v9", ["v9", "v10"], ["v9"])
    V("v_and_b32_e32 v10, 1, v0", ["v0"], ["v10"])
    V("v_lshl_add_u32 v9, v10, 3, v9", ["v9", "v10"], ["v9"])
    V(f"v_add_u32_e32 v{V_VA0}, {VRING}, v9", ["v9"], [f"v{V_VA0}"])
    V(f"v_xor_b32_e32 v{V_VA1}, 32, v{V_VA0}", [f"v{V_VA0}"], [f"v{V_VA1}"])
    V("v_lshlrev_b32_e32 v9, 4, v0", ["v0"], ["v9"])
    V(f"v_add_u32_e32 v{V_LIN}, s{S_LST}, v9", ["v9"], [f"v{V_LIN}"])
    V("v_mov_b32_e32 v9, 0x3f803f80", [], ["v9"])
    for x in range(4):
        o.append(I(f"v_accvgpr_write_b32 a{A_ONE+x}, v9", "valu", [("v9", None)], [(f"a{A_ONE+x}", ("one", None, x))]))
    return o

def rotate():
    o = []
    A = lambda t, rd=(), wr=(): o.append(salu(t, rd, wr))
    A(f"s_mov_b32 s{S_OP}, s{S_QC}", [], [(f"s{S_OP}", ("qb", -1))])
    A(f"s_mov_b32 s{S_OP4}, s{S_QC4}", [], [(f"s{S_OP4}", ("qb4", -1))])
    A(f"s_mov_b32 s{S_QC}, s{S_QN}", [], [(f"s{S_QC}", ("qb", 0))]); A(f"s_mov_b32 s{S_QC4}, s{S_QN4}", [], [(f"s{S_QC4}", ("qb4", 0))])
    A(f"s_mov_b32 s{S_KVC}, s{S_KVN}", [], [(f"s{S_KVC}", ("kvb", 0))])
    A(f"s_add_u32 s{S_KV19}, s{S_KVN}, s{S_W19}", [], [(f"s{S_KV19}", ("kv19", 0))])
    A(f"s_mov_b32 s{S_PBIT}, s{S_CBIT}", [], [(f"s{S_PBIT}", ("bit", -1))])
    A(f"s_lshl_b32 s{S_CBIT}, s{S_CBIT}, 1")
    A(f"s_max_u32 s{S_CBIT}, s{S_CBIT}, 1")
    A(f"s_cmp_gt_u32 s{S_JOB}, 1")
    A(f"s_cselect_b32 s{S_X0}, {JOBSTRIDE}, {OOB}")
    A(f"s_add_u32 s{S_KVN}, s{S_KVN}, s{S_X0}", [], [(f"s{S_KVN}", ("kvb", 1))])
    A(f"s_add_u32 s{S_QN}, s{S_QN}, s{S_X0}", [], [(f"s{S_QN}", ("qb", 1))])
    A(f"s_add_u32 s{S_QN4}, s{S_QN4}, s{S_X0}", [], [(f"s{S_QN4}", ("qb4", 1))])
    A(f"s_sub_u32 s{S_JOB}, s{S_JOB}, 1")
    return o

def tile_of(x):
    tg = x.wr[0][1]
    if tg[0] in ("S", "E", "P", "O", "L"): return (tg[2], tg[3])
    if tg[0] in ("mx", "negm", "Sm"): return (0, tg[2])
    return None

def code_prefetch():
    o = []
    A = lambda t, k="salu", rd=(), wr=(): o.append(raw(t, k, [(r, None) for r in rd], [(r, None) for r in wr]))
    if not cfg.cpf: return o
    A(f"s_getpc_b64 s[{S_X0+12}:{S_X0+13}]")
    A("L_pc:", "label")
    A("v_lshlrev_b32_e32 v20, 7, v0", "valu", ["v0"], ["v20"])
    for k in range(cfg.cpf):
        A(f"v_min_u32_e32 v21, L_slow-L_pc, v20", "valu", ["v20"], ["v21"])
        A(f"global_load_dword v22, v21, s[{S_X0+12}:{S_X0+13}]", "vload", ["v21"], [])
        if k + 1 < cfg.cpf: A("v_add_u32_e32 v20, 32768, v20", "valu", ["v20"], ["v20"])
    return o

def weave2(vs, ms):
    out = []; n = len(vs); k = len(ms); mi = 0
    for i, v in enumerate(vs):
        while mi < k and mi * n <= i * k: out.append(ms[mi]); mi += 1
        out.append(v)
    return out + ms[mi:]

def build_prologue(it01):
    o = []
    init = [("facc", ("facc", 0, -1))]
    for x in range(NS):
        init += [(f"KF{x}", ("freeK", 0, x)), (f"VF{x}", ("freeV", 0, x))]
    for b in range(20): init.append((f"ST{b}", ("Ofree", -2, b)))
    o.append(I("; init state", "label", [], init))
    land = lambda b: Oreg(b >> 2, b & 3)
    pend = []
    def kv(which, tile): pend.append(kv_dma(which, 0, tile))
    def qt(t):
        for b in range(4 * t, 4 * t + 4): pend.append([x for x in q_load(0, b, land(b)) if x is not None])
    kv("K", 0); qt(0); qt(1); kv("K", 1); kv("V", 0); qt(2); qt(3); kv("K", 2); kv("V", 1); qt(4)
    for x in range(3, NS):
        kv("K", x); kv("V", x - 1)
    order = [x for g in pend for x in g if x.kind in VMEM_KINDS]
    qidx = {x.wr[0][1][2]: n for n, x in enumerate(order) if x.kind == "vload"}
    cnt = [0]
    def issue(upto):
        r = []
        while pend and cnt[0] < upto:
            g = pend.pop(0); r.extend(g); cnt[0] += sum(1 for x in g if x.kind in VMEM_KINDS)
        return r
    o.extend(issue(cfg.pro_first))
    o.extend(setup_addrs())
    mine = [x.copy() for x in it01 if x.aff >= 0]
    isv = lambda x: x.kind in VALU_KINDS and x.aff == 0
    C = {t: [x for x in mine if isv(x) and tile_of(x) == (0, t)] for t in range(NT)}
    E = {t: [x for x in mine if isv(x) and tile_of(x) == (1, t)] for t in range(NT)}
    B = {t: [x for x in mine if x.kind == "mfma" and x.wr[0][1][0] == "S" and tile_of(x) == (0, t)] for t in range(NT)}
    D = {t: [x for x in mine if x.kind == "mfma" and x not in B[t] and tile_of(x)[1] == t] for t in range(NT)}
    bars = [x for x in mine if x.kind == "barrier"]
    fr = lambda nm, i: [x for x in mine if x.kind == "lds_r" and x.wr[0][1][0] == nm and x.wr[0][1][2] == i]
    late = [x for x in mine if x.kind in VMEM_KINDS or x.kind == "salu"]
    acc = sum(len(d[t]) for d in (B, C, D, E) for t in range(NT)) + len(bars) + len(late) + sum(len(fr(*z)) for z in (("Kf", 1), ("Kf", 2), ("Vf", 0), ("Vf", 1)))
    nqr = len([x for x in mine if x.kind == "lds_r" and x.wr[0][1][0] == "Q"])
    assert acc + nqr == len(mine) and len(bars) == 2, (acc, nqr, len(mine))
    def blk(b):
        vs, wr = q_scale(0, b, land(b))
        return vs[:1] + issue(qidx[b] + 1 + cfg.pro_depth) + vs[1:] + [wr]
    qrd = lambda t: [q_read(0, t, s_) for s_ in range(4)]
    for b in range(4): o.extend(blk(b))
    o.extend(qrd(0))
    o.extend(blk(4))
    bk = barrier(NSTEP - 1).shifted(-1)
    bk.need = [x for x in bk.need if x[0].startswith("KR")]
    bk.wr = [x for x in bk.wr if x[0] == "KV0"]
    x = blk(5)
    o.extend(x[:-1]); o.append(bk)
    o.extend([k_read(0, 0, kt, s_) for kt in range(2) for s_ in range(4)])
    o.append(x[-1])
    o.extend(blk(6)); o.extend(weave2(blk(7), B[0])); o.extend(qrd(1))
    o.extend(C[0][:12]); o.extend(weave2(C[0][12:], B[1])); o.extend(C[1])
    o.append(bars[0]); o.extend(fr("Vf", 0) + fr("Kf", 1))
    o.extend(blk(8)); o.extend(weave2(blk(9) + blk(10) + blk(11), D[0] + D[1])); o.extend(qrd(2))
    o.extend(E[0])
    for t in (3, 4):
        p = t - 1
        x = blk(4 * t)
        o.extend(x[:8] + weave2(x[8:], B[p]))
        o.extend(E[p - 1]); o.extend(C[p])
        if t == 4: o.append(bars[1]); o.extend(fr("Vf", 1))
        o.extend(weave2(blk(4 * t + 1) + blk(4 * t + 2) + blk(4 * t + 3), D[p]))
        o.extend(qrd(t))
    o.extend(E[3])
    o.extend(issue(99))
    o.extend(B[4]); o.extend(fr("Kf", 2)); o.extend(C[4]); o.extend(weave2(late, D[4])); o.extend(E[4])
    return o

def build_tail(it0, rest):
    left = [x.copy() for x in it0 + rest if x.aff == -1 and x.kind in VALU_KINDS and x.wr[0][1][0] in ("E", "P")]
    J = {t: [pv_mfma(-1, NSTEP - 1, t, dt) for dt in range(8)] + [sum_mfma(-1, NSTEP - 1, t)] for t in range(NT)}
    o = []
    def weave(ms, fill, per):
        for m in ms:
            o.append(m)
            k = 0
            while fill and k < per:
                o.append(fill.pop(0)); k += 1
        return fill
    lists = {}
    for t in range(NT):
        head, acc, per = epilogue(-1, t, pk=(t >= cfg.tail_pk))
        l = [head[0], head[1], head[2], acc]
        pw = None
        for vs, w in per:
            l += vs[:2]
            if pw is not None: l.append(pw)
            l += vs[2:]; pw = w
        l.append(pw)
        lists[t] = l
    dr = {b: o_drain(-1, b, b & 3) for b in range(20)}
    fill = weave(J[0] + J[1][:5], left, 1)
    o.extend(fill)
    stream = []
    for t in range(NT):
        l = lists[t]
        if t >= 1:
            bs = range(4 * t - 4, 4 * t)
            l = [dr[b][1] for b in bs] + [dr[bs[0]][0]] + l
            for n, b in enumerate(bs): l.insert(24 + 7 * n, dr[b][2])
        stream += l
    stream += fail_commit(-1)
    bs = range(16, 20)
    stream += [dr[b][1] for b in bs] + [dr[16][0]] + [dr[b][2] for b in bs]
    fill = weave(J[1][5:] + J[2] + J[3] + J[4], stream, 2)
    o.extend(fill)
    return o

def build():
    S, its = build_schedule()
    G = S.G
    it0 = S.linear(0, its[2])
    rest = S.linear(its[2], G)
    setup = setup_code()
    rot_p = rotate() + [I("s_waitcnt lgkmcnt(0)", "wait", note="full")]
    pro = build_prologue(it0)
    rot = rotate()
    tail = build_tail(it0, rest)
    lab = lambda n: [I(n + ":", "label")]
    br = lambda t: [I(t, "branch")]
    seg_rest = lab("L_it1") + rest
    seg_rot = rot + br("s_cbranch_scc1 L_tail")
    seg_it0 = it0 + br("s_branch L_it1")
    seg_tail = lab("L_tail") + tail
    seq = [(x, 0, True) for x in setup + rot_p + pro]
    for J in range(4):
        if J:
            seq += [(x, J, True) for x in seg_rot]
            seq += [(x, J, 0 <= J + x.aff) for x in seg_it0]
        seq += [(x, J, 0 <= J + x.aff) for x in seg_rest]
    seq += [(x, 4, True) for x in seg_rot + seg_tail]
    errs = check_dataflow(seq)
    paths = [[setup, rot_p, pro, seg_rest, seg_rot, seg_it0, seg_rest, seg_rot, seg_it0, seg_rest, seg_rot, seg_tail]]
    nw = insert_waits(paths)
    nn = insert_nops(paths)
    if cfg.prof:
        def stamp(seg, first):
            out = []; i = first
            for x in seg:
                out.append(x)
                if x.kind == "barrier":
                    out.append(raw(f"s_memtime s[{60+2*i}:{61+2*i}]")); i += 1
            seg[:] = out
        stamp(seg_rest, 2); stamp(seg_it0, 0)
        out = [raw("s_memtime s[60:61]")]; i = 1; fw = True
        for x in pro:
            if fw and x.kind == "wait":
                out.append(raw(f"s_memtime s[{60+2*i}:{61+2*i}]")); i += 1
                out.append(x)
                out.append(raw(f"s_memtime s[{60+2*i}:{61+2*i}]")); i += 1
                fw = False; continue
            out.append(x)
            if (x.kind == "lds_w128" and int(x.text.split(":")[-1]) // 1024 % 2 == 1) or x.kind == "barrier":
                out.append(raw(f"s_memtime s[{60+2*i}:{61+2*i}]")); i += 1
        pro[:] = out
        setup.insert(2, raw("s_memtime s[98:99]"))
        setup.insert(2, raw("s_load_dwordx2 s[4:5], s[0:1], 40"))
        rot_p += [raw("s_mov_b32 s6, 327155712"), raw("s_mov_b32 s7, 0x20000"), raw("s_mov_b32 s100, s98"),
                  raw(f"s_lshl_b32 s3, s2, 2"), raw(f"s_add_u32 s3, s3, s{S_W}"), raw("s_mul_i32 s3, s3, 2048")]
        def dump():
            o = [raw("s_memtime s[56:57]"), raw("s_memrealtime s[58:59]"), raw("s_waitcnt lgkmcnt(0)", "wait")]
            for i in range(20): o.append(raw(f"v_writelane_b32 v11, s{60+2*i}, {i}", "valu"))
            o += [raw("v_writelane_b32 v11, s56, 20", "valu"), raw("v_writelane_b32 v11, s58, 21", "valu"), raw("v_writelane_b32 v11, s100, 22", "valu"),
                  raw("v_lshlrev_b32_e32 v0, 2, v0", "valu"),
                  raw("buffer_store_dword v11, v0, s[4:7], s3 offen", "vstore"), raw("s_nop 1"), raw("v_lshrrev_b32_e32 v0, 2, v0", "valu"), raw("s_add_u32 s3, s3, 256")]
            return o
        seg_rot[0:0] = dump()
        pro += dump() + [raw('s_memtime s[60:61]'), raw('s_memtime s[62:63]')]
        seg_tail += [raw("s_waitcnt vmcnt(0)", "wait")] + dump()
    if cfg.dbgt:
        setup.insert(2, raw("s_memtime s[90:91]")); setup.insert(2, raw("s_memrealtime s[92:93]"))
        setup.insert(2, raw("s_load_dwordx2 s[4:5], s[0:1], 32"))
        rot_p += [raw("s_mov_b32 s6, 256"), raw("s_mov_b32 s7, 0x20000"), raw("s_mov_b32 s3, s2")]
        seg_tail += [raw(t) for t in """s_waitcnt vmcnt(0)
s_memtime s[94:95]
s_memrealtime s[96:97]
s_waitcnt lgkmcnt(0)
s_not_b32 s93, s92
v_mov_b32 v11, 0
v_mov_b32 v12, s93
v_mov_b32 v13, s96
s_mov_b64 exec, 1
buffer_atomic_umax v12, v11, s[4:7], 0 offen
buffer_atomic_umax v13, v11, s[4:7], 0 offen offset:4
s_sub_u32 s94, s94, s90
s_sub_u32 s96, s96, s92
s_and_b32 s3, s3, 7
s_min_u32 s3, s3, 6
s_lshl_b32 s3, s3, 2
v_mov_b32 v14, s94
v_mov_b32 v15, s96
buffer_atomic_umax v14, v11, s[4:7], s3 offen offset:8
buffer_atomic_umax v15, v11, s[4:7], s3 offen offset:36
s_waitcnt vmcnt(0)
s_mov_b64 exec, -1""".split("\n")]
    est = [estimate(S_) for S_ in (pro, seg_it0, seg_rest, seg_tail)]
    per = []; cur = []
    for x in seg_it0[1:] + seg_rest + seg_rot + seg_it0[:1]:
        if x.kind == "barrier" and cur and len(cur) > 5: per.append(estimate(cur)); cur = []
        cur.append(x)
    per.append(estimate(cur))
    sys.stderr.write(f"per-iter est {per}\n")
    for i in range(NSTEP):
        l = [S.load(g) for g in range(its[i], (its + [G])[i + 1])]
        sys.stderr.write(f" it{i}: idle={sum(max(0,8-x) for x in l)} over={sum(max(0,x-8) for x in l)} " + "".join("0123456789abcdefghijklmnopqrstuvwxyz"[min(35,x//4)] for x in l) + "\n")
    sys.stderr.write(f"G={G} waits={nw} nops={nn} est pro/it0/rest/tail={est} job={est[1]+est[2]} mfma_floor={16*G}\n")
    return errs, [setup, rot_p, pro, seg_rest, seg_rot, seg_it0, seg_tail], S, its

HEADER = f"""; MHA forward, B=16 H=32 S=624 D=128 bf16.  Generated by gen/gen.py (hand written generator).
; @launch grid=(256,1,1) block=(256,1,1) lds={LDS_BYTES}
.amdgcn_target "amdgcn-amd-amdhsa--gfx950"
.text
.globl {NAME}_kernel
.p2align 8
.type {NAME}_kernel,@function
{NAME}_kernel:
"""
FOOTER = f"""L_end:
    s_endpgm
.section .rodata,"a"
.p2align 6
.amdhsa_kernel {NAME}_kernel
  .amdhsa_next_free_vgpr 512
  .amdhsa_next_free_sgpr 102
  .amdhsa_accum_offset 256
  .amdhsa_group_segment_fixed_size 0
  .amdhsa_kernarg_size 48
  .amdhsa_user_sgpr_count 2
  .amdhsa_user_sgpr_kernarg_segment_ptr 1
  .amdhsa_system_sgpr_workgroup_id_x 1
.end_amdhsa_kernel
"""

def emit(segs, extra=""):
    s = HEADER
    for seg in segs:
        for x in seg:
            if x.kind == "label": s += x.text + "\n"
            else: s += "    " + x.text + "\n"
    return s + extra + FOOTER

if __name__ == "__main__":
    cfg.c0 = 0
    cfg.lat = 5
    cfg.bigsep = 3
    cfg.epi0 = 5
    cfg.epistep = 3
    cfg.rdwin = 8
    cfg.rdgap = 1
    cfg.zpre = 10
    cfg.zpost = 5
    cfg.maxwin = 16
    cfg.rdmargin = 10
    cfg.qslack = 10
    cfg.qldwin = 24
    cfg.cut = None
    cfg.pk_epi = True
    cfg.q0step = 40
    cfg.dlead = 20
    cfg.cpf = 2
    cfg.pro_first = 10
    cfg.pro_depth = 10
    cfg.tail_pk = 2
    for a in sys.argv[2:]:
        k, v = a.split("="); setattr(cfg, k, eval(v))
    errs, segs, S, its = build()
    for e in errs[:30]: sys.stderr.write(e + "\n")
    sys.stderr.write(f"{len(errs)} dataflow errors\n")
    from slow import slow_path
    segs += [[I("L_slow:", "label")]] + slow_path(sys.modules["__main__"])
    open(sys.argv[1], "w").write(emit(segs))
```

```python
import sys, struct
from core import *

NAME = "standalone__mha_softmax__near_ridge"
HEAD = 624 * 256
TOTAL = 512 * HEAD
OOB = 0x40000000
NS = 5
KRING = 0
VRING = NS * 8192
STAGE = 2 * NS * 8192
LDS_BYTES = STAGE + 4 * 20480
NT = 5
NSTEP = 20
JOBSTRIDE = 128 * HEAD
CSCALE = 0.08838834764831845 * 1.4426950408889634
THRESH = float(2 ** 30)
def f32bits(x): return struct.unpack("<I", struct.pack("<f", x))[0]

class Cfg:
    pk_epi = False
    qflags = 'nt'
    kvflags = 'nt'
    oflags = 'nt'
    prof = False
    dbgt = False
cfg = Cfg()

V_TMP0 = 0
V_VOFF, V_KADDR, V_VA0, V_VA1, V_LIN, V_OW0, V_OW1, V_QADDR = 1, 2, 3, 4, 5, 6, 7, 8
V_U0, V_U1 = 9, 10
V_VOFF1 = 25
V_QS = [12, 16, 28, 32]
V_RCP = 20
V_MX = 26
V_NEGM = 36
V_S = 56
V_O = 96
A_Q = 0
A_K = 80
A_V = 144
A_L = 208
A_ONE = 228
A_RB = 232
def Oreg(t, dt): return V_O + 32 * t + 4 * dt
def Sreg(t, kt): return V_S + 8 * t + 4 * kt
def Nreg(t): return V_NEGM + 4 * t
def Qreg(t, s): return A_Q + 16 * t + 4 * s
def Kreg(b, kt, s): return A_K + 32 * b + 16 * kt + 4 * s
def Vreg(b, dt): return A_V + 32 * b + 4 * dt
def Lreg(t): return A_L + 4 * t

S_Q, S_K, S_V, S_O = 8, 12, 16, 20
S_W = 24
S_JOB = 25
S_KVC, S_KVN, S_KV19 = 26, 27, 28
S_QN, S_QN4, S_QC, S_QC4, S_OP, S_OP4 = 29, 30, 31, 32, 33, 34
S_LW = 35
S_LST = 36
S_C = 37
S_MASK = 38
S_THR = 39
S_FACC = 40
S_FAIL = 42
S_PBIT, S_CBIT = 43, 44
S_T0, S_T1, S_T2, S_T3 = 45, 46, 47, 48
S_W19 = 49
S_T4OFF = 50
S_QREL = 51
S_H0 = 52
S_X0 = 54

def srd(b): return f"s[{b}:{b+3}]"

def salu(text, rd=(), wr=(), aff=0): return I(text, "salu", rd, wr, aff)
def valu(text, rd=(), wr=(), aff=0, kind="valu"): return I(text, kind, rd, wr, aff)

def mfma(dF, d, aF, a, bF, b, cF, c, dtag, atag, btag, ctag, k16=False, aff=0):
    n = 2 if k16 else 4
    op = "v_mfma_f32_16x16x16_bf16" if k16 else "v_mfma_f32_16x16x32_bf16"
    ctext = "0" if c is None else rs(cF, c, 4)
    A = R(aF, a, n); B = R(bF, b, n); C = [] if c is None else R(cF, c, 4)
    return I(f"{op} {rs(dF,d,4)}, {rs(aF,a,n)}, {rs(bF,b,n)}, {ctext}", "mfma",
             tagged(A, atag) + tagged(B, btag) + tagged(C, ctag), tagged(R(dF, d, 4), dtag), aff, ab=A + B, c=C)

def pv_mfma(j, i, t, dt):
    k16 = i == NSTEP - 1
    c = None if i == 0 else Oreg(t, dt)
    return mfma("v", Oreg(t, dt), "a", Vreg(i & 1, dt), "v", Sreg(t, 0), "v", c,
                ("O", j, i, t, dt), ("Vf", j, i, dt), ("P", j, i, t), ("O", j, i - 1, t, dt), k16, aff=j)
def sum_mfma(j, i, t):
    k16 = i == NSTEP - 1
    c = None if i == 0 else Lreg(t)
    return mfma("a", Lreg(t), "a", A_ONE, "v", Sreg(t, 0), "a", c,
                ("L", j, i, t), ("one", None), ("P", j, i, t), ("L", j, i - 1, t), k16, aff=j)
def qk_mfma(j, i, t, kt, s):
    if s == 0:
        c = None if i == 0 else Nreg(t); ctag = ("negm", j, t)
    else:
        c = Sreg(t, kt); ctag = ("S", j, i, t, kt, s - 1)
    return mfma("v", Sreg(t, kt), "a", Kreg(i & 1, kt, s), "a", Qreg(t, s), "v", c,
                ("S", j, i, t, kt, s), ("Kf", j, i, kt, s), ("Q", j, t, s), ctag, aff=j)

def k_read(j, i, kt, s):
    off = KRING + (i % NS) * 8192 + kt * 4096 + s * 256
    r = Kreg(i & 1, kt, s)
    return I(f"ds_read_b128 {rs('a',r,4)}, v{V_KADDR} offset:{off}", "lds_r",
             [(f"v{V_KADDR}", None), (f"KV{i%NS}", ("Kv", j, i))], tagged(R("a", r, 4), ("Kf", j, i, kt, s)), j)
def v_read(j, i, dt, half):
    off = (i % NS) * 8192 + half * 4096 + (dt >> 1) * 256
    r = Vreg(i & 1, dt) + 2 * half
    va = V_VA1 if dt & 1 else V_VA0
    wr = [(f"a{r+x}", ("Vf", j, i, dt, 2 * half + x)) for x in range(2)]
    return I(f"ds_read_b64_tr_b16 {rs('a',r,2)}, v{va} offset:{off}", "lds_r",
             [(f"v{va}", None), (f"VV{i%NS}", ("Vv", j, i))], wr, j)
def q_read(j, t, s):
    off = t * 4096 + s * 256
    r = Qreg(t, s)
    need = [(f"ST{t*4+rb}", ("Qs", j, t * 4 + rb)) for rb in range(4)]
    return I(f"ds_read_b128 {rs('a',r,4)}, v{V_QADDR} offset:{off}", "lds_r",
             [(f"v{V_QADDR}", None)] + need, tagged(R("a", r, 4), ("Q", j, t, s)), j)

def kv_dma(which, j, tile):
    st = S_T0 if which == "K" else S_T1
    sr = S_K if which == "K" else S_V
    ring = KRING if which == "K" else VRING
    out = []
    stag = ("so" + which, j, tile)
    if tile == NSTEP - 1:
        assert j == 0
        out.append(salu(f"s_mov_b32 s{st}, s{S_KV19}", [(f"s{S_KV19}", ("kv19", j))], [(f"s{st}", stag)], j))
    else:
        base = S_KVC if j == 0 else S_KVN
        out.append(salu(f"s_add_u32 s{st}, s{base}, {tile*8192}", [(f"s{base}", ("kvb", j))], [(f"s{st}", stag)], j))
    mtag = ("m0" + which, j, tile)
    out.append(salu(f"s_add_u32 m0, s{S_LW}, {ring + (tile % NS) * 8192}", [], [("m0", mtag)], j))
    for a in range(2):
        res = ("KR" if which == "K" else "VR") + f"{tile % NS}_{a}"
        free = ("KF" if which == "K" else "VF") + f"{tile % NS}"
        o = " offset:1024" if a else ""
        if cfg.kvflags: o += " " + cfg.kvflags
        out.append(I(f"buffer_load_dwordx4 v{V_VOFF1 if a else V_VOFF}, {srd(sr)}, s{st} offen{o} lds", "dma2" if a else "dma",
                     [("m0", mtag), (f"s{st}", stag), (f"v{V_VOFF}", None), (free, ("free" + which, j, tile))],
                     [(res, (which + "d", j, tile, a))], j))
    return out

def mkbarrier(pubK, pubV, doneK, doneV):
    need = []; wr = []
    for nm, tiles in (("K", pubK), ("V", pubV)):
        for x in tiles:
            need += [(f"{nm}R{x%NS}_{a}", (nm + "d", x // NSTEP, x % NSTEP, a)) for a in range(2)]
            wr.append((f"{nm}V{x%NS}", (nm + "v", x // NSTEP, x % NSTEP)))
    for x in doneK:
        for kt in range(2):
            for s in range(4): need += [(r, None) for r in R("a", Kreg(x & 1, kt, s), 4)]
        f = x + NS
        wr += [(f"KF{f%NS}", ("freeK", f // NSTEP, f % NSTEP)), (f"KV{x%NS}", ("dead", None))]
    for x in doneV:
        for dt in range(8): need += [(r, None) for r in R("a", Vreg(x & 1, dt), 4)]
        f = x + NS
        wr += [(f"VF{f%NS}", ("freeV", f // NSTEP, f % NSTEP)), (f"VV{x%NS}", ("dead", None))]
    return I("s_barrier", "barrier", [], wr, 0, need=need)

def barrier(i):
    if cfg.bar2:
        return mkbarrier([i + 1, i + 2], [i, i + 1], [i - 1, i], [i - 2, i - 1])
    return mkbarrier([i + 1], [i], [i], [i - 1])

def blk_goff(b):
    return (b & 3) * 1024

def q_load(j, b, q):
    t = b >> 2
    stag = ("soQ", j, t)
    so = None
    if b & 3 == 0:
        if t == 4:
            bs = S_QN4 if j == 1 else S_QC4
            so = salu(f"s_mov_b32 s{S_T2}, s{bs}", [(f"s{bs}", ("qb4", j))], [(f"s{S_T2}", stag)], j)
        else:
            bs = S_QN if j == 1 else S_QC
            so = salu(f"s_add_u32 s{S_T2}, s{bs}, {t*4096}", [(f"s{bs}", ("qb", j))], [(f"s{S_T2}", stag)], j)
    go = blk_goff(b)
    o = f" offset:{go}" if go else ""
    nt = (" " + cfg.qflags) if cfg.qflags else ""
    ld = I(f"buffer_load_dwordx4 {rs('v',q,4)}, v{V_VOFF1 if b & 1 else V_VOFF}, {srd(S_Q)}, s{S_T2} offen{o}{nt}", "vload",
           [(f"s{S_T2}", stag), (f"v{V_VOFF}", None)], tagged(R("v", q, 4), ("qs0", j, b)), j)
    return so, ld

def q_scale(j, b, q):
    vs = []
    for x in range(4):
        r = q + x; u = V_U0 if x & 1 == 0 else V_U1
        vs.append(valu(f"v_lshlrev_b32_e32 v{u}, 16, v{r}", [(f"v{r}", ("qs0", j, b, x))], [(f"v{u}", ("u0", j, b, x))], j))
        vs.append(valu(f"v_and_b32_e32 v{r}, s{S_MASK}, v{r}", [(f"v{r}", ("qs0", j, b, x))], [(f"v{r}", ("qs1", j, b, x))], j))
        vs.append(valu(f"v_mul_f32_e32 v{u}, s{S_C}, v{u}", [(f"v{u}", ("u0", j, b, x))], [(f"v{u}", ("u1", j, b, x))], j))
        vs.append(valu(f"v_mul_f32_e32 v{r}, s{S_C}, v{r}", [(f"v{r}", ("qs1", j, b, x))], [(f"v{r}", ("qs2", j, b, x))], j))
        vs.append(valu(f"v_cvt_pk_bf16_f32 v{r}, v{u}, v{r}", [(f"v{u}", ("u1", j, b, x)), (f"v{r}", ("qs2", j, b, x))],
                       [(f"v{r}", ("qs3", j, b, x))], j))
    wr = I(f"ds_write_b128 v{V_LIN}, {rs('v',q,4)} offset:{b*1024}", "lds_w128",
           [(f"v{V_LIN}", None), (f"ST{b}", ("Ofree", j - 2, b))] + tagged(R("v", q, 4), ("qs3", j, b)), [(f"ST{b}", ("Qs", j, b))], j)
    return vs, wr

def o_drain(j, b, buf):
    t = b >> 2
    r = A_RB + 4 * buf
    stag = ("soO", j, t)
    so = None
    if b & 3 == 0:
        if t == 4:
            so = salu(f"s_mov_b32 s{S_T3}, s{S_OP4}", [(f"s{S_OP4}", ("qb4", j))], [(f"s{S_T3}", stag)], j)
        else:
            so = salu(f"s_add_u32 s{S_T3}, s{S_OP}, {t*4096}", [(f"s{S_OP}", ("qb", j))], [(f"s{S_T3}", stag)], j)
    rdeps = [(f"SO{t}_{dt}", ("Ow", j, t, dt)) for dt in range(8)]
    rd = I(f"ds_read_b128 {rs('a',r,4)}, v{V_LIN} offset:{b*1024}", "lds_r",
           [(f"v{V_LIN}", None)] + rdeps, tagged(R("a", r, 4), ("rb", j, b)) + [(f"ST{b}", ("Ofree", j, b))], j)
    go = blk_goff(b)
    o = f" offset:{go}" if go else ""
    nt = (" " + cfg.oflags) if cfg.oflags else ""
    st = I(f"buffer_store_dwordx4 {rs('a',r,4)}, v{V_VOFF1 if b & 1 else V_VOFF}, {srd(S_O)}, s{S_T3} offen{o}{nt}", "vstore",
           tagged(R("a", r, 4), ("rb", j, b)) + [(f"s{S_T3}", stag), (f"v{V_VOFF}", None)], [], j, note=f"free{b}")
    return so, rd, st

def exp_ins(j, i, t, kt, r, srctag):
    reg = Sreg(t, kt) + r
    return valu(f"v_exp_f32_e32 v{reg}, v{reg}", [(f"v{reg}", srctag)], [(f"v{reg}", ("E", j, i, t, kt, r))], j, "trans")
def cvt_ins(j, i, t, p):
    kt = p >> 1; r = (p & 1) * 2
    a = Sreg(t, kt) + r; d = Sreg(t, 0) + p
    return valu(f"v_cvt_pk_bf16_f32 v{d}, v{a}, v{a+1}",
                [(f"v{a}", ("E", j, i, t, kt, r)), (f"v{a+1}", ("E", j, i, t, kt, r + 1))], [(f"v{d}", ("P", j, i, t, p))], j)

def max_chain(j, t):
    m0 = V_MX; m1 = m0 + 1
    s = Sreg(t, 0)
    def st(x): return (f"v{s+x}", ("S", j, 0, t, x >> 2, 3, x & 3))
    T = lambda n: ("mx", j, t, n)
    ch = [
        valu(f"v_max3_f32 v{m0}, v{s}, v{s+1}, v{s+2}", [st(0), st(1), st(2)], [(f"v{m0}", T(0))], j),
        valu(f"v_max3_f32 v{m0}, v{m0}, v{s+3}, v{s+4}", [(f"v{m0}", T(0)), st(3), st(4)], [(f"v{m0}", T(1))], j),
        valu(f"v_max3_f32 v{m0}, v{m0}, v{s+5}, v{s+6}", [(f"v{m0}", T(1)), st(5), st(6)], [(f"v{m0}", T(2))], j),
        valu(f"v_max_f32_e32 v{m1}, v{m0}, v{s+7}", [(f"v{m0}", T(2)), st(7)], [(f"v{m1}", T(3))], j),
        valu(f"v_max_f32_e32 v{m0}, v{m0}, v{s+7}", [(f"v{m0}", T(2)), st(7)], [(f"v{m0}", T(3))], j),
        valu(f"v_permlane32_swap_b32_e32 v{m0}, v{m1}", [(f"v{m0}", T(3)), (f"v{m1}", T(3))], [(f"v{m0}", T(4)), (f"v{m1}", T(5))], j, "perm"),
        valu(f"v_max_f32_e32 v{m0}, v{m0}, v{m1}", [(f"v{m0}", T(4)), (f"v{m1}", T(5))], [(f"v{m0}", T(6))], j),
        valu(f"v_mov_b32_e32 v{m1}, v{m0}", [(f"v{m0}", T(6))], [(f"v{m1}", T(6))], j),
        valu(f"v_permlane16_swap_b32_e32 v{m0}, v{m1}", [(f"v{m0}", T(6)), (f"v{m1}", T(6))], [(f"v{m0}", T(7)), (f"v{m1}", T(8))], j, "perm"),
    ]
    for x in range(4):
        n = Nreg(t) + x
        ch.append(valu(f"v_min_f32_e64 v{n}, -v{m0}, -v{m1}", [(f"v{m0}", T(7)), (f"v{m1}", T(8))], [(f"v{n}", ("negm", j, t, x))], j))
    adds = {}
    for x in range(8):
        n = Nreg(t)
        adds[(x >> 2, x & 3)] = valu(f"v_add_f32_e32 v{s+x}, v{n}, v{s+x}", [(f"v{n}", ("negm", j, t, 0)), st(x)],
                                     [(f"v{s+x}", ("Sm", j, t, x))], j)
    return ch, adds

def epilogue(j, t, pk=False):
    L = NSTEP - 1
    rc = V_RCP + t
    head = [
        valu(f"v_accvgpr_read_b32 v{rc}, a{Lreg(t)}", [(f"a{Lreg(t)}", ("L", j, L, t, 0))], [(f"v{rc}", ("l", j, t))], j),
        valu(f"v_cmp_nge_f32_e32 vcc, s{S_THR}, v{rc}", [(f"v{rc}", ("l", j, t))], [("vcc", ("chk", j, t))], j),
        valu(f"v_rcp_f32_e32 v{rc}, v{rc}", [(f"v{rc}", ("l", j, t))], [(f"v{rc}", ("rl", j, t))], j, "trans"),
    ]
    acc = salu(f"s_or_b64 s[{S_FACC}:{S_FACC+1}], s[{S_FACC}:{S_FACC+1}], vcc", [("vcc", ("chk", j, t)), ("facc", ("facc", j, t - 1))],
               [("facc", ("facc", j, t)), ("scc", None)], j)
    per = []
    for dt in range(8):
        o = Oreg(t, dt)
        vs = []
        if pk:
            rb = rc & ~1
            sel = "op_sel:[0,1] op_sel_hi:[1,1]" if rc & 1 else "op_sel_hi:[1,0]"
            for x in (0, 2):
                vs.append(valu(f"v_pk_mul_f32 v[{o+x}:{o+x+1}], v[{o+x}:{o+x+1}], v[{rb}:{rb+1}] {sel}",
                               [(f"v{rc}", ("rl", j, t))] + [(f"v{o+x+y}", ("O", j, L, t, dt, x + y)) for y in range(2)],
                               [(f"v{o+x+y}", ("On", j, t, dt, x + y)) for y in range(2)], j, "pk"))
        else:
          for x in range(4):
            vs.append(valu(f"v_mul_f32_e32 v{o+x}, v{rc}, v{o+x}", [(f"v{rc}", ("rl", j, t)), (f"v{o+x}", ("O", j, L, t, dt, x))],
                           [(f"v{o+x}", ("On", j, t, dt, x))], j))
        vs.append(valu(f"v_cvt_pk_bf16_f32 v{o}, v{o}, v{o+1}", [(f"v{o}", ("On", j, t, dt, 0)), (f"v{o+1}", ("On", j, t, dt, 1))],
                       [(f"v{o}", ("Ob", j, t, dt, 0))], j))
        vs.append(valu(f"v_cvt_pk_bf16_f32 v{o+1}, v{o+2}, v{o+3}", [(f"v{o+2}", ("On", j, t, dt, 2)), (f"v{o+3}", ("On", j, t, dt, 3))],
                       [(f"v{o+1}", ("Ob", j, t, dt, 1))], j))
        ow = V_OW1 if dt & 1 else V_OW0
        off = t * 4096 + (dt >> 1) * 256
        w = I(f"ds_write_b64 v{ow}, {rs('v',o,2)} offset:{off}", "lds_w64",
              [(f"v{ow}", None)] + tagged(R("v", o, 2), ("Ob", j, t, dt)),
              [(f"SO{t}_{dt}", ("Ow", j, t, dt))] + [(f"ST{t*4+rb}", ("Ob", j)) for rb in range(4)], j)
        per.append((vs, w))
    return head, acc, per

def fail_commit(j):
    return [
        salu(f"s_cmp_lg_u64 s[{S_FACC}:{S_FACC+1}], 0", [("facc", ("facc", j, 4))], [("scc", ("fc", j))], j),
        salu(f"s_cselect_b32 s{S_X0}, s{S_PBIT}, 0", [("scc", ("fc", j)), (f"s{S_PBIT}", ("bit", j))], [(f"s{S_X0}", None)], j),
        salu(f"s_or_b32 s{S_FAIL}, s{S_FAIL}, s{S_X0}", [], [("scc", None)], j),
        salu(f"s_mov_b64 s[{S_FACC}:{S_FACC+1}], 0", [], [("facc", ("facc", j + 1, -1))], j),
    ]

class Task:
    n = 0
    def __init__(self, ins, rel, dl, preds=(), zone=False):
        self.ins = ins if isinstance(ins, list) else [ins]
        self.kind = self.ins[0].kind
        self.cost = sum(COST[x.kind] for x in self.ins)
        self.rel = rel; self.dl = dl; self.preds = list(preds); self.succ = []
        self.zone = zone
        self.g = None; self.id = Task.n; Task.n += 1
        for p, d in self.preds: p.succ.append((self, d))

class Sched:
    def __init__(self):
        self.sp = []
        self.sc = []; self.mem = []; self.val = []
        self.it_start = []
        self.tasks = []
        self.bars = []
    def add(self, m):
        self.sp.append(m); self.sc.append([]); self.mem.append([]); self.val.append([])
        return len(self.sp) - 1
    @property
    def G(self): return len(self.sp)
    def load(self, g):
        g %= self.G
        return sum(COST[x.kind] for x in self.mem[g] + self.val[g]) + 4 * max(0, len(self.sc[g]) - 1)
    def put(self, ins, g):
        w = g // self.G
        if w: ins = ins.shifted(-w)
        gg = g % self.G
        ins.gap = gg
        if ins.kind in ("salu", "barrier"): self.sc[gg].append(ins)
        elif ins.kind in VALU_KINDS: self.val[gg].append(ins)
        else: self.mem[gg].append(ins)
        return g
    def task(self, ins, rel, dl, preds=(), zone=False):
        t = Task(ins, rel, dl, preds, zone); self.tasks.append(t); return t
    def forbidden(self, g):
        g %= self.G
        for b in self.bars + [self.bars[0] + self.G]:
            if b - cfg.zpre <= g <= b + cfg.zpost: return True
        return False
    def run(self, cut):
        G = self.G
        for t in self.tasks:
            for p, d in t.preds: t.rel = max(t.rel, p.rel + d)
        for t in self.tasks:
            t.off = -((t.rel - cut) // G) * G
            t.r = t.rel + t.off; t.d = min(t.dl + t.off, cut + G - 1)
        for t in self.tasks:
            t.lp = [(p, d) for p, d in t.preds if p.off == t.off]
            for p, d in t.preds:
                if p.off != t.off:
                    assert p.off == t.off + G, (t.ins[0].text, p.ins[0].text)
                    p.d = min(p.d, t.r + G - d)
        for t in reversed(self.tasks):
            for s_, d in t.succ:
                if s_.off == t.off: t.d = min(t.d, s_.d - d)
            if t.zone:
                while self.forbidden(t.d): t.d -= 1
            assert t.d >= t.r, ("infeasible", t.ins[0].text, t.r, t.d)
        pend = sorted(self.tasks, key=lambda t: t.r)
        act = []; pi = 0
        lastz = [-99]
        def ready(t, g):
            if t.zone and (self.forbidden(g) or (g - lastz[0] < cfg.bigsep and t.d > g)): return False
            return all(p.g is not None and p.g + d <= g for p, d in t.lp)
        def commit(t, g):
            t.g = g; act.remove(t)
            if t.zone: lastz[0] = g
            for x in t.ins: self.put(x, g - t.off)
        for g in range(cut, cut + G):
            while pi < len(pend) and pend[pi].r <= g: act.append(pend[pi]); pi += 1
            key = lambda t: (t.d, t.id)
            isbar = (g % G) in self.bars
            while True:
                rs_ = sorted([t for t in act if t.kind == "salu" and ready(t, g)], key=key)
                if rs_ and (not self.sc[g % G] or rs_[0].d <= g): commit(rs_[0], g)
                else: break
            while not isbar:
                free = 8 - self.load(g)
                if free <= 0: break
                rd = sorted([t for t in act if t.kind not in ("salu", "pk") and ready(t, g)], key=key)
                if free == 8:
                    if not rd: break
                    t = rd[0]
                    if t.cost == 4:
                        partner = any(u.cost == 4 for u in rd[1:]) or any(s_.cost == 4 and d == 0 and s_.kind != "salu" for s_, d in t.succ)
                        full = [u for u in rd if u.cost >= 8]
                        if not partner and full and t.d > g + 2: t = full[0]
                    commit(t, g)
                else:
                    rd = [t for t in rd if t.cost <= free]
                    if not rd: break
                    commit(rd[0], g)
            while True:
                f = sorted([t for t in act if ready(t, g) and (t.d <= g or (t.kind == "pk" and not isbar))], key=key)
                if not f: break
                commit(f[0], g)
            late = [t for t in act if t.d <= g]
            assert not late, ("missed", g, late[0].ins[0].text, late[0].d)
        assert not act and pi == len(pend)
    def linear(self, g0, g1):
        out = []
        for g in range(g0, g1):
            out.append(self.sp[g]); out += self.sc[g]; out += self.mem[g]; out += self.val[g]
        return out

def build_schedule():
    S = Sched()
    pv0 = {}; pvend = {}; qkend = {}; qk0 = {}
    for i in range(NSTEP):
        S.it_start.append(S.G)
        for t in range(NT):
            j, st = (-1, NSTEP - 1) if i == 0 else (0, i - 1)
            for dt in range(8):
                g = S.add(pv_mfma(j, st, t, dt))
                if dt == 0: pv0[(i, t)] = g
            pvend[(i, t)] = S.add(sum_mfma(j, st, t))
            for kt in range(1 if i == NSTEP - 1 else 2):
                for s in range(4):
                    g = S.add(qk_mfma(0, i, t, kt, s))
                    if kt == 0 and s == 0: qk0[(i, t)] = g
                qkend[(i, t, kt)] = g
    G = S.G
    its = S.it_start + [G]
    for t in range(NT):
        for d in range(2):
            pv0[(NSTEP + d, t)] = pv0[(d, t)] + G; pvend[(NSTEP + d, t)] = pvend[(d, t)] + G; qk0[(NSTEP + d, t)] = qk0[(d, t)] + G
    LAT = cfg.lat
    T = S.task
    for i in range(0, NSTEP, 2 if cfg.bar2 else 1):
        S.put(barrier(i), its[i]); S.bars.append(its[i])
    for i in range(NSTEP):
        w = mkbarrier([], [], [i], [i - 1])
        S.sc[(its[i] - 1) % G].append(I("; frags ready", "label", [], [], 0, need=w.need))
    AH = NS - 1 if cfg.bar2 else NS
    mprev = None
    for i in range(NSTEP):
        for t in range(NT):
            nk = 1 if i == NSTEP - 1 else 2
            hi = pv0[(i + 1, t)] - 2
            if i == 0:
                ch, adds = max_chain(0, t)
                p = mprev
                lo = qkend[(0, t, 1)] + LAT
                negs = []
                for n, x in enumerate(ch):
                    isneg = n >= len(ch) - 4
                    q = T(x, lo, lo + cfg.maxwin, [] if p is None else [(p, 1 if x.kind == "perm" else 0)])
                    p = q
                    if isneg: negs.append(q)
                mprev = p
            pc = None
            for kt in range(nk):
                es = []
                for r in range(4):
                    if i == 0:
                        a_ = T(adds[(kt, r)], lo, hi, [(negs[0], 0)])
                        es.append(T(exp_ins(0, 0, t, kt, r, ("Sm", 0, t, 4 * kt + r)), lo, hi, [(a_, 0)]))
                    else:
                        es.append(T(exp_ins(0, i, t, kt, r, ("S", 0, i, t, kt, 3, r)), qkend[(i, t, kt)] + LAT, hi))
                    if r & 1:
                        pc = T(cvt_ins(0, i, t, 2 * kt + (r >> 1)), 0, hi, [(es[r - 1], 1), (es[r], 1)] + ([(pc, 0)] if pc else []))
    pd = None
    for i in range(NSTEP):
        lo = its[i] + 1; n = its[i + 1] - its[i]
        hi = its[i + 1] - cfg.rdmargin
        kj, kti = (0, i + 1) if i + 1 < NSTEP else (1, 0)
        vr = [v_read(0, i, dt, half) for dt in range(8) for half in range(1 if i == NSTEP - 1 else 2)]
        kr = [k_read(kj, kti, kt, s) for kt in range(1 if kti == NSTEP - 1 else 2) for s in range(4)]
        rds = weave2(vr, kr)
        pr_ = None
        for k, x in enumerate(rds):
            r = lo + int(k * (hi - lo - cfg.rdwin) / len(rds))
            pr_ = T(x, r, min(hi, r + cfg.rdwin), [(pr_, cfg.rdgap)] if pr_ else [])
        for x, (which, tile) in enumerate((("K", i + AH), ("V", i - 1 + AH))):
            so, m0, d0, d1 = kv_dma(which, tile // NSTEP, tile % NSTEP)
            r = lo + x * (cfg.dma2 if cfg.bar2 and i % 2 == 0 else n // 3)
            a_ = T(so, lo, hi)
            b_ = T(m0, r, hi, [(pd, 1)] if x else [])
            if cfg.dsplit:
                d1.kind = "dma"
                pd = T(d0, r, r + cfg.zpost + 8, [(a_, 1), (b_, 1)], zone=True)
                pd = T(d1, r, r + cfg.zpost + 16, [(pd, cfg.dsplit)], zone=True)
            else:
                pd = T([d0, d1], r, r + cfg.zpost + 8, [(a_, 1), (b_, 1)], zone=True)
    epi_w = {}
    pacc = None; qr = {}
    c0 = its[2] + cfg.c0
    step = (G - cfg.zpre - 2 - c0) / 20
    NQ = len(V_QS)
    wt = {}; lt = {}; drt = {}
    def mkload(b, rel, preds):
        so, ld = q_load(1, b, V_QS[b % NQ])
        if so is not None:
            preds = preds + [(T(so, max(1, rel - 4), rel + 30, [(lt[b - 1], 1)] if b else []), 1)]
        if b: preds = preds + [(lt[b - 1], 0)]
        lt[b] = T(ld, rel, rel + cfg.qldwin, preds, zone=True)
    for b in range(NQ): mkload(b, 6 + b * cfg.q0step, [])
    epi = {t: epilogue(0, t, pk=cfg.pk_epi) for t in range(NT)}
    pst = None; pv_ = None
    for b in range(20):
        lo = c0 + int(b * step); hi = c0 + int((b + 1) * step) - 1
        so, rd, st = o_drain(-1, b, b & 3)
        drt[b] = T(rd, lo - cfg.dlead if b else lo, hi - 1)
        pr = [(drt[b], 9)]
        if so is not None: pr.append((T(so, lo - cfg.dlead if b else lo, hi + 30, [(pst, 1)] if pst else []), 1))
        if pst: pr.append((pst, 0))
        pst = T(st, 0, min(hi + 30, G - 1), pr, zone=True)
        vs, wr = q_scale(1, b, V_QS[b % NQ])
        p = pv_
        for v in vs:
            p = T(v, lo, hi + cfg.qslack, [(p, 0)] if p else [])
        pv_ = p
        wt[b] = T(wr, lo, min(hi + cfg.qslack, G - 1), [(p, 1), (drt[b], 0)], zone=True)
        if b + NQ < 20: mkload(b + NQ, hi + cfg.qslack + 1, [(wt[b], 1)])
    for t in range(NT):
        for s_ in range(4):
            qr[(t, s_)] = T(q_read(1, t, s_), qkend[(NSTEP - 1, t, 0)] + 1, qk0[(NSTEP, t)] - 12, [(wt[4 * t + 3], 0)] + ([(qr[(t, s_ - 1)], 2)] if s_ else []))
    wslot = 0
    for t in range(NT):
        head, acc, per = epi[t]
        lo = pvend[(NSTEP, t)] + LAT
        hi = pv0[(NSTEP + 1, t)] - 2
        h0 = T(head[0], lo, lo + 2)
        h1 = T(head[1], lo, lo + 2, [(h0, 0)] + ([(pacc, 0)] if pacc else []))
        pacc = T(acc, lo, lo + 12, [(h1, cfg.accd)])
        h2 = T(head[2], lo, lo + 2, [(h1, 0)])
        if cfg.pk_epi:
            burst = [v for vs, w in per for v in vs[:2]] + per[0][0][2:] + per[1][0][2:]
            bt = T(burst, lo, hi, [(h2, 1)])
        for dt, (vs, w) in enumerate(per):
            wslot = max(wslot + cfg.epistep, lo + cfg.epi0)
            while S.forbidden(wslot): wslot += 1
            h = min(hi + dt, wslot)
            if cfg.pk_epi:
                if dt < 2: p = bt
                else:
                    p = T(vs[2], lo, h, [(bt, 0)]); p = T(vs[3], lo, h, [(p, 0)])
            else:
                ms = [T(v, lo, h, [(h2, 1)]) for v in vs[:4]]
                p = T(vs[4], lo, h, [(ms[0], 0), (ms[1], 0)])
                p = T(vs[5], lo, h, [(ms[2], 0), (ms[3], 0), (p, 0)])
            T(w, h - 1, h, [(p, 1)] + [(qr[(t, s_)], 0) for s_ in range(4)], zone=True)
        if t == NT - 1:
            T(fail_commit(0), lo, hi, [(pacc, 1)])
    cutb = 10
    S.run(c0 + int(cutb * step) if cfg.cut is None else cfg.cut)
    S.qkend = qkend; S.qk0 = qk0; S.pv0 = pv0
    sys.stderr.write(f"Q loads {[lt[b].g - lt[b].off for b in range(20)]} writes {[wt[b].g - wt[b].off for b in range(20)]}\n")
    return S, its

def raw(text, kind="salu", rd=(), wr=()): return I(text, kind, rd, wr)

def setup_code():
    o = []
    A = lambda t, k="salu", rd=(), wr=(): o.append(raw(t, k, [(r, None) for r in rd], [(r, None) for r in wr]))
    A("s_cmp_ge_u32 s2, 256"); A("s_cbranch_scc1 L_end", "branch")
    for b, off in ((S_K, 8), (S_Q, 0), (S_V, 16), (S_O, 24)):
        A(f"s_load_dwordx2 s[{b}:{b+1}], s[0:1], {off}")
    o.extend(code_prefetch())
    V = lambda t, rd=(), wr=(): A(t, "valu", rd, wr)
    V("v_lshrrev_b32_e32 v9, 6, v0", ["v0"], ["v9"])
    V("v_and_b32_e32 v0, 63, v0", ["v0"], ["v0"])
    V(f"v_readfirstlane_b32 s{S_W}, v9", ["v9"], [f"s{S_W}"])
    V("v_bfe_u32 v9, v0, 2, 2", ["v0"], ["v9"])
    V("v_bfe_u32 v10, v0, 3, 1", ["v0"], ["v10"])
    V("v_and_b32_e32 v11, 3, v0", ["v0"], ["v11"])
    V("v_xor_b32_e32 v10, v10, v11", ["v10", "v11"], ["v10"])
    V("v_lshlrev_b32_e32 v10, 4, v10", ["v10"], ["v10"])
    V("v_lshl_add_u32 v10, v9, 8, v10", ["v9", "v10"], ["v10"])
    V("v_lshrrev_b32_e32 v11, 4, v0", ["v0"], ["v11"])
    V(f"v_lshl_add_u32 v{V_VOFF}, v11, 6, v10", ["v11", "v10"], [f"v{V_VOFF}"])
    V(f"v_xor_b32_e32 v{V_VOFF1}, 32, v{V_VOFF}", [f"v{V_VOFF}"], [f"v{V_VOFF1}"])
    A(f"s_and_b32 s{S_X0}, s2, 7")
    A(f"s_lshr_b32 s{S_X0+1}, s2, 4")
    A(f"s_lshl_b32 s{S_X0}, s{S_X0}, 4")
    A(f"s_add_u32 s{S_X0}, s{S_X0}, s{S_X0+1}")
    A(f"s_mul_i32 s{S_H0}, s{S_X0}, {HEAD}")
    A(f"s_bfe_u32 s{S_X0}, s2, 0x10003")
    A(f"s_lshl_b32 s{S_LW}, s{S_W}, 11", rd=[f"s{S_W}"])
    A(f"s_mul_i32 s{S_LST}, s{S_W}, 20480")
    A(f"s_mul_i32 s{S_QREL}, s{S_X0}, {320*256}")
    A(f"s_add_u32 s{S_QREL}, s{S_QREL}, s{S_LST}")
    A(f"s_add_u32 s{S_LST}, s{S_LST}, {STAGE}")
    A(f"s_cmp_ge_u32 s{S_W}, 2")
    A(f"s_cselect_b32 s{S_W19}, {OOB}, {19*8192}")
    A(f"s_lshl_b32 s{S_X0}, s{S_X0}, 2")
    A(f"s_add_u32 s{S_X0}, s{S_X0}, s{S_W}")
    A(f"s_cmp_eq_u32 s{S_X0}, 7")
    A(f"s_cselect_b32 s{S_T4OFF}, {OOB}, {4*4096}")
    A(f"s_mov_b32 s{S_C}, {f32bits(CSCALE):#x}")
    A(f"s_mov_b32 s{S_MASK}, 0xffff0000")
    A(f"s_mov_b32 s{S_THR}, {f32bits(THRESH):#x}")
    A(f"s_mov_b64 s[{S_FACC}:{S_FACC+1}], 0")
    A(f"s_mov_b32 s{S_FAIL}, 0")
    A(f"s_mov_b32 s{S_JOB}, 4")
    A(f"s_mov_b32 s{S_CBIT}, 0")
    A(f"s_add_u32 s{S_KVN}, s{S_H0}, s{S_LW}")
    A(f"s_add_u32 s{S_QN}, s{S_H0}, s{S_QREL}")
    A(f"s_add_u32 s{S_QN4}, s{S_QN}, s{S_T4OFF}")
    A(f"s_mov_b32 s{S_QC}, {OOB}")
    A(f"s_mov_b32 s{S_QC4}, {OOB}")
    for b in (S_Q, S_K, S_V, S_O):
        A(f"s_mov_b32 s{b+2}, {TOTAL}"); A(f"s_mov_b32 s{b+3}, 0x20000")
    return o

def setup_addrs():
    o = []
    V = lambda t, rd=(), wr=(): o.append(raw(t, "valu", [(r, None) for r in rd], [(r, None) for r in wr]))
    V("v_bfe_u32 v9, v0, 2, 2", ["v0"], ["v9"])
    V("v_lshlrev_b32_e32 v9, 10, v9", ["v9"], ["v9"])
    V("v_and_b32_e32 v10, 3, v0", ["v0"], ["v10"])
    V("v_lshl_add_u32 v9, v10, 6, v9", ["v9", "v10"], ["v9"])
    V("v_bfe_u32 v10, v0, 1, 2", ["v0"], ["v10"])
    V("v_lshrrev_b32_e32 v11, 4, v0", ["v0"], ["v11"])
    V("v_xor_b32_e32 v12, v10, v11", ["v10", "v11"], ["v12"])
    V(f"v_lshl_add_u32 v{V_KADDR}, v12, 4, v9", ["v12", "v9"], [f"v{V_KADDR}"])
    V(f"v_add_u32_e32 v{V_QADDR}, s{S_LST}, v{V_KADDR}", [f"v{V_KADDR}"], [f"v{V_QADDR}"])
    V("v_lshrrev_b32_e32 v12, 5, v0", ["v0"], ["v12"])
    V("v_xor_b32_e32 v12, v10, v12", ["v10", "v12"], ["v12"])
    V("v_lshl_add_u32 v12, v12, 4, v9", ["v12", "v9"], ["v12"])
    V("v_bfe_u32 v13, v0, 4, 1", ["v0"], ["v13"])
    V("v_lshl_add_u32 v12, v13, 3, v12", ["v13", "v12"], ["v12"])
    V(f"v_add_u32_e32 v{V_OW0}, s{S_LST}, v12", ["v12"], [f"v{V_OW0}"])
    V(f"v_xor_b32_e32 v{V_OW1}, 32, v{V_OW0}", [f"v{V_OW0}"], [f"v{V_OW1}"])
    V("v_lshrrev_b32_e32 v9, 4, v0", ["v0"], ["v9"])
    V("v_lshlrev_b32_e32 v9, 10, v9", ["v9"], ["v9"])
    V("v_bfe_u32 v10, v0, 2, 2", ["v0"], ["v10"])
    V("v_lshl_add_u32 v9, v10, 6, v9", ["v9", "v10"], ["v9"])
    V("v_bfe_u32 v10, v0, 3, 2", ["v0"], ["v10"])
    V("v_bfe_u32 v11, v0, 1, 1", ["v0"], ["v11"])
    V("v_xor_b32_e32 v10, v10, v11", ["v10", "v11"], ["v10"])
    V("v_lshl_add_u32 v9, v10, 4, v9", ["v9", "v10"], ["v9"])
    V("v_and_b32_e32 v10, 1, v0", ["v0"], ["v10"])
    V("v_lshl_add_u32 v9, v10, 3, v9", ["v9", "v10"], ["v9"])
    V(f"v_add_u32_e32 v{V_VA0}, {VRING}, v9", ["v9"], [f"v{V_VA0}"])
    V(f"v_xor_b32_e32 v{V_VA1}, 32, v{V_VA0}", [f"v{V_VA0}"], [f"v{V_VA1}"])
    V("v_lshlrev_b32_e32 v9, 4, v0", ["v0"], ["v9"])
    V(f"v_add_u32_e32 v{V_LIN}, s{S_LST}, v9", ["v9"], [f"v{V_LIN}"])
    V("v_mov_b32_e32 v9, 0x3f803f80", [], ["v9"])
    for x in range(4):
        o.append(I(f"v_accvgpr_write_b32 a{A_ONE+x}, v9", "valu", [("v9", None)], [(f"a{A_ONE+x}", ("one", None, x))]))
    return o

def rotate():
    o = []
    A = lambda t, rd=(), wr=(): o.append(salu(t, rd, wr))
    A(f"s_mov_b32 s{S_OP}, s{S_QC}", [], [(f"s{S_OP}", ("qb", -1))])
    A(f"s_mov_b32 s{S_OP4}, s{S_QC4}", [], [(f"s{S_OP4}", ("qb4", -1))])
    A(f"s_mov_b32 s{S_QC}, s{S_QN}", [], [(f"s{S_QC}", ("qb", 0))]); A(f"s_mov_b32 s{S_QC4}, s{S_QN4}", [], [(f"s{S_QC4}", ("qb4", 0))])
    A(f"s_mov_b32 s{S_KVC}, s{S_KVN}", [], [(f"s{S_KVC}", ("kvb", 0))])
    A(f"s_add_u32 s{S_KV19}, s{S_KVN}, s{S_W19}", [], [(f"s{S_KV19}", ("kv19", 0))])
    A(f"s_mov_b32 s{S_PBIT}, s{S_CBIT}", [], [(f"s{S_PBIT}", ("bit", -1))])
    A(f"s_lshl_b32 s{S_CBIT}, s{S_CBIT}, 1")
    A(f"s_max_u32 s{S_CBIT}, s{S_CBIT}, 1")
    A(f"s_cmp_gt_u32 s{S_JOB}, 1")
    A(f"s_cselect_b32 s{S_X0}, {JOBSTRIDE}, {OOB}")
    A(f"s_add_u32 s{S_KVN}, s{S_KVN}, s{S_X0}", [], [(f"s{S_KVN}", ("kvb", 1))])
    A(f"s_add_u32 s{S_QN}, s{S_QN}, s{S_X0}", [], [(f"s{S_QN}", ("qb", 1))])
    A(f"s_add_u32 s{S_QN4}, s{S_QN4}, s{S_X0}", [], [(f"s{S_QN4}", ("qb4", 1))])
    A(f"s_sub_u32 s{S_JOB}, s{S_JOB}, 1")
    return o

def tile_of(x):
    tg = x.wr[0][1]
    if tg[0] in ("S", "E", "P", "O", "L"): return (tg[2], tg[3])
    if tg[0] in ("mx", "negm", "Sm"): return (0, tg[2])
    return None

def code_prefetch():
    o = []
    A = lambda t, k="salu", rd=(), wr=(): o.append(raw(t, k, [(r, None) for r in rd], [(r, None) for r in wr]))
    if not cfg.cpf: return o
    A(f"s_getpc_b64 s[{S_X0+12}:{S_X0+13}]")
    A("L_pc:", "label")
    A("v_lshlrev_b32_e32 v20, 7, v0", "valu", ["v0"], ["v20"])
    for k in range(cfg.cpf):
        A(f"v_min_u32_e32 v21, L_slow-L_pc, v20", "valu", ["v20"], ["v21"])
        A(f"global_load_dword v22, v21, s[{S_X0+12}:{S_X0+13}]", "vload", ["v21"], [])
        if k + 1 < cfg.cpf: A("v_add_u32_e32 v20, 32768, v20", "valu", ["v20"], ["v20"])
    return o

def weave2(vs, ms):
    out = []; n = len(vs); k = len(ms); mi = 0
    for i, v in enumerate(vs):
        while mi < k and mi * n <= i * k: out.append(ms[mi]); mi += 1
        out.append(v)
    return out + ms[mi:]

def build_prologue(it01):
    o = []
    init = [("facc", ("facc", 0, -1))]
    for x in range(NS):
        init += [(f"KF{x}", ("freeK", 0, x)), (f"VF{x}", ("freeV", 0, x))]
    for b in range(20): init.append((f"ST{b}", ("Ofree", -2, b)))
    o.append(I("; init state", "label", [], init))
    land = lambda b: Oreg(b >> 2, b & 3)
    pend = []
    def kv(which, tile): pend.append(kv_dma(which, 0, tile))
    def qt(t):
        for b in range(4 * t, 4 * t + 4): pend.append([x for x in q_load(0, b, land(b)) if x is not None])
    kv("K", 0); qt(0); qt(1); kv("K", 1); kv("V", 0); qt(2); qt(3); kv("K", 2); kv("V", 1); qt(4)
    for x in range(3, NS):
        kv("K", x); kv("V", x - 1)
    order = [x for g in pend for x in g if x.kind in VMEM_KINDS]
    qidx = {x.wr[0][1][2]: n for n, x in enumerate(order) if x.kind == "vload"}
    cnt = [0]
    def issue(upto):
        r = []
        while pend and cnt[0] < upto:
            g = pend.pop(0); r.extend(g); cnt[0] += sum(1 for x in g if x.kind in VMEM_KINDS)
        return r
    o.extend(issue(cfg.pro_first))
    o.extend(setup_addrs())
    mine = [x.copy() for x in it01 if x.aff >= 0 and x.kind != "label"]
    isv = lambda x: x.kind in VALU_KINDS and x.aff == 0
    C = {t: [x for x in mine if isv(x) and tile_of(x) == (0, t)] for t in range(NT)}
    E = {t: [x for x in mine if isv(x) and tile_of(x) == (1, t)] for t in range(NT)}
    B = {t: [x for x in mine if x.kind == "mfma" and x.wr[0][1][0] == "S" and tile_of(x) == (0, t)] for t in range(NT)}
    D = {t: [x for x in mine if x.kind == "mfma" and x not in B[t] and tile_of(x)[1] == t] for t in range(NT)}
    bars = [x for x in mine if x.kind == "barrier"]
    fr = lambda nm, i: [x for x in mine if x.kind == "lds_r" and x.wr[0][1][0] == nm and x.wr[0][1][2] == i]
    late = [x for x in mine if x.kind in VMEM_KINDS or x.kind == "salu"]
    nlate = len(late)
    if cfg.bar2:
        def isearly(x):
            tg = x.wr[0][1]
            return tg is not None and tg[0] in ("soK", "m0K", "Kd", "soV", "m0V", "Vd") and tg[2] == (NS - 1 if "K" in tg[0] else NS - 2)
        late = [x for x in late if not isearly(x)]
    acc = sum(len(d[t]) for d in (B, C, D, E) for t in range(NT)) + len(bars) + nlate + sum(len(fr(*z)) for z in (("Kf", 1), ("Kf", 2), ("Vf", 0), ("Vf", 1)))
    nqr = len([x for x in mine if x.kind == "lds_r" and x.wr[0][1][0] == "Q"])
    assert acc + nqr == len(mine), (acc, nqr, len(mine))
    bars = [mkbarrier([1], [0], [0], []), mkbarrier([2], [1], [1], [0])]
    def blk(b):
        vs, wr = q_scale(0, b, land(b))
        return vs[:1] + issue(qidx[b] + 1 + cfg.pro_depth) + vs[1:] + [wr]
    qrd = lambda t: [q_read(0, t, s_) for s_ in range(4)]
    for b in range(4): o.extend(blk(b))
    o.extend(qrd(0))
    o.extend(blk(4))
    bk = mkbarrier([0], [], [], [])
    x = blk(5)
    o.extend(x[:-1]); o.append(bk)
    o.extend([k_read(0, 0, kt, s_) for kt in range(2) for s_ in range(4)])
    o.append(x[-1])
    o.extend(blk(6)); o.extend(weave2(blk(7), B[0])); o.extend(qrd(1))
    o.extend(C[0][:12]); o.extend(weave2(C[0][12:], B[1])); o.extend(C[1])
    o.append(bars[0]); o.extend(fr("Vf", 0) + fr("Kf", 1))
    o.extend(blk(8)); o.extend(weave2(blk(9) + blk(10) + blk(11), D[0] + D[1])); o.extend(qrd(2))
    o.extend(E[0])
    for t in (3, 4):
        p = t - 1
        x = blk(4 * t)
        o.extend(x[:8] + weave2(x[8:], B[p]))
        o.extend(E[p - 1]); o.extend(C[p])
        if t == 4: o.append(bars[1]); o.extend(fr("Vf", 1))
        o.extend(weave2(blk(4 * t + 1) + blk(4 * t + 2) + blk(4 * t + 3), D[p]))
        o.extend(qrd(t))
    o.extend(E[3])
    o.extend(issue(99))
    o.extend(B[4]); o.extend(fr("Kf", 2)); o.extend(C[4]); o.extend(weave2(late, D[4])); o.extend(E[4])
    return o

def build_tail(it0, rest):
    left = [x.copy() for x in it0 + rest if x.aff == -1 and x.kind in VALU_KINDS and x.wr[0][1][0] in ("E", "P")]
    J = {t: [pv_mfma(-1, NSTEP - 1, t, dt) for dt in range(8)] + [sum_mfma(-1, NSTEP - 1, t)] for t in range(NT)}
    o = []
    def weave(ms, fill, per):
        for m in ms:
            o.append(m)
            k = 0
            while fill and k < per:
                o.append(fill.pop(0)); k += 1
        return fill
    lists = {}
    for t in range(NT):
        head, acc, per = epilogue(-1, t, pk=(t >= cfg.tail_pk))
        l = [head[0], head[1], head[2], acc]
        pw = None
        for vs, w in per:
            l += vs[:2]
            if pw is not None: l.append(pw)
            l += vs[2:]; pw = w
        l.append(pw)
        lists[t] = l
    dr = {b: o_drain(-1, b, b & 3) for b in range(20)}
    fill = weave(J[0] + J[1][:5], left, 1)
    o.extend(fill)
    stream = []
    for t in range(NT):
        l = lists[t]
        if t >= 1:
            bs = range(4 * t - 4, 4 * t)
            l = [dr[b][1] for b in bs] + [dr[bs[0]][0]] + l
            for n, b in enumerate(bs): l.insert(24 + 7 * n, dr[b][2])
        stream += l
    stream += fail_commit(-1)
    bs = range(16, 20)
    stream += [dr[b][1] for b in bs] + [dr[16][0]] + [dr[b][2] for b in bs]
    fill = weave(J[1][5:] + J[2] + J[3] + J[4], stream, 2)
    o.extend(fill)
    return o

def build():
    S, its = build_schedule()
    G = S.G
    it0 = S.linear(0, its[2])
    rest = S.linear(its[2], G)
    setup = setup_code()
    rot_p = rotate() + [I("s_waitcnt lgkmcnt(0)", "wait", note="full")]
    pro = build_prologue(it0)
    rot = rotate()
    tail = build_tail(it0, rest)
    lab = lambda n: [I(n + ":", "label")]
    br = lambda t: [I(t, "branch")]
    seg_rest = lab("L_it1") + rest
    seg_rot = rot + br("s_cbranch_scc1 L_tail")
    seg_it0 = it0 + br("s_branch L_it1")
    seg_tail = lab("L_tail") + tail
    seq = [(x, 0, True) for x in setup + rot_p + pro]
    for J in range(4):
        if J:
            seq += [(x, J, True) for x in seg_rot]
            seq += [(x, J, 0 <= J + x.aff) for x in seg_it0]
        seq += [(x, J, 0 <= J + x.aff) for x in seg_rest]
    seq += [(x, 4, True) for x in seg_rot + seg_tail]
    errs = check_dataflow(seq)
    paths = [[setup, rot_p, pro, seg_rest, seg_rot, seg_it0, seg_rest, seg_rot, seg_it0, seg_rest, seg_rot, seg_tail]]
    nw = insert_waits(paths)
    nn = insert_nops(paths)
    firsts = {id(S.sp[g + 1]) for g in its[:NSTEP]}
    if cfg.fine is not None:
        g0, st = cfg.fine
        fg = [g0 + st * k for k in range(20)]
        firsts = {id(S.sp[g]) for g in fg}
        sys.stderr.write("fine est: " + str([sum(max(16, 8 + S.load(g)) for g in range(a_, a_ + st)) for a_ in fg[:-1]]) + "\n")
    if cfg.prof:
        def stamp(seg, first):
            out = []; i = first
            for x in seg:
                out.append(x)
                if id(x) in firsts:
                    out.append(raw(f"s_memtime s[{60+2*i}:{61+2*i}]")); i += 1
            seg[:] = out
        stamp(seg_rest, 2 if cfg.fine is None else 0); stamp(seg_it0, 0)
        out = [raw("s_memtime s[60:61]")]; i = 1; fw = True
        for x in pro:
            if fw and x.kind == "wait":
                out.append(raw(f"s_memtime s[{60+2*i}:{61+2*i}]")); i += 1
                out.append(x)
                out.append(raw(f"s_memtime s[{60+2*i}:{61+2*i}]")); i += 1
                fw = False; continue
            out.append(x)
            if (x.kind == "lds_w128" and int(x.text.split(":")[-1]) // 1024 % 2 == 1) or x.kind == "barrier":
                out.append(raw(f"s_memtime s[{60+2*i}:{61+2*i}]")); i += 1
        pro[:] = out
        setup.insert(2, raw("s_memtime s[98:99]"))
        setup.insert(2, raw("s_load_dwordx2 s[4:5], s[0:1], 40"))
        rot_p += [raw("s_mov_b32 s6, 327155712"), raw("s_mov_b32 s7, 0x20000"), raw("s_mov_b32 s100, s98"),
                  raw(f"s_lshl_b32 s3, s2, 2"), raw(f"s_add_u32 s3, s3, s{S_W}"), raw("s_mul_i32 s3, s3, 2048")]
        def dump():
            o = [raw("s_memtime s[56:57]"), raw("s_memrealtime s[58:59]"), raw("s_waitcnt lgkmcnt(0)", "wait")]
            for i in range(20): o.append(raw(f"v_writelane_b32 v11, s{60+2*i}, {i}", "valu"))
            o += [raw("v_writelane_b32 v11, s56, 20", "valu"), raw("v_writelane_b32 v11, s58, 21", "valu"), raw("v_writelane_b32 v11, s100, 22", "valu"),
                  raw("v_lshlrev_b32_e32 v0, 2, v0", "valu"),
                  raw("buffer_store_dword v11, v0, s[4:7], s3 offen", "vstore"), raw("s_nop 1"), raw("v_lshrrev_b32_e32 v0, 2, v0", "valu"), raw("s_add_u32 s3, s3, 256")]
            return o
        seg_rot[0:0] = dump()
        pro += dump() + [raw('s_memtime s[60:61]'), raw('s_memtime s[62:63]')]
        seg_tail += [raw("s_waitcnt vmcnt(0)", "wait")] + dump()
    if cfg.dbgt:
        setup.insert(2, raw("s_memtime s[90:91]")); setup.insert(2, raw("s_memrealtime s[92:93]"))
        setup.insert(2, raw("s_load_dwordx2 s[4:5], s[0:1], 32"))
        rot_p += [raw("s_mov_b32 s6, 256"), raw("s_mov_b32 s7, 0x20000"), raw("s_mov_b32 s3, s2")]
        seg_tail += [raw(t) for t in """s_waitcnt vmcnt(0)
s_memtime s[94:95]
s_memrealtime s[96:97]
s_waitcnt lgkmcnt(0)
s_not_b32 s93, s92
v_mov_b32 v11, 0
v_mov_b32 v12, s93
v_mov_b32 v13, s96
s_mov_b64 exec, 1
buffer_atomic_umax v12, v11, s[4:7], 0 offen
buffer_atomic_umax v13, v11, s[4:7], 0 offen offset:4
s_sub_u32 s94, s94, s90
s_sub_u32 s96, s96, s92
s_and_b32 s3, s3, 7
s_min_u32 s3, s3, 6
s_lshl_b32 s3, s3, 2
v_mov_b32 v14, s94
v_mov_b32 v15, s96
buffer_atomic_umax v14, v11, s[4:7], s3 offen offset:8
buffer_atomic_umax v15, v11, s[4:7], s3 offen offset:36
s_waitcnt vmcnt(0)
s_mov_b64 exec, -1""".split("\n")]
    est = [estimate(S_) for S_ in (pro, seg_it0, seg_rest, seg_tail)]
    per = []; cur = []
    for x in seg_it0[1:] + seg_rest + seg_rot + seg_it0[:1]:
        if id(x) in firsts and len(cur) > 8: per.append(estimate(cur)); cur = []
        cur.append(x)
    per.append(estimate(cur))
    sys.stderr.write(f"per-iter est {per}\n")
    for i in range(NSTEP):
        l = [S.load(g) for g in range(its[i], (its + [G])[i + 1])]
        sys.stderr.write(f" it{i}: idle={sum(max(0,8-x) for x in l)} over={sum(max(0,x-8) for x in l)} " + "".join("0123456789abcdefghijklmnopqrstuvwxyz"[min(35,x//4)] for x in l) + "\n")
    sys.stderr.write(f"G={G} waits={nw} nops={nn} est pro/it0/rest/tail={est} job={est[1]+est[2]} mfma_floor={16*G}\n")
    return errs, [setup, rot_p, pro, seg_rest, seg_rot, seg_it0, seg_tail], S, its

HEADER = f"""; MHA forward, B=16 H=32 S=624 D=128 bf16.  Generated by gen/gen.py (hand written generator).
; @launch grid=(256,1,1) block=(256,1,1) lds={LDS_BYTES}
.amdgcn_target "amdgcn-amd-amdhsa--gfx950"
.text
.globl {NAME}_kernel
.p2align 8
.type {NAME}_kernel,@function
{NAME}_kernel:
"""
FOOTER = f"""L_end:
    s_endpgm
.section .rodata,"a"
.p2align 6
.amdhsa_kernel {NAME}_kernel
  .amdhsa_next_free_vgpr 512
  .amdhsa_next_free_sgpr 102
  .amdhsa_accum_offset 256
  .amdhsa_group_segment_fixed_size 0
  .amdhsa_kernarg_size 48
  .amdhsa_user_sgpr_count 2
  .amdhsa_user_sgpr_kernarg_segment_ptr 1
  .amdhsa_system_sgpr_workgroup_id_x 1
.end_amdhsa_kernel
"""

def emit(segs, extra=""):
    s = HEADER
    for seg in segs:
        for x in seg:
            if x.kind == "label": s += x.text + "\n"
            else: s += "    " + x.text + "\n"
    return s + extra + FOOTER

if __name__ == "__main__":
    cfg.c0 = 0
    cfg.lat = 5
    cfg.dsplit = 0
    cfg.accd = 1
    cfg.fine = None
    cfg.bar2 = False
    cfg.dma2 = 10
    cfg.bigsep = 3
    cfg.epi0 = 5
    cfg.epistep = 3
    cfg.rdwin = 8
    cfg.rdgap = 1
    cfg.zpre = 10
    cfg.zpost = 5
    cfg.maxwin = 16
    cfg.rdmargin = 10
    cfg.qslack = 10
    cfg.qldwin = 24
    cfg.cut = None
    cfg.pk_epi = True
    cfg.q0step = 40
    cfg.dlead = 20
    cfg.cpf = 2
    cfg.pro_first = 10
    cfg.pro_depth = 10
    cfg.tail_pk = 2
    for a in sys.argv[2:]:
        k, v = a.split("="); setattr(cfg, k, eval(v))
    if cfg.dsplit: COST["dma"] = 8; COST["vload"] = 8
    errs, segs, S, its = build()
    for e in errs[:30]: sys.stderr.write(e + "\n")
    sys.stderr.write(f"{len(errs)} dataflow errors\n")
    from slow import slow_path
    segs += [[I("L_slow:", "label")]] + slow_path(sys.modules["__main__"])
    open(sys.argv[1], "w").write(emit(segs))
```

```python
import sys, struct
from core import *

NAME = "standalone__mha_softmax__near_ridge"
HEAD = 624 * 256
TOTAL = 512 * HEAD
OOB = 0x40000000
import os
NS = int(os.environ.get("NS", "5"))
KRING = 0
VRING = NS * 8192
STAGE = 2 * NS * 8192
FLAGS = STAGE + 4 * 20480
LDS_BYTES = min(163840, FLAGS + 256)
NT = 5
NSTEP = 20
JOBSTRIDE = 128 * HEAD
CSCALE = 0.08838834764831845 * 1.4426950408889634
THRESH = float(2 ** 30)
def f32bits(x): return struct.unpack("<I", struct.pack("<f", x))[0]

class Cfg:
    pk_epi = False
    qflags = 'nt'
    kvflags = 'nt'
    oflags = 'nt'
    prof = False
    dbgt = False
cfg = Cfg()

V_TMP0 = 0
V_VOFF, V_KADDR, V_VA0, V_VA1, V_LIN, V_OW0, V_OW1, V_QADDR = 1, 2, 3, 4, 5, 6, 7, 8
V_U0, V_U1 = 9, 10
V_VOFF1 = 25
V_QS = [12, 16, 28, 32]
V_RCP = 20
V_CNT, V_FW, V_FR, V_FT = 22, 23, 24, 11
V_MX = 26
V_NEGM = 36
V_S = 56
V_O = 96
A_Q = 0
A_K = 80
A_V = 144
A_L = 208
A_ONE = 228
A_RB = 232
def Oreg(t, dt): return V_O + 32 * t + 4 * dt
def Sreg(t, kt): return V_S + 8 * t + 4 * kt
def Nreg(t): return V_NEGM + 4 * t
def Qreg(t, s): return A_Q + 16 * t + 4 * s
def Kreg(b, kt, s): return A_K + 32 * b + 16 * kt + 4 * s
def Vreg(b, dt): return A_V + 32 * b + 4 * dt
def Lreg(t): return A_L + 4 * t

S_Q, S_K, S_V, S_O = 8, 12, 16, 20
S_W = 24
S_JOB = 25
S_KVC, S_KVN, S_KV19 = 26, 27, 28
S_QN, S_QN4, S_QC, S_QC4, S_OP, S_OP4 = 29, 30, 31, 32, 33, 34
S_LW = 35
S_LST = 36
S_C = 37
S_MASK = 38
S_THR = 39
S_FACC = 40
S_FAIL = 42
S_PBIT, S_CBIT = 43, 44
S_T0, S_T1, S_T2, S_T3 = 45, 46, 47, 48
S_W19 = 49
S_T4OFF = 50
S_QREL = 51
S_H0 = 52
S_SPIN = 53
S_X0 = 54
S_CHK = 102 - 2

S_CHK = 58
def srd(b): return f"s[{b}:{b+3}]"

def salu(text, rd=(), wr=(), aff=0): return I(text, "salu", rd, wr, aff)
def valu(text, rd=(), wr=(), aff=0, kind="valu"): return I(text, kind, rd, wr, aff)

def mfma(dF, d, aF, a, bF, b, cF, c, dtag, atag, btag, ctag, k16=False, aff=0):
    n = 2 if k16 else 4
    op = "v_mfma_f32_16x16x16_bf16" if k16 else "v_mfma_f32_16x16x32_bf16"
    ctext = "0" if c is None else rs(cF, c, 4)
    A = R(aF, a, n); B = R(bF, b, n); C = [] if c is None else R(cF, c, 4)
    return I(f"{op} {rs(dF,d,4)}, {rs(aF,a,n)}, {rs(bF,b,n)}, {ctext}", "mfma",
             tagged(A, atag) + tagged(B, btag) + tagged(C, ctag), tagged(R(dF, d, 4), dtag), aff, ab=A + B, c=C)

def pv_mfma(j, i, t, dt):
    k16 = i == NSTEP - 1
    c = None if i == 0 else Oreg(t, dt)
    return mfma("v", Oreg(t, dt), "a", Vreg(i & 1, dt), "v", Sreg(t, 0), "v", c,
                ("O", j, i, t, dt), ("Vf", j, i, dt), ("P", j, i, t), ("O", j, i - 1, t, dt), k16, aff=j)
def sum_mfma(j, i, t):
    k16 = i == NSTEP - 1
    c = None if i == 0 else Lreg(t)
    return mfma("a", Lreg(t), "a", A_ONE, "v", Sreg(t, 0), "a", c,
                ("L", j, i, t), ("one", None), ("P", j, i, t), ("L", j, i - 1, t), k16, aff=j)
def qk_mfma(j, i, t, kt, s):
    if s == 0:
        c = None if i == 0 else Nreg(t); ctag = ("negm", j, t)
    else:
        c = Sreg(t, kt); ctag = ("S", j, i, t, kt, s - 1)
    return mfma("v", Sreg(t, kt), "a", Kreg(i & 1, kt, s), "a", Qreg(t, s), "v", c,
                ("S", j, i, t, kt, s), ("Kf", j, i, kt, s), ("Q", j, t, s), ctag, aff=j)

def k_read(j, i, kt, s):
    off = KRING + (i % NS) * 8192 + kt * 4096 + s * 256
    r = Kreg(i & 1, kt, s)
    return I(f"ds_read_b128 {rs('a',r,4)}, v{V_KADDR} offset:{off}", "lds_r",
             [(f"v{V_KADDR}", None), (f"KV{i%NS}", ("Kv", j, i))], tagged(R("a", r, 4), ("Kf", j, i, kt, s)), j)
def v_read(j, i, dt, half):
    off = (i % NS) * 8192 + half * 4096 + (dt >> 1) * 256
    r = Vreg(i & 1, dt) + 2 * half
    va = V_VA1 if dt & 1 else V_VA0
    wr = [(f"a{r+x}", ("Vf", j, i, dt, 2 * half + x)) for x in range(2)]
    return I(f"ds_read_b64_tr_b16 {rs('a',r,2)}, v{va} offset:{off}", "lds_r",
             [(f"v{va}", None), (f"VV{i%NS}", ("Vv", j, i))], wr, j)
def q_read(j, t, s):
    off = t * 4096 + s * 256
    r = Qreg(t, s)
    need = [(f"ST{t*4+rb}", ("Qs", j, t * 4 + rb)) for rb in range(4)]
    return I(f"ds_read_b128 {rs('a',r,4)}, v{V_QADDR} offset:{off}", "lds_r",
             [(f"v{V_QADDR}", None)] + need, tagged(R("a", r, 4), ("Q", j, t, s)), j)

def kv_dma(which, j, tile):
    st = S_T0 if which == "K" else S_T1
    sr = S_K if which == "K" else S_V
    ring = KRING if which == "K" else VRING
    out = []
    stag = ("so" + which, j, tile)
    if tile == NSTEP - 1:
        assert j == 0
        out.append(salu(f"s_mov_b32 s{st}, s{S_KV19}", [(f"s{S_KV19}", ("kv19", j))], [(f"s{st}", stag)], j))
    else:
        base = S_KVC if j == 0 else S_KVN
        out.append(salu(f"s_add_u32 s{st}, s{base}, {tile*8192}", [(f"s{base}", ("kvb", j))], [(f"s{st}", stag)], j))
    mtag = ("m0" + which, j, tile)
    out.append(salu(f"s_add_u32 m0, s{S_LW}, {ring + (tile % NS) * 8192}", [], [("m0", mtag)], j))
    for a in range(2):
        res = ("KR" if which == "K" else "VR") + f"{tile % NS}_{a}"
        free = ("KF" if which == "K" else "VF") + f"{tile % NS}"
        o = " offset:1024" if a else ""
        if cfg.kvflags: o += " " + cfg.kvflags
        out.append(I(f"buffer_load_dwordx4 v{V_VOFF1 if a else V_VOFF}, {srd(sr)}, s{st} offen{o} lds", "dma2" if a else "dma",
                     [("m0", mtag), (f"s{st}", stag), (f"v{V_VOFF}", None), (free, ("free" + which, j, tile))],
                     [(res, (which + "d", j, tile, a))], j))
    return out

def mkbarrier(pubK, pubV, doneK, doneV):
    need = []; wr = []
    for nm, tiles in (("K", pubK), ("V", pubV)):
        for x in tiles:
            need += [(f"{nm}R{x%NS}_{a}", (nm + "d", x // NSTEP, x % NSTEP, a)) for a in range(2)]
            wr.append((f"{nm}V{x%NS}", (nm + "v", x // NSTEP, x % NSTEP)))
    for x in doneK:
        for kt in range(2):
            for s in range(4): need += [(r, None) for r in R("a", Kreg(x & 1, kt, s), 4)]
        f = x + NS
        wr += [(f"KF{f%NS}", ("freeK", f // NSTEP, f % NSTEP)), (f"KV{x%NS}", ("dead", None))]
    for x in doneV:
        for dt in range(8): need += [(r, None) for r in R("a", Vreg(x & 1, dt), 4)]
        f = x + NS
        wr += [(f"VF{f%NS}", ("freeV", f // NSTEP, f % NSTEP)), (f"VV{x%NS}", ("dead", None))]
    return I("s_barrier", "barrier", [], wr, 0, need=need)

def barrier(i):
    if cfg.bar2:
        return mkbarrier([i + 1, i + 2], [i, i + 1], [i - 1, i], [i - 2, i - 1])
    return mkbarrier([i + 1], [i], [i], [i - 1])

def flag_ops(i):
    b = mkbarrier([i + 1], [i], [i], [i - 1])
    tg = lambda n, k: (n, k // NSTEP, k % NSTEP)
    inc = valu(f"v_add_u32_e32 v{V_CNT}, 1, v{V_CNT}", [(f"v{V_CNT}", tg("cnt", i - 1)), ("chkd", tg("chkd", i - 1))], [(f"v{V_CNT}", tg("cnt", i))])
    pub = I(f"ds_write_b32 v{V_FW}, v{V_CNT}", "lds_w32", [(f"v{V_CNT}", tg("cnt", i))], [("pub", tg("pub", i))], 0, need=b.need)
    rd = I(f"ds_read_b32 v{V_FT}, v{V_FR}", "lds_r", [("pub", tg("pub", i))], [(f"v{V_FT}", tg("ft", i))])
    cmp_ = valu(f"v_cmp_lt_u32_e32 vcc, v{V_FT}, v{V_CNT}", [(f"v{V_FT}", tg("ft", i)), (f"v{V_CNT}", tg("cnt", i))], [("vcc", tg("fc", i))])
    br = I(f"s_cbranch_vccnz L_rt{i % NSTEP}", "branch", [("vcc", tg("fc", i))], b.wr + [("chkd", tg("chkd", i))])
    return inc, pub, rd, cmp_, [br, I(f"L_bk{i % NSTEP}:", "salu0")]

def retry_stubs():
    o = []
    for i in range(NSTEP):
        o += [I(f"L_rt{i}:", "label"),
              raw(f"ds_read_b32 v{V_FT}, v{V_FR}", "lds_r"), raw(f"s_sub_u32 s{S_SPIN}, s{S_SPIN}, 1"), raw(f"s_cbranch_scc1 L_giveup{i}", "branch"),
              raw("s_waitcnt lgkmcnt(0)", "wait"), raw(f"v_cmp_lt_u32_e32 vcc, v{V_FT}, v{V_CNT}", "valu"), raw("s_nop 1", "nop"),
              raw(f"s_cbranch_vccnz L_rt{i}", "branch"), raw(f"s_branch L_bk{i}", "branch"),
              I(f"L_giveup{i}:", "label"), raw(f"s_mov_b32 s{S_SPIN}, 0"), raw("s_waitcnt lgkmcnt(0)", "wait"), raw(f"s_branch L_bk{i}", "branch")]
    return o

def blk_goff(b):
    return (b & 3) * 1024

def q_load(j, b, q):
    t = b >> 2
    stag = ("soQ", j, t)
    so = None
    if b & 3 == 0:
        if t == 4:
            bs = S_QN4 if j == 1 else S_QC4
            so = salu(f"s_mov_b32 s{S_T2}, s{bs}", [(f"s{bs}", ("qb4", j))], [(f"s{S_T2}", stag)], j)
        else:
            bs = S_QN if j == 1 else S_QC
            so = salu(f"s_add_u32 s{S_T2}, s{bs}, {t*4096}", [(f"s{bs}", ("qb", j))], [(f"s{S_T2}", stag)], j)
    go = blk_goff(b)
    o = f" offset:{go}" if go else ""
    nt = (" " + cfg.qflags) if cfg.qflags else ""
    ld = I(f"buffer_load_dwordx4 {rs('v',q,4)}, v{V_VOFF1 if b & 1 else V_VOFF}, {srd(S_Q)}, s{S_T2} offen{o}{nt}", "vload",
           [(f"s{S_T2}", stag), (f"v{V_VOFF}", None)], tagged(R("v", q, 4), ("qs0", j, b)), j)
    return so, ld

def q_scale(j, b, q):
    vs = []
    for x in range(4):
        r = q + x; u = V_U0 if x & 1 == 0 else V_U1
        vs.append(valu(f"v_lshlrev_b32_e32 v{u}, 16, v{r}", [(f"v{r}", ("qs0", j, b, x))], [(f"v{u}", ("u0", j, b, x))], j))
        vs.append(valu(f"v_and_b32_e32 v{r}, s{S_MASK}, v{r}", [(f"v{r}", ("qs0", j, b, x))], [(f"v{r}", ("qs1", j, b, x))], j))
        vs.append(valu(f"v_mul_f32_e32 v{u}, s{S_C}, v{u}", [(f"v{u}", ("u0", j, b, x))], [(f"v{u}", ("u1", j, b, x))], j))
        vs.append(valu(f"v_mul_f32_e32 v{r}, s{S_C}, v{r}", [(f"v{r}", ("qs1", j, b, x))], [(f"v{r}", ("qs2", j, b, x))], j))
        vs.append(valu(f"v_cvt_pk_bf16_f32 v{r}, v{u}, v{r}", [(f"v{u}", ("u1", j, b, x)), (f"v{r}", ("qs2", j, b, x))],
                       [(f"v{r}", ("qs3", j, b, x))], j))
    wr = I(f"ds_write_b128 v{V_LIN}, {rs('v',q,4)} offset:{b*1024}", "lds_w128",
           [(f"v{V_LIN}", None), (f"ST{b}", ("Ofree", j - 2, b))] + tagged(R("v", q, 4), ("qs3", j, b)), [(f"ST{b}", ("Qs", j, b))], j)
    return vs, wr

def o_drain(j, b, buf, reg=None):
    t = b >> 2
    r = A_RB + 4 * buf if reg is None else reg
    stag = ("soO", j, t)
    so = None
    if b & 3 == 0:
        if t == 4:
            so = salu(f"s_mov_b32 s{S_T3}, s{S_OP4}", [(f"s{S_OP4}", ("qb4", j))], [(f"s{S_T3}", stag)], j)
        else:
            so = salu(f"s_add_u32 s{S_T3}, s{S_OP}, {t*4096}", [(f"s{S_OP}", ("qb", j))], [(f"s{S_T3}", stag)], j)
    rdeps = [(f"SO{t}_{dt}", ("Ow", j, t, dt)) for dt in range(8)]
    rd = I(f"ds_read_b128 {rs('a',r,4)}, v{V_LIN} offset:{b*1024}", "lds_r",
           [(f"v{V_LIN}", None)] + rdeps, tagged(R("a", r, 4), ("rb", j, b)) + [(f"ST{b}", ("Ofree", j, b))], j)
    go = blk_goff(b)
    o = f" offset:{go}" if go else ""
    nt = (" " + cfg.oflags) if cfg.oflags else ""
    st = I(f"buffer_store_dwordx4 {rs('a',r,4)}, v{V_VOFF1 if b & 1 else V_VOFF}, {srd(S_O)}, s{S_T3} offen{o}{nt}", "vstore",
           tagged(R("a", r, 4), ("rb", j, b)) + [(f"s{S_T3}", stag), (f"v{V_VOFF}", None)], [], j, note=f"free{b}")
    return so, rd, st

def exp_ins(j, i, t, kt, r, srctag):
    reg = Sreg(t, kt) + r
    return valu(f"v_exp_f32_e32 v{reg}, v{reg}", [(f"v{reg}", srctag)], [(f"v{reg}", ("E", j, i, t, kt, r))], j, "trans")
def cvt_ins(j, i, t, p):
    kt = p >> 1; r = (p & 1) * 2
    a = Sreg(t, kt) + r; d = Sreg(t, 0) + p
    return valu(f"v_cvt_pk_bf16_f32 v{d}, v{a}, v{a+1}",
                [(f"v{a}", ("E", j, i, t, kt, r)), (f"v{a+1}", ("E", j, i, t, kt, r + 1))], [(f"v{d}", ("P", j, i, t, p))], j)

def max_chain(j, t):
    m0 = V_MX; m1 = m0 + 1
    s = Sreg(t, 0)
    def st(x): return (f"v{s+x}", ("S", j, 0, t, x >> 2, 3, x & 3))
    T = lambda n: ("mx", j, t, n)
    ch = [
        valu(f"v_max3_f32 v{m0}, v{s}, v{s+1}, v{s+2}", [st(0), st(1), st(2)], [(f"v{m0}", T(0))], j),
        valu(f"v_max3_f32 v{m0}, v{m0}, v{s+3}, v{s+4}", [(f"v{m0}", T(0)), st(3), st(4)], [(f"v{m0}", T(1))], j),
        valu(f"v_max3_f32 v{m0}, v{m0}, v{s+5}, v{s+6}", [(f"v{m0}", T(1)), st(5), st(6)], [(f"v{m0}", T(2))], j),
        valu(f"v_max_f32_e32 v{m1}, v{m0}, v{s+7}", [(f"v{m0}", T(2)), st(7)], [(f"v{m1}", T(3))], j),
        valu(f"v_max_f32_e32 v{m0}, v{m0}, v{s+7}", [(f"v{m0}", T(2)), st(7)], [(f"v{m0}", T(3))], j),
        valu(f"v_permlane32_swap_b32_e32 v{m0}, v{m1}", [(f"v{m0}", T(3)), (f"v{m1}", T(3))], [(f"v{m0}", T(4)), (f"v{m1}", T(5))], j, "perm"),
        valu(f"v_max_f32_e32 v{m0}, v{m0}, v{m1}", [(f"v{m0}", T(4)), (f"v{m1}", T(5))], [(f"v{m0}", T(6))], j),
        valu(f"v_mov_b32_e32 v{m1}, v{m0}", [(f"v{m0}", T(6))], [(f"v{m1}", T(6))], j),
        valu(f"v_permlane16_swap_b32_e32 v{m0}, v{m1}", [(f"v{m0}", T(6)), (f"v{m1}", T(6))], [(f"v{m0}", T(7)), (f"v{m1}", T(8))], j, "perm"),
    ]
    for x in range(4):
        n = Nreg(t) + x
        ch.append(valu(f"v_min_f32_e64 v{n}, -v{m0}, -v{m1}", [(f"v{m0}", T(7)), (f"v{m1}", T(8))], [(f"v{n}", ("negm", j, t, x))], j))
    adds = {}
    for x in range(8):
        n = Nreg(t)
        adds[(x >> 2, x & 3)] = valu(f"v_add_f32_e32 v{s+x}, v{n}, v{s+x}", [(f"v{n}", ("negm", j, t, 0)), st(x)],
                                     [(f"v{s+x}", ("Sm", j, t, x))], j)
    return ch, adds

def epilogue(j, t, pk=False):
    L = NSTEP - 1
    rc = V_RCP + (t & 1)
    head = [
        valu(f"v_accvgpr_read_b32 v{rc}, a{Lreg(t)}", [(f"a{Lreg(t)}", ("L", j, L, t, 0))], [(f"v{rc}", ("l", j, t))], j),
        valu(f"v_cmp_nge_f32_e64 s[{S_CHK}:{S_CHK+1}], s{S_THR}, v{rc}", [(f"v{rc}", ("l", j, t))], [(f"s{S_CHK}", ("chk", j, t))], j),
        valu(f"v_rcp_f32_e32 v{rc}, v{rc}", [(f"v{rc}", ("l", j, t))], [(f"v{rc}", ("rl", j, t))], j, "trans"),
    ]
    acc = salu(f"s_or_b64 s[{S_FACC}:{S_FACC+1}], s[{S_FACC}:{S_FACC+1}], s[{S_CHK}:{S_CHK+1}]", [(f"s{S_CHK}", ("chk", j, t)), ("facc", ("facc", j, t - 1))],
               [("facc", ("facc", j, t)), ("scc", None)], j)
    per = []
    for dt in range(8):
        o = Oreg(t, dt)
        vs = []
        if pk:
            rb = rc & ~1
            sel = "op_sel:[0,1] op_sel_hi:[1,1]" if rc & 1 else "op_sel_hi:[1,0]"
            for x in (0, 2):
                vs.append(valu(f"v_pk_mul_f32 v[{o+x}:{o+x+1}], v[{o+x}:{o+x+1}], v[{rb}:{rb+1}] {sel}",
                               [(f"v{rc}", ("rl", j, t))] + [(f"v{o+x+y}", ("O", j, L, t, dt, x + y)) for y in range(2)],
                               [(f"v{o+x+y}", ("On", j, t, dt, x + y)) for y in range(2)], j, "pk"))
        else:
          for x in range(4):
            vs.append(valu(f"v_mul_f32_e32 v{o+x}, v{rc}, v{o+x}", [(f"v{rc}", ("rl", j, t)), (f"v{o+x}", ("O", j, L, t, dt, x))],
                           [(f"v{o+x}", ("On", j, t, dt, x))], j))
        vs.append(valu(f"v_cvt_pk_bf16_f32 v{o}, v{o}, v{o+1}", [(f"v{o}", ("On", j, t, dt, 0)), (f"v{o+1}", ("On", j, t, dt, 1))],
                       [(f"v{o}", ("Ob", j, t, dt, 0))], j))
        vs.append(valu(f"v_cvt_pk_bf16_f32 v{o+1}, v{o+2}, v{o+3}", [(f"v{o+2}", ("On", j, t, dt, 2)), (f"v{o+3}", ("On", j, t, dt, 3))],
                       [(f"v{o+1}", ("Ob", j, t, dt, 1))], j))
        ow = V_OW1 if dt & 1 else V_OW0
        off = t * 4096 + (dt >> 1) * 256
        w = I(f"ds_write_b64 v{ow}, {rs('v',o,2)} offset:{off}", "lds_w64",
              [(f"v{ow}", None)] + tagged(R("v", o, 2), ("Ob", j, t, dt)),
              [(f"SO{t}_{dt}", ("Ow", j, t, dt))] + [(f"ST{t*4+rb}", ("Ob", j)) for rb in range(4)], j)
        per.append((vs, w))
    return head, acc, per

def fail_commit(j):
    return [
        salu(f"s_cmp_lg_u64 s[{S_FACC}:{S_FACC+1}], 0", [("facc", ("facc", j, 4))], [("scc", ("fc", j))], j),
        salu(f"s_cselect_b32 s{S_X0}, s{S_PBIT}, 0", [("scc", ("fc", j)), (f"s{S_PBIT}", ("bit", j))], [(f"s{S_X0}", None)], j),
        salu(f"s_or_b32 s{S_FAIL}, s{S_FAIL}, s{S_X0}", [], [("scc", None)], j),
        salu(f"s_mov_b64 s[{S_FACC}:{S_FACC+1}], 0", [], [("facc", ("facc", j + 1, -1))], j),
    ]

class Task:
    n = 0
    def __init__(self, ins, rel, dl, preds=(), zone=False):
        self.ins = ins if isinstance(ins, list) else [ins]
        self.kind = self.ins[0].kind
        self.cost = sum(COST[x.kind] for x in self.ins)
        self.rel = rel; self.dl = dl; self.preds = list(preds); self.succ = []
        self.zone = zone
        self.g = None; self.id = Task.n; Task.n += 1
        for p, d in self.preds: p.succ.append((self, d))

class Sched:
    def __init__(self):
        self.sp = []
        self.sc = []; self.mem = []; self.val = []
        self.it_start = []
        self.tasks = []
        self.bars = []
    def add(self, m):
        self.sp.append(m); self.sc.append([]); self.mem.append([]); self.val.append([])
        return len(self.sp) - 1
    @property
    def G(self): return len(self.sp)
    def load(self, g):
        g %= self.G
        nsc = sum(1 for x in self.sc[g] if x.kind != "label" or x.need)
        return sum(COST[x.kind] for x in self.mem[g] + self.val[g]) + 4 * max(0, nsc - 1)
    def put(self, ins, g):
        w = g // self.G
        if w: ins = ins.shifted(-w)
        gg = g % self.G
        ins.gap = gg
        if ins.kind == "salu0": ins.kind = "label"; self.sc[gg].append(ins)
        elif ins.kind in ("salu", "barrier", "branch"): self.sc[gg].append(ins)
        elif ins.kind in VALU_KINDS: self.val[gg].append(ins)
        else: self.mem[gg].append(ins)
        return g
    def task(self, ins, rel, dl, preds=(), zone=False):
        t = Task(ins, rel, dl, preds, zone); self.tasks.append(t); return t
    def forbidden(self, g):
        g %= self.G
        if not self.bars: return False
        for b in self.bars + [self.bars[0] + self.G]:
            if b - cfg.zpre <= g <= b + cfg.zpost: return True
        return False
    def run(self, cut):
        G = self.G
        for t in self.tasks:
            for p, d in t.preds: t.rel = max(t.rel, p.rel + d)
        for t in self.tasks:
            t.off = -((t.rel - cut) // G) * G
            t.r = t.rel + t.off; t.d = min(t.dl + t.off, cut + G - 1)
        for t in self.tasks:
            t.lp = [(p, d) for p, d in t.preds if p.off == t.off]
            for p, d in t.preds:
                if p.off != t.off:
                    assert p.off == t.off + G, (t.ins[0].text, p.ins[0].text)
                    p.d = min(p.d, t.r + G - d)
        for t in reversed(self.tasks):
            for s_, d in t.succ:
                if s_.off == t.off: t.d = min(t.d, s_.d - d)
            if t.zone:
                while self.forbidden(t.d): t.d -= 1
            assert t.d >= t.r, ("infeasible", t.ins[0].text, t.r, t.d)
        pend = sorted(self.tasks, key=lambda t: t.r)
        act = []; pi = 0
        lastz = [-99]
        def ready(t, g):
            if t.zone and (self.forbidden(g) or (g - lastz[0] < cfg.bigsep and t.d > g)): return False
            return all(p.g is not None and p.g + d <= g for p, d in t.lp)
        def commit(t, g):
            t.g = g; act.remove(t)
            if t.zone: lastz[0] = g
            for x in t.ins: self.put(x, g - t.off)
        for g in range(cut, cut + G):
            while pi < len(pend) and pend[pi].r <= g: act.append(pend[pi]); pi += 1
            key = lambda t: (t.d, t.id)
            isbar = (g % G) in self.bars
            while True:
                rs_ = sorted([t for t in act if t.kind in ("salu", "branch") and ready(t, g)], key=key)
                if rs_ and (not self.sc[g % G] or rs_[0].d <= g): commit(rs_[0], g)
                else: break
            while not isbar:
                free = 8 - self.load(g)
                if free <= 0: break
                rd = sorted([t for t in act if t.kind not in ("salu", "pk", "branch") and ready(t, g)], key=key)
                if free == 8:
                    if not rd: break
                    t = rd[0]
                    if t.cost == 4:
                        partner = any(u.cost == 4 for u in rd[1:]) or any(s_.cost == 4 and d == 0 and s_.kind != "salu" for s_, d in t.succ)
                        full = [u for u in rd if u.cost >= 8]
                        if not partner and full and t.d > g + 2: t = full[0]
                    commit(t, g)
                else:
                    rd = [t for t in rd if t.cost <= free]
                    if not rd: break
                    commit(rd[0], g)
            while True:
                f = sorted([t for t in act if ready(t, g) and (t.d <= g or (t.kind == "pk" and not isbar))], key=key)
                if not f: break
                commit(f[0], g)
            late = [t for t in act if t.d <= g]
            assert not late, ("missed", g, late[0].ins[0].text, late[0].d)
        assert not act and pi == len(pend)
    def linear(self, g0, g1):
        out = []
        for g in range(g0, g1):
            out.append(self.sp[g]); out += self.sc[g]; out += self.mem[g]; out += self.val[g]
        return out

def build_schedule():
    S = Sched()
    pv0 = {}; pvend = {}; qkend = {}; qk0 = {}
    for i in range(NSTEP):
        S.it_start.append(S.G)
        for t in range(NT):
            j, st = (-1, NSTEP - 1) if i == 0 else (0, i - 1)
            for dt in range(8):
                g = S.add(pv_mfma(j, st, t, dt))
                if dt == 0: pv0[(i, t)] = g
            pvend[(i, t)] = S.add(sum_mfma(j, st, t))
            for kt in range(1 if i == NSTEP - 1 else 2):
                for s in range(4):
                    g = S.add(qk_mfma(0, i, t, kt, s))
                    if kt == 0 and s == 0: qk0[(i, t)] = g
                qkend[(i, t, kt)] = g
    G = S.G
    its = S.it_start + [G]
    for t in range(NT):
        for d in range(2):
            pv0[(NSTEP + d, t)] = pv0[(d, t)] + G; pvend[(NSTEP + d, t)] = pvend[(d, t)] + G; qk0[(NSTEP + d, t)] = qk0[(d, t)] + G
    LAT = cfg.lat
    T = S.task
    for i in range(cfg.barpar if cfg.bar2 else 0, NSTEP, 2 if cfg.bar2 else 1):
        if not cfg.flags: S.put(barrier(i), its[i]); S.bars.append(its[i])
    if cfg.flags:
        for i in range(1, NSTEP + 1):
            inc, pub, rd, cmp_, br = flag_ops(i)
            e = its[i]
            a_ = T(inc, its[i - 1] + cfg.fchk + 4, e - cfg.fpub - 1)
            T(pub, e - cfg.fpub - 1, e - cfg.fpub, [(a_, 1)], zone=True)
            b_ = T(rd, e + cfg.frd, e + cfg.frd + 1)
            c_ = T(cmp_, e + cfg.fchk - 3, e + cfg.fchk - 2, [(b_, 7)])
            T(br, e + cfg.fchk, e + cfg.fchk, [(c_, 2)])
    for i in range(NSTEP):
        w = mkbarrier([], [], [i], [i - 1])
        S.sc[(its[i] - 1) % G].append(I("; frags ready", "label", [], [], 0, need=w.need))
    AH = NS - 1 if cfg.bar2 else NS
    mprev = None
    for i in range(NSTEP):
        for t in range(NT):
            nk = 1 if i == NSTEP - 1 else 2
            hi = pv0[(i + 1, t)] - 2
            if i == 0:
                ch, adds = max_chain(0, t)
                p = mprev
                lo = qkend[(0, t, 1)] + LAT
                negs = []
                for n, x in enumerate(ch):
                    isneg = n >= len(ch) - 4
                    q = T(x, lo, lo + cfg.maxwin, [] if p is None else [(p, 1 if x.kind == "perm" else 0)])
                    p = q
                    if isneg: negs.append(q)
                mprev = p
            pc = None
            for kt in range(nk):
                es = []
                for r in range(4):
                    if i == 0:
                        a_ = T(adds[(kt, r)], lo, hi, [(negs[0], 0)])
                        es.append(T(exp_ins(0, 0, t, kt, r, ("Sm", 0, t, 4 * kt + r)), lo, hi, [(a_, 0)]))
                    else:
                        es.append(T(exp_ins(0, i, t, kt, r, ("S", 0, i, t, kt, 3, r)), qkend[(i, t, kt)] + LAT, hi))
                    if r & 1:
                        pc = T(cvt_ins(0, i, t, 2 * kt + (r >> 1)), 0, hi, [(es[r - 1], 1), (es[r], 1)] + ([(pc, 0)] if pc else []))
    pd = None
    for i in range(NSTEP):
        lo = its[i] + 1; n = its[i + 1] - its[i]
        hi = its[i + 1] - cfg.rdmargin
        if cfg.flags: lo = its[i] + cfg.fchk + 1; hi = its[i + 1] - cfg.fpub - 9
        kj, kti = (0, i + 1) if i + 1 < NSTEP else (1, 0)
        vr = [v_read(0, i, dt, half) for dt in range(8) for half in range(1 if i == NSTEP - 1 else 2)]
        kr = [k_read(kj, kti, kt, s) for kt in range(1 if kti == NSTEP - 1 else 2) for s in range(4)]
        rds = weave2(vr, kr)
        pr_ = None
        for k, x in enumerate(rds):
            r = lo + int(k * (hi - lo - cfg.rdwin) / len(rds))
            pr_ = T(x, r, min(hi, r + cfg.rdwin), [(pr_, cfg.rdgap)] if pr_ else [])
        for x, (which, tile) in enumerate((("K", i + AH), ("V", i - 1 + AH))):
            so, m0, d0, d1 = kv_dma(which, tile // NSTEP, tile % NSTEP)
            r = lo + x * (cfg.dma2 if (cfg.flags or cfg.bar2 and i % 2 == cfg.barpar) else n // 3)
            a_ = T(so, lo, hi)
            b_ = T(m0, r, hi, [(pd, 1)] if x else [])
            if cfg.dsplit:
                d1.kind = "dma"
                pd = T(d0, r, r + cfg.zpost + 8, [(a_, 1), (b_, 1)], zone=True)
                pd = T(d1, r, r + cfg.zpost + 16, [(pd, cfg.dsplit)], zone=True)
            else:
                pd = T([d0, d1], r, r + cfg.zpost + 8, [(a_, 1), (b_, 1)], zone=True)
    epi_w = {}
    pacc = None; qr = {}
    c0 = its[2] + cfg.c0
    step = (G - cfg.zpre - 2 - c0) / 20
    NQ = len(V_QS)
    wt = {}; lt = {}; drt = {}
    def mkload(b, rel, preds):
        so, ld = q_load(1, b, V_QS[b % NQ])
        if so is not None:
            preds = preds + [(T(so, max(1, rel - 4), rel + 30, [(lt[b - 1], 1)] if b else []), 1)]
        if b: preds = preds + [(lt[b - 1], 0)]
        lt[b] = T(ld, rel, rel + cfg.qldwin, preds, zone=True)
    for b in range(NQ): mkload(b, 6 + b * cfg.q0step, [])
    epi = {t: epilogue(0, t, pk=cfg.pk_epi) for t in range(NT)}
    pst = None; pv_ = None
    for b in range(20):
        lo = c0 + int(b * step); hi = c0 + int((b + 1) * step) - 1
        so, rd, st = o_drain(-1, b, b & 3)
        drt[b] = T(rd, lo - cfg.dlead if b else lo, hi - 1)
        pr = [(drt[b], 9)]
        if so is not None: pr.append((T(so, lo - cfg.dlead if b else lo, hi + 30, [(pst, 1)] if pst else []), 1))
        if pst: pr.append((pst, 0))
        pst = T(st, 0, min(hi + 30, G - 1), pr, zone=True)
        vs, wr = q_scale(1, b, V_QS[b % NQ])
        p = pv_
        for v in vs:
            p = T(v, lo, hi + cfg.qslack, [(p, 0)] if p else [])
        pv_ = p
        wt[b] = T(wr, lo, min(hi + cfg.qslack, G - 1), [(p, 1), (drt[b], 0)], zone=True)
        if b + NQ < 20: mkload(b + NQ, hi + cfg.qslack + 1, [(wt[b], 1)])
    for t in range(NT):
        for s_ in range(4):
            qr[(t, s_)] = T(q_read(1, t, s_), qkend[(NSTEP - 1, t, 0)] + 1, qk0[(NSTEP, t)] - 12, [(wt[4 * t + 3], 0)] + ([(qr[(t, s_ - 1)], 2)] if s_ else []))
    wslot = 0
    for t in range(NT):
        head, acc, per = epi[t]
        lo = pvend[(NSTEP, t)] + LAT
        hi = pv0[(NSTEP + 1, t)] - 2
        h0 = T(head[0], lo, lo + 2)
        h1 = T(head[1], lo, lo + 2, [(h0, 0)] + ([(pacc, 0)] if pacc else []))
        pacc = T(acc, lo, lo + 12, [(h1, cfg.accd)])
        h2 = T(head[2], lo, lo + 2, [(h1, 0)])
        if cfg.pk_epi:
            burst = [v for vs, w in per for v in vs[:2]] + per[0][0][2:] + per[1][0][2:]
            bt = T(burst, lo, hi, [(h2, 1)])
        for dt, (vs, w) in enumerate(per):
            wslot = max(wslot + cfg.epistep, lo + cfg.epi0)
            while S.forbidden(wslot): wslot += 1
            h = min(hi + dt, wslot)
            if cfg.pk_epi:
                if dt < 2: p = bt
                else:
                    p = T(vs[2], lo, h, [(bt, 0)]); p = T(vs[3], lo, h, [(p, 0)])
            else:
                ms = [T(v, lo, h, [(h2, 1)]) for v in vs[:4]]
                p = T(vs[4], lo, h, [(ms[0], 0), (ms[1], 0)])
                p = T(vs[5], lo, h, [(ms[2], 0), (ms[3], 0), (p, 0)])
            T(w, h - 1, h, [(p, 1)] + [(qr[(t, s_)], 0) for s_ in range(4)], zone=True)
        if t == NT - 1:
            T(fail_commit(0), lo, hi, [(pacc, 1)])
    if cfg.tpf:
        g0 = its[cfg.tpf] + 20
        a_ = T([salu(f"s_getpc_b64 s[{S_X0}:{S_X0+1}]", [], [(f"s{S_X0}", ("pc", 0))]), I("L_pc2:", "salu0")], g0, g0 + 4)
        b_ = T(valu("v_lshlrev_b32_e32 v26, 6, v0", [], [("v26", ("tp", 0, 0))]), g0, g0 + 8)
        c_ = T(valu("v_add_u32_e32 v26, L_tail-L_pc2, v26", [("v26", ("tp", 0, 0))], [("v26", ("tp", 0, 1))]), g0, g0 + 8, [(b_, 0)])
        T(I(f"global_load_dword v26, v26, s[{S_X0}:{S_X0+1}]", "vload", [("v26", ("tp", 0, 1)), (f"s{S_X0}", ("pc", 0))], [("v26", None)]), g0, g0 + 16, [(a_, 1), (c_, 1)], zone=True)
    cutb = cfg.cutb
    S.run(c0 + int(cutb * step) if cfg.cut is None else cfg.cut)
    S.qkend = qkend; S.qk0 = qk0; S.pv0 = pv0
    sys.stderr.write(f"Q loads {[lt[b].g - lt[b].off for b in range(20)]} writes {[wt[b].g - wt[b].off for b in range(20)]}\n")
    return S, its

def raw(text, kind="salu", rd=(), wr=()): return I(text, kind, rd, wr)

def setup_code():
    o = []
    A = lambda t, k="salu", rd=(), wr=(): o.append(raw(t, k, [(r, None) for r in rd], [(r, None) for r in wr]))
    A("s_cmp_ge_u32 s2, 256"); A("s_cbranch_scc1 L_end", "branch")
    for b, off in ((S_K, 8), (S_Q, 0), (S_V, 16), (S_O, 24)):
        A(f"s_load_dwordx2 s[{b}:{b+1}], s[0:1], {off}")
    o.extend(code_prefetch())
    V = lambda t, rd=(), wr=(): A(t, "valu", rd, wr)
    V("v_lshrrev_b32_e32 v9, 6, v0", ["v0"], ["v9"])
    V("v_and_b32_e32 v0, 63, v0", ["v0"], ["v0"])
    V(f"v_readfirstlane_b32 s{S_W}, v9", ["v9"], [f"s{S_W}"])
    V("v_bfe_u32 v9, v0, 2, 2", ["v0"], ["v9"])
    V("v_bfe_u32 v10, v0, 3, 1", ["v0"], ["v10"])
    V("v_and_b32_e32 v11, 3, v0", ["v0"], ["v11"])
    V("v_xor_b32_e32 v10, v10, v11", ["v10", "v11"], ["v10"])
    V("v_lshlrev_b32_e32 v10, 4, v10", ["v10"], ["v10"])
    V("v_lshl_add_u32 v10, v9, 8, v10", ["v9", "v10"], ["v10"])
    V("v_lshrrev_b32_e32 v11, 4, v0", ["v0"], ["v11"])
    V(f"v_lshl_add_u32 v{V_VOFF}, v11, 6, v10", ["v11", "v10"], [f"v{V_VOFF}"])
    V(f"v_xor_b32_e32 v{V_VOFF1}, 32, v{V_VOFF}", [f"v{V_VOFF}"], [f"v{V_VOFF1}"])
    A(f"s_and_b32 s{S_X0}, s2, 7")
    A(f"s_lshr_b32 s{S_X0+1}, s2, 4")
    A(f"s_lshl_b32 s{S_X0}, s{S_X0}, 4")
    A(f"s_add_u32 s{S_X0}, s{S_X0}, s{S_X0+1}")
    A(f"s_mul_i32 s{S_H0}, s{S_X0}, {HEAD}")
    A(f"s_bfe_u32 s{S_X0}, s2, 0x10003")
    A(f"s_lshl_b32 s{S_LW}, s{S_W}, 11", rd=[f"s{S_W}"])
    A(f"s_mul_i32 s{S_LST}, s{S_W}, 20480")
    A(f"s_mul_i32 s{S_QREL}, s{S_X0}, {320*256}")
    A(f"s_add_u32 s{S_QREL}, s{S_QREL}, s{S_LST}")
    A(f"s_add_u32 s{S_LST}, s{S_LST}, {STAGE}")
    A(f"s_cmp_ge_u32 s{S_W}, 2")
    A(f"s_cselect_b32 s{S_W19}, {OOB}, {19*8192}")
    A(f"s_lshl_b32 s{S_X0}, s{S_X0}, 2")
    A(f"s_add_u32 s{S_X0}, s{S_X0}, s{S_W}")
    A(f"s_cmp_eq_u32 s{S_X0}, 7")
    A(f"s_cselect_b32 s{S_T4OFF}, {OOB}, {4*4096}")
    A(f"s_mov_b32 s{S_C}, {f32bits(CSCALE):#x}")
    A(f"s_mov_b32 s{S_MASK}, 0xffff0000")
    A(f"s_mov_b32 s{S_THR}, {f32bits(THRESH):#x}")
    A(f"s_mov_b64 s[{S_FACC}:{S_FACC+1}], 0")
    A(f"s_mov_b32 s{S_FAIL}, 0")
    A(f"s_mov_b32 s{S_JOB}, 4")
    A(f"s_mov_b32 s{S_CBIT}, 0")
    A(f"s_add_u32 s{S_KVN}, s{S_H0}, s{S_LW}")
    A(f"s_add_u32 s{S_QN}, s{S_H0}, s{S_QREL}")
    A(f"s_add_u32 s{S_QN4}, s{S_QN}, s{S_T4OFF}")
    A(f"s_mov_b32 s{S_QC}, {OOB}")
    A(f"s_mov_b32 s{S_QC4}, {OOB}")
    for b in (S_Q, S_K, S_V, S_O):
        A(f"s_mov_b32 s{b+2}, {TOTAL}"); A(f"s_mov_b32 s{b+3}, 0x20000")
    return o

def setup_addrs():
    o = []
    V = lambda t, rd=(), wr=(): o.append(raw(t, "valu", [(r, None) for r in rd], [(r, None) for r in wr]))
    V("v_bfe_u32 v9, v0, 2, 2", ["v0"], ["v9"])
    V("v_lshlrev_b32_e32 v9, 10, v9", ["v9"], ["v9"])
    V("v_and_b32_e32 v10, 3, v0", ["v0"], ["v10"])
    V("v_lshl_add_u32 v9, v10, 6, v9", ["v9", "v10"], ["v9"])
    V("v_bfe_u32 v10, v0, 1, 2", ["v0"], ["v10"])
    V("v_lshrrev_b32_e32 v11, 4, v0", ["v0"], ["v11"])
    V("v_xor_b32_e32 v12, v10, v11", ["v10", "v11"], ["v12"])
    V(f"v_lshl_add_u32 v{V_KADDR}, v12, 4, v9", ["v12", "v9"], [f"v{V_KADDR}"])
    V(f"v_add_u32_e32 v{V_QADDR}, s{S_LST}, v{V_KADDR}", [f"v{V_KADDR}"], [f"v{V_QADDR}"])
    V("v_lshrrev_b32_e32 v12, 5, v0", ["v0"], ["v12"])
    V("v_xor_b32_e32 v12, v10, v12", ["v10", "v12"], ["v12"])
    V("v_lshl_add_u32 v12, v12, 4, v9", ["v12", "v9"], ["v12"])
    V("v_bfe_u32 v13, v0, 4, 1", ["v0"], ["v13"])
    V("v_lshl_add_u32 v12, v13, 3, v12", ["v13", "v12"], ["v12"])
    V(f"v_add_u32_e32 v{V_OW0}, s{S_LST}, v12", ["v12"], [f"v{V_OW0}"])
    V(f"v_xor_b32_e32 v{V_OW1}, 32, v{V_OW0}", [f"v{V_OW0}"], [f"v{V_OW1}"])
    V("v_lshrrev_b32_e32 v9, 4, v0", ["v0"], ["v9"])
    V("v_lshlrev_b32_e32 v9, 10, v9", ["v9"], ["v9"])
    V("v_bfe_u32 v10, v0, 2, 2", ["v0"], ["v10"])
    V("v_lshl_add_u32 v9, v10, 6, v9", ["v9", "v10"], ["v9"])
    V("v_bfe_u32 v10, v0, 3, 2", ["v0"], ["v10"])
    V("v_bfe_u32 v11, v0, 1, 1", ["v0"], ["v11"])
    V("v_xor_b32_e32 v10, v10, v11", ["v10", "v11"], ["v10"])
    V("v_lshl_add_u32 v9, v10, 4, v9", ["v9", "v10"], ["v9"])
    V("v_and_b32_e32 v10, 1, v0", ["v0"], ["v10"])
    V("v_lshl_add_u32 v9, v10, 3, v9", ["v9", "v10"], ["v9"])
    V(f"v_add_u32_e32 v{V_VA0}, {VRING}, v9", ["v9"], [f"v{V_VA0}"])
    V(f"v_xor_b32_e32 v{V_VA1}, 32, v{V_VA0}", [f"v{V_VA0}"], [f"v{V_VA1}"])
    V("v_lshlrev_b32_e32 v9, 4, v0", ["v0"], ["v9"])
    V(f"v_add_u32_e32 v{V_LIN}, s{S_LST}, v9", ["v9"], [f"v{V_LIN}"])
    if cfg.flags:
        V("v_and_b32_e32 v9, 3, v0", ["v0"], ["v9"])
        V("v_lshlrev_b32_e32 v9, 2, v9", ["v9"], ["v9"])
        V(f"v_add_u32_e32 v{V_FR}, {FLAGS}, v9", ["v9"], [f"v{V_FR}"])
        V(f"v_mov_b32_e32 v9, s{S_W}", [], ["v9"])
        V("v_lshlrev_b32_e32 v9, 2, v9", ["v9"], ["v9"])
        V(f"v_add_u32_e32 v{V_FW}, {FLAGS}, v9", ["v9"], [f"v{V_FW}"])
        o.append(I(f"v_mov_b32_e32 v{V_CNT}, 1", "valu", [], [(f"v{V_CNT}", ("cnt", 0, 1)), ("chkd", ("chkd", 0, 1))]))
        o.append(raw(f"ds_write_b32 v{V_FW}, v{V_CNT}", "lds_w32", [(f"v{V_FW}", None), (f"v{V_CNT}", None)]))
        o.append(raw(f"s_mov_b32 s{S_SPIN}, 0x100000"))
    V("v_mov_b32_e32 v9, 0x3f803f80", [], ["v9"])
    for x in range(4):
        o.append(I(f"v_accvgpr_write_b32 a{A_ONE+x}, v9", "valu", [("v9", None)], [(f"a{A_ONE+x}", ("one", None, x))]))
    return o

def rotate():
    o = []
    A = lambda t, rd=(), wr=(): o.append(salu(t, rd, wr))
    A(f"s_mov_b32 s{S_OP}, s{S_QC}", [], [(f"s{S_OP}", ("qb", -1))])
    A(f"s_mov_b32 s{S_OP4}, s{S_QC4}", [], [(f"s{S_OP4}", ("qb4", -1))])
    A(f"s_mov_b32 s{S_QC}, s{S_QN}", [], [(f"s{S_QC}", ("qb", 0))]); A(f"s_mov_b32 s{S_QC4}, s{S_QN4}", [], [(f"s{S_QC4}", ("qb4", 0))])
    A(f"s_mov_b32 s{S_KVC}, s{S_KVN}", [], [(f"s{S_KVC}", ("kvb", 0))])
    A(f"s_add_u32 s{S_KV19}, s{S_KVN}, s{S_W19}", [], [(f"s{S_KV19}", ("kv19", 0))])
    A(f"s_mov_b32 s{S_PBIT}, s{S_CBIT}", [], [(f"s{S_PBIT}", ("bit", -1))])
    A(f"s_lshl_b32 s{S_CBIT}, s{S_CBIT}, 1")
    A(f"s_max_u32 s{S_CBIT}, s{S_CBIT}, 1")
    A(f"s_cmp_gt_u32 s{S_JOB}, 1")
    A(f"s_cselect_b32 s{S_X0}, {JOBSTRIDE}, {OOB}")
    A(f"s_add_u32 s{S_KVN}, s{S_KVN}, s{S_X0}", [], [(f"s{S_KVN}", ("kvb", 1))])
    A(f"s_add_u32 s{S_QN}, s{S_QN}, s{S_X0}", [], [(f"s{S_QN}", ("qb", 1))])
    A(f"s_add_u32 s{S_QN4}, s{S_QN4}, s{S_X0}", [], [(f"s{S_QN4}", ("qb4", 1))])
    A(f"s_sub_u32 s{S_JOB}, s{S_JOB}, 1")
    return o

def tile_of(x):
    tg = x.wr[0][1]
    if tg[0] in ("S", "E", "P", "O", "L"): return (tg[2], tg[3])
    if tg[0] in ("mx", "negm", "Sm"): return (0, tg[2])
    return None

def code_prefetch():
    o = []
    A = lambda t, k="salu", rd=(), wr=(): o.append(raw(t, k, [(r, None) for r in rd], [(r, None) for r in wr]))
    if not cfg.cpf: return o
    A(f"s_getpc_b64 s[{S_X0+12}:{S_X0+13}]")
    A("L_pc:", "label")
    if cfg.cpf == 1:
        A(f"s_lshr_b32 s{S_X0}, s2, 3"); A(f"s_lshl_b32 s{S_X0}, s{S_X0}, 11")
        A("v_and_b32_e32 v26, 15, v0", "valu", ["v0"], ["v26"])
        A(f"v_lshl_add_u32 v26, v26, 7, s{S_X0}", "valu", ["v26"], ["v26"])
        A(f"v_min_u32_e32 v27, L_slow-L_pc, v26", "valu", ["v26"], ["v27"])
        A(f"global_load_dword v27, v27, s[{S_X0+12}:{S_X0+13}]", "vload", ["v27"], ["v27"])
        return o
    A("v_lshlrev_b32_e32 v26, 7, v0", "valu", ["v0"], ["v26"])
    for k in range(cfg.cpf):
        A(f"v_min_u32_e32 v27, L_slow-L_pc, v26", "valu", ["v26"], ["v27"])
        A(f"global_load_dword v27, v27, s[{S_X0+12}:{S_X0+13}]", "vload", ["v27"], ["v27"])
        if k + 1 < cfg.cpf: A("v_add_u32_e32 v26, 32768, v26", "valu", ["v26"], ["v26"])
    return o

def weave2(vs, ms):
    out = []; n = len(vs); k = len(ms); mi = 0
    for i, v in enumerate(vs):
        while mi < k and mi * n <= i * k: out.append(ms[mi]); mi += 1
        out.append(v)
    return out + ms[mi:]

def build_prologue(it01):
    o = []
    init = [("facc", ("facc", 0, -1))]
    for x in range(NS):
        init += [(f"KF{x}", ("freeK", 0, x)), (f"VF{x}", ("freeV", 0, x))]
    for b in range(20): init.append((f"ST{b}", ("Ofree", -2, b)))
    o.append(I("; init state", "label", [], init))
    land = lambda b: Oreg(b >> 2, b & 3)
    pend = []
    def kv(which, tile): pend.append(kv_dma(which, 0, tile))
    def qt(t):
        for b in range(4 * t, 4 * t + 4): pend.append([x for x in q_load(0, b, land(b)) if x is not None])
    kv("K", 0); qt(0); qt(1); kv("K", 1); kv("V", 0); qt(2); qt(3)
    if cfg.pord == 0: kv("K", 2); kv("V", 1); qt(4)
    else: qt(4); kv("K", 2); kv("V", 1)
    for x in range(3, NS):
        kv("K", x); kv("V", x - 1)
    order = [x for g in pend for x in g if x.kind in VMEM_KINDS]
    qidx = {x.wr[0][1][2]: n for n, x in enumerate(order) if x.kind == "vload"}
    cnt = [0]
    def issue(upto):
        r = []
        while pend and cnt[0] < upto:
            g = pend.pop(0); r.extend(g); cnt[0] += sum(1 for x in g if x.kind in VMEM_KINDS)
        return r
    o.extend(issue(cfg.pro_first))
    o.extend(setup_addrs())
    isflag = lambda x: x.kind == "branch" or (x.wr and x.wr[0][1] is not None and x.wr[0][1][0] in ("cnt", "pub", "ft", "fc"))
    mine = [x.copy() for x in it01 if x.aff >= 0 and x.kind != "label" and not isflag(x)]
    isv = lambda x: x.kind in VALU_KINDS and x.aff == 0
    C = {t: [x for x in mine if isv(x) and tile_of(x) == (0, t)] for t in range(NT)}
    E = {t: [x for x in mine if isv(x) and tile_of(x) == (1, t)] for t in range(NT)}
    B = {t: [x for x in mine if x.kind == "mfma" and x.wr[0][1][0] == "S" and tile_of(x) == (0, t)] for t in range(NT)}
    D = {t: [x for x in mine if x.kind == "mfma" and x not in B[t] and tile_of(x)[1] == t] for t in range(NT)}
    bars = [x for x in mine if x.kind == "barrier"]
    fr = lambda nm, i: [x for x in mine if x.kind == "lds_r" and x.wr[0][1][0] == nm and x.wr[0][1][2] == i]
    late = [x for x in mine if x.kind in VMEM_KINDS or x.kind == "salu"]
    nlate = len(late)
    if cfg.bar2:
        def isearly(x):
            tg = x.wr[0][1]
            return tg is not None and tg[0] in ("soK", "m0K", "Kd", "soV", "m0V", "Vd") and tg[2] == (NS - 1 if "K" in tg[0] else NS - 2)
        late = [x for x in late if not isearly(x)]
    acc = sum(len(d[t]) for d in (B, C, D, E) for t in range(NT)) + len(bars) + nlate + sum(len(fr(*z)) for z in (("Kf", 1), ("Kf", 2), ("Vf", 0), ("Vf", 1)))
    nqr = len([x for x in mine if x.kind == "lds_r" and x.wr[0][1][0] == "Q"])
    assert acc + nqr == len(mine), (acc, nqr, len(mine))
    bars = [mkbarrier([1], [0], [0], []), mkbarrier([2], [1], [1], [0])]
    def blk(b):
        vs, wr = q_scale(0, b, land(b))
        return vs[:1] + issue(qidx[b] + 1 + cfg.pro_depth) + vs[1:] + [wr]
    qrd = lambda t: [q_read(0, t, s_) for s_ in range(4)]
    def weave3(vs, ms):
        out = weave2(vs, ms)
        i = 1
        while i < len(out):
            x = out[i]
            if (x.kind in LDS_KINDS or x.kind in VMEM_KINDS) and out[i - 1].kind in VALU_KINDS:
                for k in range(i + 1, min(len(out), i + 5)):
                    if out[k].kind == "mfma":
                        out.insert(i, out.pop(k)); break
            i += 1
        return out
    A_ = lambda t: [x for b in range(4 * t, 4 * t + 4) for x in blk(b)]
    bk = mkbarrier([0], [], [], [])
    o.extend(A_(0)); o.extend(qrd(0))
    x = blk(4) + blk(5)
    o.extend(x[:-1]); o.append(bk)
    o.extend([k_read(0, 0, kt, s_) for kt in range(2) for s_ in range(4)])
    o.append(x[-1])
    o.extend(blk(6)); o.extend(weave3(blk(7), B[0])); o.extend(qrd(1))
    o.extend(C[0])
    o.append(bars[0])
    fr0 = weave2(fr("Vf", 0), fr("Kf", 1))
    o.extend(weave2(fr0, B[1]))
    o.extend(blk(8)); o.extend(weave3(blk(9) + blk(10) + blk(11), D[0])); o.extend(qrd(2)); o.extend(C[1])
    o.extend(weave3(A_(3), B[2] + D[1])); o.extend(qrd(3)); o.extend(C[2])
    o.extend(weave3(A_(4), B[3] + D[2])); o.extend(qrd(4)); o.extend(C[3])
    o.extend(weave3(issue(99) + E[0] + E[1] + E[2], B[4] + D[3][:9]))
    o.extend(weave2(C[4], D[3][9:])); o.append(bars[1])
    o.extend(weave2(weave2(fr("Vf", 1), fr("Kf", 2)), D[4][:12])); o.extend(weave3(late + E[3] + E[4], D[4][12:]))
    if cfg.bar2 and cfg.barpar: o.append(mkbarrier([3], [2], [], []))
    if cfg.flags:
        f = flag_ops(2); o += [f[0], f[1]]
    return o

def build_tail(it0, rest):
    left = [x.copy() for x in it0 + rest if x.aff == -1 and x.kind in VALU_KINDS and x.wr[0][1][0] in ("E", "P")]
    J = {t: [pv_mfma(-1, NSTEP - 1, t, dt) for dt in range(8)] + [sum_mfma(-1, NSTEP - 1, t)] for t in range(NT)}
    ep = {t: epilogue(-1, t, pk=(t >= cfg.tail_pk)) for t in range(NT)}
    dr = {b: o_drain(-1, b, 0, A_Q + 4 * b) for b in range(20)}
    def head(t): return [ep[t][0][0], ep[t][0][1], ep[t][0][2]]
    def muls(t): return [v for vs, w in ep[t][2] for v in vs[:-2]]
    def cvts(t): return [v for vs, w in ep[t][2] for v in vs[-2:]]
    def wrs(t): return [w for vs, w in ep[t][2]]
    def rds(t): return [dr[b][1] for b in range(4 * t, 4 * t + 4)] + [dr[4 * t][0]]
    def sts(t): return [dr[b][2] for b in range(4 * t, 4 * t + 4)]
    o = []
    def under(ms, fill):
        fill = list(fill)
        for m in ms:
            o.append(m); c = 0
            while fill and (c + COST[fill[0].kind] <= 8 or c == 0):
                x = fill.pop(0); o.append(x); c += COST[x.kind]
        return fill
    JJ = {t: [J[t][8]] + J[t][:8] for t in range(NT)}
    o.extend(under(JJ[0][:6], left))
    o.extend(under(JJ[0][6:] + JJ[1][:4], head(0) + [ep[0][1]]))
    ms = JJ[1][4:] + JJ[2] + JJ[3] + JJ[4]
    for t in range(NT):
        o.extend(muls(t))
        cw = []
        c = cvts(t); w = wrs(t)
        for dt in range(8):
            cw += c[2 * dt: 2 * dt + 2]
            if dt >= 1: cw.append(w[dt - 1])
        cw.append(w[7])
        if t >= 1: cw = cw[:4] + sts(t - 1) + cw[4:]
        if t + 1 < NT: cw = cw[:12] + head(t + 1) + cw[12:] + [ep[t + 1][1]]
        k = cfg.tailm
        o.extend(cw[:4]); o.extend(under(ms[:k], cw[4:])); ms = ms[k:]
        if t + 1 < NT: o.extend(rds(t))
    assert not ms
    o.extend(rds(NT - 1)); o.extend(fail_commit(-1)); o.extend(sts(NT - 1))
    return o

def build():
    S, its = build_schedule()
    G = S.G
    it0 = S.linear(0, its[2])
    rest = S.linear(its[2], G)
    setup = setup_code()
    rot_p = rotate() + [I("s_waitcnt lgkmcnt(0)", "wait", note="full")]
    pro = build_prologue(it0)
    rot = rotate()
    tail = build_tail(it0, rest)
    lab = lambda n: [I(n + ":", "label")]
    br = lambda t: [I(t, "branch")]
    seg_rest = lab("L_it1") + rest
    seg_rot = rot + br("s_cbranch_scc1 L_tail")
    seg_it0 = it0 + br("s_branch L_it1")
    seg_tail = lab("L_tail") + tail
    seq = [(x, 0, True) for x in setup + rot_p + pro]
    for J in range(4):
        if J:
            seq += [(x, J, True) for x in seg_rot]
            seq += [(x, J, 0 <= J + x.aff) for x in seg_it0]
        seq += [(x, J, 0 <= J + x.aff) for x in seg_rest]
    seq += [(x, 4, True) for x in seg_rot + seg_tail]
    errs = check_dataflow(seq)
    paths = [[setup, rot_p, pro, seg_rest, seg_rot, seg_it0, seg_rest, seg_rot, seg_it0, seg_rest, seg_rot, seg_tail]]
    nw = insert_waits(paths)
    nn = insert_nops(paths)
    firsts = {id(S.sp[g + 1]) for g in its[:NSTEP]}
    if cfg.fine is not None:
        g0, st = cfg.fine
        fg = [g0 + st * k for k in range(20)]
        firsts = {id(S.sp[g]) for g in fg}
        sys.stderr.write("fine est: " + str([sum(max(16, 8 + S.load(g)) for g in range(a_, a_ + st)) for a_ in fg[:-1]]) + "\n")
    if cfg.prof:
        def stamp(seg, first):
            out = []; i = first
            for x in seg:
                out.append(x)
                if id(x) in firsts:
                    out.append(raw(f"s_memtime s[{60+2*i}:{61+2*i}]")); i += 1
            seg[:] = out
        stamp(seg_rest, 2 if cfg.fine is None else 0); stamp(seg_it0, 0)
        out = [raw("s_memtime s[60:61]")]; i = 1; fw = True
        for x in pro:
            if fw and x.kind == "wait":
                out.append(raw(f"s_memtime s[{60+2*i}:{61+2*i}]")); i += 1
                out.append(x)
                out.append(raw(f"s_memtime s[{60+2*i}:{61+2*i}]")); i += 1
                fw = False; continue
            out.append(x)
            if (x.kind == "lds_w128" and int(x.text.split(":")[-1]) // 1024 % 2 == 1) or x.kind == "barrier":
                out.append(raw(f"s_memtime s[{60+2*i}:{61+2*i}]")); i += 1
        pro[:] = out
        setup.insert(2, raw("s_memtime s[98:99]"))
        setup.insert(2, raw("s_load_dwordx2 s[4:5], s[0:1], 40"))
        rot_p += [raw("s_mov_b32 s6, 327155712"), raw("s_mov_b32 s7, 0x20000"), raw("s_mov_b32 s100, s98"),
                  raw(f"s_lshl_b32 s3, s2, 2"), raw(f"s_add_u32 s3, s3, s{S_W}"), raw("s_mul_i32 s3, s3, 2048")]
        def dump():
            o = [raw("s_memtime s[56:57]"), raw("s_memrealtime s[58:59]"), raw("s_waitcnt lgkmcnt(0)", "wait")]
            for i in range(20): o.append(raw(f"v_writelane_b32 v11, s{60+2*i}, {i}", "valu"))
            o += [raw("v_writelane_b32 v11, s56, 20", "valu"), raw("v_writelane_b32 v11, s58, 21", "valu"), raw("v_writelane_b32 v11, s100, 22", "valu"),
                  raw("v_lshlrev_b32_e32 v0, 2, v0", "valu"),
                  raw("buffer_store_dword v11, v0, s[4:7], s3 offen", "vstore"), raw("s_nop 1"), raw("v_lshrrev_b32_e32 v0, 2, v0", "valu"), raw("s_add_u32 s3, s3, 256")]
            return o
        seg_rot[0:0] = dump()
        pro += dump() + [raw('s_memtime s[60:61]'), raw('s_memtime s[62:63]')]
        out = []; i = 0; ns = 0
        for x in seg_tail:
            out.append(x)
            if x.kind == "label" or (x.kind == "vstore" and (ns % 4) in (0, 3)) or (x.kind == "lds_w64" and "offset:0" in x.text and "v6" in x.text):
                out.append(raw(f"s_memtime s[{60+2*i}:{61+2*i}]")); i += 1
            if x.kind == "vstore": ns += 1
        seg_tail[:] = out
        seg_tail += [raw("s_waitcnt vmcnt(0)", "wait")] + dump()
    if cfg.dbgt:
        setup.insert(2, raw("s_memtime s[90:91]")); setup.insert(2, raw("s_memrealtime s[92:93]"))
        setup.insert(2, raw("s_load_dwordx2 s[4:5], s[0:1], 32"))
        rot_p += [raw("s_mov_b32 s6, 256"), raw("s_mov_b32 s7, 0x20000"), raw("s_mov_b32 s3, s2")]
        seg_tail += [raw(t) for t in """s_waitcnt vmcnt(0)
s_memtime s[94:95]
s_memrealtime s[96:97]
s_waitcnt lgkmcnt(0)
s_not_b32 s93, s92
v_mov_b32 v11, 0
v_mov_b32 v12, s93
v_mov_b32 v13, s96
s_mov_b64 exec, 1
buffer_atomic_umax v12, v11, s[4:7], 0 offen
buffer_atomic_umax v13, v11, s[4:7], 0 offen offset:4
s_sub_u32 s94, s94, s90
s_sub_u32 s96, s96, s92
s_and_b32 s3, s3, 7
s_min_u32 s3, s3, 6
s_lshl_b32 s3, s3, 2
v_mov_b32 v14, s94
v_mov_b32 v15, s96
buffer_atomic_umax v14, v11, s[4:7], s3 offen offset:8
buffer_atomic_umax v15, v11, s[4:7], s3 offen offset:36
s_waitcnt vmcnt(0)
s_mov_b64 exec, -1""".split("\n")]
    est = [estimate(S_) for S_ in (pro, seg_it0, seg_rest, seg_tail)]
    per = []; cur = []
    for x in seg_it0[1:] + seg_rest + seg_rot + seg_it0[:1]:
        if id(x) in firsts and len(cur) > 8: per.append(estimate(cur)); cur = []
        cur.append(x)
    per.append(estimate(cur))
    sys.stderr.write(f"per-iter est {per}\n")
    for i in range(NSTEP):
        l = [S.load(g) for g in range(its[i], (its + [G])[i + 1])]
        sys.stderr.write(f" it{i}: idle={sum(max(0,8-x) for x in l)} over={sum(max(0,x-8) for x in l)} " + "".join("0123456789abcdefghijklmnopqrstuvwxyz"[min(35,x//4)] for x in l) + "\n")
    sys.stderr.write(f"G={G} waits={nw} nops={nn} est pro/it0/rest/tail={est} job={est[1]+est[2]} mfma_floor={16*G}\n")
    return errs, [setup, rot_p, pro, seg_rest, seg_rot, seg_it0, seg_tail], S, its

HEADER = f"""; MHA forward, B=16 H=32 S=624 D=128 bf16.  Generated by gen/gen.py (hand written generator).
; @launch grid=(256,1,1) block=(256,1,1) lds={LDS_BYTES}
.amdgcn_target "amdgcn-amd-amdhsa--gfx950"
.text
.globl {NAME}_kernel
.p2align 8
.type {NAME}_kernel,@function
{NAME}_kernel:
"""
FOOTER = f"""L_end:
    s_endpgm
.section .rodata,"a"
.p2align 6
.amdhsa_kernel {NAME}_kernel
  .amdhsa_next_free_vgpr 512
  .amdhsa_next_free_sgpr 102
  .amdhsa_accum_offset 256
  .amdhsa_group_segment_fixed_size 0
  .amdhsa_kernarg_size 48
  .amdhsa_user_sgpr_count 2
  .amdhsa_user_sgpr_kernarg_segment_ptr 1
  .amdhsa_system_sgpr_workgroup_id_x 1
.end_amdhsa_kernel
"""

def ablated(x):
    ab = cfg.ablate
    if not ab: return False
    tg = x.wr[0][1][0] if x.wr and x.wr[0][1] else None
    if "sum" in ab and x.kind == "mfma" and tg == "L": return True
    if "pv" in ab and x.kind == "mfma" and tg == "O": return True
    if "qk" in ab and x.kind == "mfma" and tg == "S": return True
    if "exp" in ab and tg == "E": return True
    if "cvt" in ab and tg == "P": return True
    if "frag" in ab and tg in ("Kf", "Vf"): return True
    if "dma" in ab and x.kind in ("dma", "dma2"): return True
    if "qs" in ab and tg in ("u0", "u1", "qs1", "qs2", "qs3"): return True
    if "qo" in ab and x.kind in ("vload", "vstore") and x.aff != 0: return True
    return False

def emit(segs, extra=""):
    s = HEADER
    for n, seg in enumerate(segs):
        for x in seg:
            if n in (3, 5) and ablated(x):
                if cfg.abnop: s += "    s_nop 0\n"
                continue
            if x.kind == "label": s += x.text + "\n"
            else: s += "    " + x.text + "\n"
    return s + extra + FOOTER

if __name__ == "__main__":
    cfg.c0 = 0
    cfg.lat = 5
    cfg.flags = False
    cfg.fpub = 9
    cfg.frd = 0
    cfg.fchk = 11
    cfg.tpf = 17
    cfg.pord = 1
    cfg.barpar = 1
    cfg.cutb = 17
    cfg.ablate = ()
    cfg.abnop = True
    cfg.dsplit = 3
    cfg.accd = 3
    cfg.fine = None
    cfg.bar2 = False
    cfg.dma2 = 14
    cfg.bigsep = 3
    cfg.epi0 = 5
    cfg.epistep = 3
    cfg.rdwin = 8
    cfg.rdgap = 1
    cfg.zpre = 10
    cfg.zpost = 5
    cfg.maxwin = 16
    cfg.rdmargin = 10
    cfg.qslack = 10
    cfg.qldwin = 24
    cfg.cut = None
    cfg.pk_epi = True
    cfg.q0step = 40
    cfg.dlead = 20
    cfg.cpf = 1
    cfg.pro_first = 10
    cfg.pro_depth = 10
    cfg.tail_pk = 0
    cfg.tailm = 14
    for a in sys.argv[2:]:
        k, v = a.split("="); setattr(cfg, k, eval(v))
    if cfg.dsplit: COST["dma"] = 8; COST["vload"] = 8
    errs, segs, S, its = build()
    for e in errs[:30]: sys.stderr.write(e + "\n")
    sys.stderr.write(f"{len(errs)} dataflow errors\n")
    from slow import slow_path
    segs += [[I("L_slow:", "label")]] + slow_path(sys.modules["__main__"])
    if cfg.flags: segs += [[I("s_branch L_end", "branch")], retry_stubs()]
    open(sys.argv[1], "w").write(emit(segs))
```

```python
import sys, struct
from core import *

NAME = "standalone__mha_softmax__near_ridge"
HEAD = 624 * 256
TOTAL = 512 * HEAD
OOB = 0x40000000
import os
NS = int(os.environ.get("NS", "4"))
KRING = 0
VRING = NS * 8192
STAGE = 2 * NS * 8192
FLAGS = STAGE + 4 * 20480
LDS_BYTES = min(163840, FLAGS + 256)
NT = 5
NSTEP = 20
JOBSTRIDE = 128 * HEAD
CSCALE = 0.08838834764831845 * 1.4426950408889634
THRESH = float(2 ** 30)
def f32bits(x): return struct.unpack("<I", struct.pack("<f", x))[0]

class Cfg:
    pk_epi = False
    qflags = 'nt'
    kvflags = 'nt'
    oflags = 'nt'
    prof = False
    dbgt = False
cfg = Cfg()

V_TMP0 = 0
V_VOFF, V_KADDR, V_VA0, V_VA1, V_LIN, V_OW0, V_OW1, V_QADDR = 1, 2, 3, 4, 5, 6, 7, 8
V_OW2, V_OW3 = 9, 10
V_VOFF1 = 25
V_QS = [12, 16, 28, 32]
V_RCP = 20
V_CNT, V_FW, V_FR, V_FT = 22, 23, 24, 11
V_MX = 26
V_NEGM = 36
V_S = 56
V_O = 96
A_Q = 0
A_K = 80
A_V = 144
A_L = 208
A_ONE = 228
A_RB = 232
def Oreg(t, dt): return V_O + 32 * t + 4 * dt
def Sreg(t, kt): return V_S + 8 * t + 4 * kt
def Nreg(t): return V_NEGM + 4 * t
def Qreg(t, s): return A_Q + 16 * t + 4 * s
def Kreg(b, kt, s): return A_K + 32 * b + 16 * kt + 4 * s
def Vreg(b, dt): return A_V + 32 * b + 4 * dt
def Lreg(t): return A_L + 4 * t

S_Q, S_K, S_V, S_O = 8, 12, 16, 20
S_W = 24
S_JOB = 25
S_KVC, S_KVN, S_KV19 = 26, 27, 28
S_QN, S_QN4, S_QC, S_QC4, S_OP, S_OP4 = 29, 30, 31, 32, 33, 34
S_LW = 35
S_LST = 36
S_C = 37
S_MASK = 38
S_THR = 39
S_FACC = 40
S_FAIL = 42
S_PBIT, S_CBIT = 43, 44
S_T0, S_T1, S_T2, S_T3 = 45, 46, 47, 48
S_W19 = 49
S_T4OFF = 50
S_QREL = 51
S_H0 = 52
S_SPIN = 53
S_CAP = 101
S_X0 = 54
S_CHK = 102 - 2

S_CHK = 58
def srd(b): return f"s[{b}:{b+3}]"

def salu(text, rd=(), wr=(), aff=0): return I(text, "salu", rd, wr, aff)
def valu(text, rd=(), wr=(), aff=0, kind="valu"): return I(text, kind, rd, wr, aff)

def mfma(dF, d, aF, a, bF, b, cF, c, dtag, atag, btag, ctag, k16=False, aff=0):
    n = 2 if k16 else 4
    op = "v_mfma_f32_16x16x16_bf16" if k16 else "v_mfma_f32_16x16x32_bf16"
    ctext = "0" if c is None else rs(cF, c, 4)
    A = R(aF, a, n); B = R(bF, b, n); C = [] if c is None else R(cF, c, 4)
    return I(f"{op} {rs(dF,d,4)}, {rs(aF,a,n)}, {rs(bF,b,n)}, {ctext}", "mfma",
             tagged(A, atag) + tagged(B, btag) + tagged(C, ctag), tagged(R(dF, d, 4), dtag), aff, ab=A + B, c=C)

def pv_mfma(j, i, t, dt):
    k16 = i == NSTEP - 1
    c = None if i == 0 else Oreg(t, dt)
    return mfma("v", Oreg(t, dt), "a", Vreg(i & 1, dt), "v", Sreg(t, 0), "v", c,
                ("O", j, i, t, dt), ("Vf", j, i, dt), ("P", j, i, t), ("O", j, i - 1, t, dt), k16, aff=j)
def sum_mfma(j, i, t):
    k16 = i == NSTEP - 1
    c = None if i == 0 else Lreg(t)
    return mfma("a", Lreg(t), "a", A_ONE, "v", Sreg(t, 0), "a", c,
                ("L", j, i, t), ("one", None), ("P", j, i, t), ("L", j, i - 1, t), k16, aff=j)
def qk_mfma(j, i, t, kt, s):
    if s == 0:
        c = None if i == 0 else Nreg(t); ctag = ("negm", j, t)
    else:
        c = Sreg(t, kt); ctag = ("S", j, i, t, kt, s - 1)
    return mfma("v", Sreg(t, kt), "a", Kreg(i & 1, kt, s), "a", Qreg(t, s), "v", c,
                ("S", j, i, t, kt, s), ("Kf", j, i, kt, s), ("Q", j, t, s), ctag, aff=j)

def k_read(j, i, kt, s):
    off = KRING + (i % NS) * 8192 + kt * 4096 + s * 256
    r = Kreg(i & 1, kt, s)
    return I(f"ds_read_b128 {rs('a',r,4)}, v{V_KADDR} offset:{off}", "lds_r",
             [(f"v{V_KADDR}", None), (f"KV{i%NS}", ("Kv", j, i))], tagged(R("a", r, 4), ("Kf", j, i, kt, s)), j)
def v_read(j, i, dt, half):
    off = (i % NS) * 8192 + half * 4096 + (dt >> 1) * 256
    r = Vreg(i & 1, dt) + 2 * half
    va = V_VA1 if dt & 1 else V_VA0
    wr = [(f"a{r+x}", ("Vf", j, i, dt, 2 * half + x)) for x in range(2)]
    return I(f"ds_read_b64_tr_b16 {rs('a',r,2)}, v{va} offset:{off}", "lds_r",
             [(f"v{va}", None), (f"VV{i%NS}", ("Vv", j, i))], wr, j)
def q_read(j, t, s):
    off = t * 4096 + s * 256
    r = Qreg(t, s)
    need = [(f"ST{t*4+rb}", ("Qs", j, t * 4 + rb)) for rb in range(4)]
    return I(f"ds_read_b128 {rs('a',r,4)}, v{V_QADDR} offset:{off}", "lds_r",
             [(f"v{V_QADDR}", None)] + need, tagged(R("a", r, 4), ("Q", j, t, s)), j)

def kv_dma(which, j, tile):
    st = S_T0 if which == "K" else S_T1
    sr = S_K if which == "K" else S_V
    ring = KRING if which == "K" else VRING
    out = []
    stag = ("so" + which, j, tile)
    if tile == NSTEP - 1:
        assert j == 0
        out.append(salu(f"s_mov_b32 s{st}, s{S_KV19}", [(f"s{S_KV19}", ("kv19", j))], [(f"s{st}", stag)], j))
    else:
        base = S_KVC if j == 0 else S_KVN
        out.append(salu(f"s_add_u32 s{st}, s{base}, {tile*8192}", [(f"s{base}", ("kvb", j))], [(f"s{st}", stag)], j))
    mtag = ("m0" + which, j, tile)
    out.append(salu(f"s_add_u32 m0, s{S_LW}, {ring + (tile % NS) * 8192}", [], [("m0", mtag)], j))
    for a in range(2):
        res = ("KR" if which == "K" else "VR") + f"{tile % NS}_{a}"
        free = ("KF" if which == "K" else "VF") + f"{tile % NS}"
        o = " offset:1024" if a else ""
        if cfg.kvflags: o += " " + cfg.kvflags
        out.append(I(f"buffer_load_dwordx4 v{V_VOFF1 if a else V_VOFF}, {srd(sr)}, s{st} offen{o} lds", "dma2" if a else "dma",
                     [("m0", mtag), (f"s{st}", stag), (f"v{V_VOFF}", None), (free, ("free" + which, j, tile))],
                     [(res, (which + "d", j, tile, a))], j))
    return out

def mkbarrier(pubK, pubV, doneK, doneV):
    need = []; wr = []
    for nm, tiles in (("K", pubK), ("V", pubV)):
        for x in tiles:
            need += [(f"{nm}R{x%NS}_{a}", (nm + "d", x // NSTEP, x % NSTEP, a)) for a in range(2)]
            wr.append((f"{nm}V{x%NS}", (nm + "v", x // NSTEP, x % NSTEP)))
    for x in doneK:
        for kt in range(2):
            for s in range(4): need += [(r, None) for r in R("a", Kreg(x & 1, kt, s), 4)]
        f = x + NS
        wr += [(f"KF{f%NS}", ("freeK", f // NSTEP, f % NSTEP)), (f"KV{x%NS}", ("dead", None))]
    for x in doneV:
        for dt in range(8): need += [(r, None) for r in R("a", Vreg(x & 1, dt), 4)]
        f = x + NS
        wr += [(f"VF{f%NS}", ("freeV", f // NSTEP, f % NSTEP)), (f"VV{x%NS}", ("dead", None))]
    return I("s_barrier", "barrier", [], wr, 0, need=need)

def barrier(i):
    if cfg.bar2:
        return mkbarrier([i + 1, i + 2], [i, i + 1], [i - 1, i], [i - 2, i - 1])
    return mkbarrier([i + 1], [i], [i], [i - 1])

def flag_ops(i):
    b = mkbarrier([i + 1], [i], [i], [i - 1])
    tg = lambda n, k: (n, k // NSTEP, k % NSTEP)
    inc = valu(f"v_add_u32_e32 v{V_CNT}, 1, v{V_CNT}", [(f"v{V_CNT}", tg("cnt", i - 1)), ("chkd", tg("chkd", i - 1))], [(f"v{V_CNT}", tg("cnt", i))])
    pub = I(f"ds_write_b32 v{V_FW}, v{V_CNT}", "lds_w32", [(f"v{V_CNT}", tg("cnt", i))], [("pub", tg("pub", i))], 0, need=b.need)
    rd = I(f"ds_read_b32 v{V_FT}, v{V_FR}", "lds_r", [("pub", tg("pub", i))], [(f"v{V_FT}", tg("ft", i))])
    cmp_ = valu(f"v_cmp_lt_u32_e32 vcc, v{V_FT}, v{V_CNT}", [(f"v{V_FT}", tg("ft", i)), (f"v{V_CNT}", tg("cnt", i))], [("vcc", tg("fc", i))])
    br = I(f"s_cbranch_vccnz L_rt{i % NSTEP}", "branch", [("vcc", tg("fc", i))], b.wr + [("chkd", tg("chkd", i))])
    return inc, pub, rd, cmp_, [br, I(f"L_bk{i % NSTEP}:", "salu0")]

def retry_stubs():
    o = []
    for i in range(NSTEP):
        o += [I(f"L_rt{i}:", "label"),
              raw(f"ds_read_b32 v{V_FT}, v{V_FR}", "lds_r"), raw(f"s_sub_u32 s{S_SPIN}, s{S_SPIN}, 1"), raw(f"s_cbranch_scc1 L_giveup{i}", "branch"),
              raw("s_waitcnt lgkmcnt(0)", "wait"), raw(f"v_cmp_lt_u32_e32 vcc, v{V_FT}, v{V_CNT}", "valu"), raw("s_nop 1", "nop"),
              raw(f"s_cbranch_vccnz L_rt{i}", "branch"), raw(f"s_branch L_bk{i}", "branch"),
              I(f"L_giveup{i}:", "label"), raw(f"s_mov_b32 s{S_SPIN}, 0"), raw("s_waitcnt lgkmcnt(0)", "wait"), raw(f"s_branch L_bk{i}", "branch")]
    return o

def blk_goff(b):
    return (b & 3) * 1024

def q_load(j, b, q):
    t = b >> 2
    stag = ("soQ", j, t)
    so = None
    if b & 3 == 0:
        if t == 4:
            bs = S_QN4 if j == 1 else S_QC4
            so = salu(f"s_mov_b32 s{S_T2}, s{bs}", [(f"s{bs}", ("qb4", j))], [(f"s{S_T2}", stag)], j)
        else:
            bs = S_QN if j == 1 else S_QC
            so = salu(f"s_add_u32 s{S_T2}, s{bs}, {t*4096}", [(f"s{bs}", ("qb", j))], [(f"s{S_T2}", stag)], j)
    go = blk_goff(b)
    o = f" offset:{go}" if go else ""
    nt = (" " + cfg.qflags) if cfg.qflags else ""
    ld = I(f"buffer_load_dwordx4 {rs('v',q,4)}, v{V_VOFF1 if b & 1 else V_VOFF}, {srd(S_Q)}, s{S_T2} offen{o}{nt}", "vload",
           [(f"s{S_T2}", stag), (f"v{V_VOFF}", None)], tagged(R("v", q, 4), ("qs0", j, b)), j)
    return so, ld

def q_scale(j, b, q, pk=False, tmp=(12, 13)):
    vs = []
    if pk:
        U = [V_RCP, V_RCP + 1, V_MX, V_MX + 1]
        for x in range(4):
            r = q + x; u = U[x]
            vs.append(valu(f"v_lshlrev_b32_e32 v{u}, 16, v{r}", [(f"v{r}", ("qs0", j, b, x))], [(f"v{u}", ("u0", j, b, x))], j))
            vs.append(valu(f"v_and_b32_e32 v{r}, s{S_MASK}, v{r}", [(f"v{r}", ("qs0", j, b, x))], [(f"v{r}", ("qs1", j, b, x))], j))
        assert S_C & 1
        for base, x, ti, to in ((U[0], 0, "u0", "u1"), (q, 0, "qs1", "qs2"), (U[2], 2, "u0", "u1"), (q + 2, 2, "qs1", "qs2")):
            vs.append(valu(f"v_pk_mul_f32 v[{base}:{base+1}], v[{base}:{base+1}], s[{S_C-1}:{S_C}] op_sel:[0,1] op_sel_hi:[1,1]",
                           [(f"v{base+y}", (ti, j, b, x + y)) for y in range(2)], [(f"v{base+y}", (to, j, b, x + y)) for y in range(2)], j, "pk"))
        for x in range(4):
            r = q + x; u = U[x]
            vs.append(valu(f"v_cvt_pk_bf16_f32 v{r}, v{u}, v{r}", [(f"v{u}", ("u1", j, b, x)), (f"v{r}", ("qs2", j, b, x))],
                           [(f"v{r}", ("qs3", j, b, x))], j))
    else:
      for x in range(4):
        r = q + x; u = tmp[x & 1]
        vs.append(valu(f"v_lshlrev_b32_e32 v{u}, 16, v{r}", [(f"v{r}", ("qs0", j, b, x))], [(f"v{u}", ("u0", j, b, x))], j))
        vs.append(valu(f"v_and_b32_e32 v{r}, s{S_MASK}, v{r}", [(f"v{r}", ("qs0", j, b, x))], [(f"v{r}", ("qs1", j, b, x))], j))
        vs.append(valu(f"v_mul_f32_e32 v{u}, s{S_C}, v{u}", [(f"v{u}", ("u0", j, b, x))], [(f"v{u}", ("u1", j, b, x))], j))
        vs.append(valu(f"v_mul_f32_e32 v{r}, s{S_C}, v{r}", [(f"v{r}", ("qs1", j, b, x))], [(f"v{r}", ("qs2", j, b, x))], j))
        vs.append(valu(f"v_cvt_pk_bf16_f32 v{r}, v{u}, v{r}", [(f"v{u}", ("u1", j, b, x)), (f"v{r}", ("qs2", j, b, x))],
                       [(f"v{r}", ("qs3", j, b, x))], j))
    wr = I(f"ds_write_b128 v{V_LIN}, {rs('v',q,4)} offset:{b*1024}", "lds_w128",
           [(f"v{V_LIN}", None), (f"ST{b}", ("Ofree", j - 2, b))] + tagged(R("v", q, 4), ("qs3", j, b)), [(f"ST{b}", ("Qs", j, b))], j)
    return vs, wr

def o_drain(j, b, buf, reg=None):
    t = b >> 2
    r = A_RB + 4 * buf if reg is None else reg
    stag = ("soO", j, t)
    so = None
    if b & 3 == 0:
        if t == 4:
            so = salu(f"s_mov_b32 s{S_T3}, s{S_OP4}", [(f"s{S_OP4}", ("qb4", j))], [(f"s{S_T3}", stag)], j)
        else:
            so = salu(f"s_add_u32 s{S_T3}, s{S_OP}, {t*4096}", [(f"s{S_OP}", ("qb", j))], [(f"s{S_T3}", stag)], j)
    rdeps = [(f"SO{t}_{dt}", ("Ow", j, t, dt)) for dt in range(8)]
    rd = I(f"ds_read_b128 {rs('a',r,4)}, v{V_LIN} offset:{b*1024}", "lds_r",
           [(f"v{V_LIN}", None)] + rdeps, tagged(R("a", r, 4), ("rb", j, b)) + [(f"ST{b}", ("Ofree", j, b))], j)
    go = blk_goff(b)
    o = f" offset:{go}" if go else ""
    nt = (" " + cfg.oflags) if cfg.oflags else ""
    st = I(f"buffer_store_dwordx4 {rs('a',r,4)}, v{V_VOFF1 if b & 1 else V_VOFF}, {srd(S_O)}, s{S_T3} offen{o}{nt}", "vstore",
           tagged(R("a", r, 4), ("rb", j, b)) + [(f"s{S_T3}", stag), (f"v{V_VOFF}", None)], [], j, note=f"free{b}")
    return so, rd, st

def exp_ins(j, i, t, kt, r, srctag):
    reg = Sreg(t, kt) + r
    return valu(f"v_exp_f32_e32 v{reg}, v{reg}", [(f"v{reg}", srctag)], [(f"v{reg}", ("E", j, i, t, kt, r))], j, "trans")
def cvt_ins(j, i, t, p):
    kt = p >> 1; r = (p & 1) * 2
    a = Sreg(t, kt) + r; d = Sreg(t, 0) + p
    txt = f"v_cvt_pk_bf16_f32 v{d}, v{a}, v{a+1}"
    return valu(txt,
                [(f"v{a}", ("E", j, i, t, kt, r)), (f"v{a+1}", ("E", j, i, t, kt, r + 1))], [(f"v{d}", ("P", j, i, t, p))], j)

def max_chain(j, t):
    m0 = V_MX; m1 = m0 + 1
    s = Sreg(t, 0)
    def st(x): return (f"v{s+x}", ("S", j, 0, t, x >> 2, 3, x & 3))
    T = lambda n: ("mx", j, t, n)
    ch = [
        valu(f"v_max3_f32 v{m0}, v{s}, v{s+1}, v{s+2}", [st(0), st(1), st(2)], [(f"v{m0}", T(2))], j),
        valu(f"v_max_f32_e32 v{m1}, v{m0}, v{s+3}", [(f"v{m0}", T(2)), st(3)], [(f"v{m1}", T(3))], j),
        valu(f"v_max_f32_e32 v{m0}, v{m0}, v{s+3}", [(f"v{m0}", T(2)), st(3)], [(f"v{m0}", T(3))], j),
        valu(f"v_permlane32_swap_b32_e32 v{m0}, v{m1}", [(f"v{m0}", T(3)), (f"v{m1}", T(3))], [(f"v{m0}", T(4)), (f"v{m1}", T(5))], j, "perm"),
        valu(f"v_max_f32_e32 v{m0}, v{m0}, v{m1}", [(f"v{m0}", T(4)), (f"v{m1}", T(5))], [(f"v{m0}", T(6))], j),
        valu(f"v_mov_b32_e32 v{m1}, v{m0}", [(f"v{m0}", T(6))], [(f"v{m1}", T(6))], j),
        valu(f"v_permlane16_swap_b32_e32 v{m0}, v{m1}", [(f"v{m0}", T(6)), (f"v{m1}", T(6))], [(f"v{m0}", T(7)), (f"v{m1}", T(8))], j, "perm"),
    ]
    n = Nreg(t)
    for x in range(2):
        txt = f"v_min3_f32 v{n+x}, -v{m0}, -v{m1}, s{S_CAP}" if t == NT - 1 else f"v_min_f32_e64 v{n+x}, -v{m0}, -v{m1}"
        ch.append(valu(txt, [(f"v{m0}", T(7)), (f"v{m1}", T(8))], [(f"v{n+x}", ("negm", j, t, x))], j))
    ch.append(valu(f"v_mov_b64_e32 v[{n+2}:{n+3}], v[{n}:{n+1}]", [(f"v{n+x}", ("negm", j, t, x)) for x in range(2)],
                   [(f"v{n+2+x}", ("negm", j, t, 2 + x)) for x in range(2)], j))
    adds = {}
    for x in range(8):
        n = Nreg(t)
        adds[(x >> 2, x & 3)] = valu(f"v_add_f32_e32 v{s+x}, v{n}, v{s+x}", [(f"v{n}", ("negm", j, t, 0)), st(x)],
                                     [(f"v{s+x}", ("Sm", j, t, x))], j)
    return ch, adds

def epilogue(j, t, pk=False):
    L = NSTEP - 1
    rc = V_RCP + (t & 1)
    head = [
        valu(f"v_accvgpr_read_b32 v{rc}, a{Lreg(t)}", [(f"a{Lreg(t)}", ("L", j, L, t, 0))], [(f"v{rc}", ("l", j, t))], j),
        valu(f"v_cmp_nge_f32_e64 s[{S_CHK}:{S_CHK+1}], s{S_THR}, v{rc}", [(f"v{rc}", ("l", j, t))], [(f"s{S_CHK}", ("chk", j, t))], j),
        valu(f"v_rcp_f32_e32 v{rc}, v{rc}", [(f"v{rc}", ("l", j, t))], [(f"v{rc}", ("rl", j, t))], j, "trans"),
    ]
    acc = salu(f"s_or_b64 s[{S_FACC}:{S_FACC+1}], s[{S_FACC}:{S_FACC+1}], s[{S_CHK}:{S_CHK+1}]", [(f"s{S_CHK}", ("chk", j, t)), ("facc", ("facc", j, t - 1))],
               [("facc", ("facc", j, t)), ("scc", None)], j)
    per = []
    for dt in range(8):
        o = Oreg(t, dt)
        vs = []
        if pk:
            rb = rc & ~1
            sel = "op_sel:[0,1] op_sel_hi:[1,1]" if rc & 1 else "op_sel_hi:[1,0]"
            for x in (0, 2):
                vs.append(valu(f"v_pk_mul_f32 v[{o+x}:{o+x+1}], v[{o+x}:{o+x+1}], v[{rb}:{rb+1}] {sel}",
                               [(f"v{rc}", ("rl", j, t))] + [(f"v{o+x+y}", ("O", j, L, t, dt, x + y)) for y in range(2)],
                               [(f"v{o+x+y}", ("On", j, t, dt, x + y)) for y in range(2)], j, "pk"))
        else:
          for x in range(4):
            vs.append(valu(f"v_mul_f32_e32 v{o+x}, v{rc}, v{o+x}", [(f"v{rc}", ("rl", j, t)), (f"v{o+x}", ("O", j, L, t, dt, x))],
                           [(f"v{o+x}", ("On", j, t, dt, x))], j))
        vs.append(valu(f"v_cvt_pk_bf16_f32 v{o}, v{o}, v{o+1}", [(f"v{o}", ("On", j, t, dt, 0)), (f"v{o+1}", ("On", j, t, dt, 1))],
                       [(f"v{o}", ("Ob", j, t, dt, 0))], j))
        vs.append(valu(f"v_cvt_pk_bf16_f32 v{o+1}, v{o+2}, v{o+3}", [(f"v{o+2}", ("On", j, t, dt, 2)), (f"v{o+3}", ("On", j, t, dt, 3))],
                       [(f"v{o+1}", ("Ob", j, t, dt, 1))], j))
        ow = V_OW1 if dt & 1 else V_OW0
        off = t * 4096 + (dt >> 1) * 256
        w = I(f"ds_write_b64 v{ow}, {rs('v',o,2)} offset:{off}", "lds_w64",
              [(f"v{ow}", None)] + tagged(R("v", o, 2), ("Ob", j, t, dt)),
              [(f"SO{t}_{dt}", ("Ow", j, t, dt))] + [(f"ST{t*4+rb}", ("Ob", j)) for rb in range(4)], j)
        per.append((vs, w))
    if cfg.w2:
        per2 = []
        for da, db in ((0, 4), (1, 5), (2, 6), (3, 7)):
            (va, wa), (vb, wb) = per[da], per[db]
            ow = (V_OW1 if da & 1 else V_OW0) if da < 2 else (V_OW3 if da & 1 else V_OW2)
            w = I(f"ds_write2st64_b64 v{ow}, {rs('v', Oreg(t, da), 2)}, {rs('v', Oreg(t, db), 2)} offset0:{t*8} offset1:{t*8+1}", "lds_w128",
                  wa.rd + wb.rd, wa.wr + wb.wr, j)
            nm = len(va) - 2
            per2.append((va[:nm] + vb[:nm] + va[nm:] + vb[nm:], w))
        per = per2
    return head, acc, per

def fail_commit(j):
    return [
        salu(f"s_cmp_lg_u64 s[{S_FACC}:{S_FACC+1}], 0", [("facc", ("facc", j, 4))], [("scc", ("fc", j))], j),
        salu(f"s_cselect_b32 s{S_X0}, s{S_PBIT}, 0", [("scc", ("fc", j)), (f"s{S_PBIT}", ("bit", j))], [(f"s{S_X0}", None)], j),
        salu(f"s_or_b32 s{S_FAIL}, s{S_FAIL}, s{S_X0}", [], [("scc", None)], j),
        salu(f"s_mov_b64 s[{S_FACC}:{S_FACC+1}], 0", [], [("facc", ("facc", j + 1, -1))], j),
    ]

class Task:
    n = 0
    def __init__(self, ins, rel, dl, preds=(), zone=False):
        self.ins = ins if isinstance(ins, list) else [ins]
        self.kind = self.ins[0].kind
        self.cost = sum(COST[x.kind] for x in self.ins)
        self.rel = rel; self.dl = dl; self.preds = list(preds); self.succ = []
        self.zone = zone
        self.g = None; self.id = Task.n; Task.n += 1
        for p, d in self.preds: p.succ.append((self, d))

class Sched:
    def __init__(self):
        self.sp = []
        self.sc = []; self.mem = []; self.val = []
        self.it_start = []
        self.tasks = []
        self.bars = []
    def add(self, m):
        self.sp.append(m); self.sc.append([]); self.mem.append([]); self.val.append([])
        return len(self.sp) - 1
    @property
    def G(self): return len(self.sp)
    def load(self, g):
        g %= self.G
        nsc = sum(1 for x in self.sc[g] if x.kind != "label" or x.need)
        return sum(COST[x.kind] for x in self.mem[g] + self.val[g]) + 4 * max(0, nsc - 1)
    def put(self, ins, g):
        w = g // self.G
        if w: ins = ins.shifted(-w)
        gg = g % self.G
        ins.gap = gg
        if ins.kind == "salu0": ins.kind = "label"; self.sc[gg].append(ins)
        elif ins.kind in ("salu", "barrier", "branch"): self.sc[gg].append(ins)
        elif ins.kind in VALU_KINDS: self.val[gg].append(ins)
        else: self.mem[gg].append(ins)
        return g
    def task(self, ins, rel, dl, preds=(), zone=False):
        t = Task(ins, rel, dl, preds, zone); self.tasks.append(t); return t
    def forbidden(self, g):
        g %= self.G
        if not self.bars: return False
        for b in self.bars + [self.bars[0] + self.G]:
            if b - cfg.zpre <= g <= b + cfg.zpost: return True
        return False
    def run(self, cut):
        G = self.G
        for t in self.tasks:
            for p, d in t.preds: t.rel = max(t.rel, p.rel + d)
        for t in self.tasks:
            t.off = -((t.rel - cut) // G) * G
            t.r = t.rel + t.off; t.d = min(t.dl + t.off, cut + G - 1)
        for t in self.tasks:
            t.lp = [(p, d) for p, d in t.preds if p.off == t.off]
            for p, d in t.preds:
                if p.off != t.off:
                    assert p.off == t.off + G, (t.ins[0].text, p.ins[0].text)
                    p.d = min(p.d, t.r + G - d)
        for t in reversed(self.tasks):
            for s_, d in t.succ:
                if s_.off == t.off: t.d = min(t.d, s_.d - d)
            if t.zone:
                while self.forbidden(t.d): t.d -= 1
            assert t.d >= t.r, ("infeasible", t.ins[0].text, t.r, t.d)
        pend = sorted(self.tasks, key=lambda t: t.r)
        act = []; pi = 0
        lastz = [-99]
        def ready(t, g):
            if t.zone and (self.forbidden(g) or (g - lastz[0] < cfg.bigsep and t.d > g)): return False
            return all(p.g is not None and p.g + d <= g for p, d in t.lp)
        def commit(t, g):
            t.g = g; act.remove(t)
            if t.zone: lastz[0] = g
            for x in t.ins: self.put(x, g - t.off)
        for g in range(cut, cut + G):
            while pi < len(pend) and pend[pi].r <= g: act.append(pend[pi]); pi += 1
            key = lambda t: (t.d, t.id)
            isbar = (g % G) in self.bars
            while True:
                rs_ = sorted([t for t in act if t.kind in ("salu", "branch") and ready(t, g)], key=key)
                if rs_ and (not self.sc[g % G] or rs_[0].d <= g): commit(rs_[0], g)
                else: break
            def chain_before(t):
                ch_ = []
                while True:
                    un = [(p, d) for p, d in t.lp if p.g is None or p.g + d > g]
                    if not un: return ch_
                    if len(un) > 1 or un[0][1] != 0 or un[0][0] not in act or un[0][0].kind not in ("valu",): return None
                    t = un[0][0]; ch_.insert(0, t)
                    if len(ch_) > 5: return None
            cap = 8
            if not isbar and self.load(g) == 0:
                for t in sorted([t for t in act if t.kind == "pk"], key=key):
                    ch_ = chain_before(t)
                    if ch_ is None: continue
                    others = [u for u in act if u.kind not in ("salu", "pk", "branch") and ready(u, g) and u not in ch_ and u.cost <= 8]
                    urgent = [u for u in others if key(u) < key(t)]
                    if len(urgent) > cfg.pkurg and t.d > g + 3 and len(t.ins) < 8: continue
                    for u in ch_: commit(u, g)
                    cap = 20
                    break
            while not isbar:
                free = cap - self.load(g)
                if free <= 0: break
                rd = sorted([t for t in act if t.kind not in ("salu", "pk", "branch") and ready(t, g)], key=key)
                if cap == 8:
                    def held(t):
                        n = 0
                        while t.kind == "valu" and len(t.succ) == 1 and t.succ[0][1] == 0 and n < 5:
                            t = t.succ[0][0]; n += 1
                            if t.kind == "pk": return True
                        return False
                    rd = [t for t in rd if not held(t)]
                if free == 8 and cap == 8:
                    if not rd: break
                    t = rd[0]
                    if t.cost == 4:
                        partner = any(u.cost == 4 for u in rd[1:]) or any(s_.cost == 4 and d == 0 and s_.kind != "salu" for s_, d in t.succ)
                        full = [u for u in rd if u.cost >= 8]
                        if not partner and full and t.d > g + 2: t = full[0]
                    commit(t, g)
                else:
                    rd = [t for t in rd if t.cost <= free]
                    if not rd: break
                    commit(rd[0], g)
            while True:
                f = sorted([t for t in act if ready(t, g) and (t.d <= g or (t.kind == "pk" and cap == 20))], key=key)
                if not f: break
                commit(f[0], g)
            late = [t for t in act if t.d <= g]
            assert not late, ("missed", g, late[0].ins[0].text, late[0].d)
        assert not act and pi == len(pend)
    def linear(self, g0, g1):
        out = []
        for g in range(g0, g1):
            out.append(self.sp[g]); out += self.sc[g]; out += self.mem[g]; out += self.val[g]
        return out

def build_schedule():
    S = Sched()
    pv0 = {}; pvend = {}; qkend = {}; qk0 = {}
    for i in range(NSTEP):
        S.it_start.append(S.G)
        for t in range(NT):
            j, st = (-1, NSTEP - 1) if i == 0 else (0, i - 1)
            for dt in range(8):
                g = S.add(pv_mfma(j, st, t, dt))
                if dt == 0: pv0[(i, t)] = g
            pvend[(i, t)] = S.add(sum_mfma(j, st, t))
            for kt in range(1 if i == NSTEP - 1 else 2):
                for s in range(4):
                    g = S.add(qk_mfma(0, i, t, kt, s))
                    if kt == 0 and s == 0: qk0[(i, t)] = g
                qkend[(i, t, kt)] = g
    G = S.G
    its = S.it_start + [G]
    for t in range(NT):
        for d in range(2):
            pv0[(NSTEP + d, t)] = pv0[(d, t)] + G; pvend[(NSTEP + d, t)] = pvend[(d, t)] + G; qk0[(NSTEP + d, t)] = qk0[(d, t)] + G
    LAT = cfg.lat
    T = S.task
    for i in range(cfg.barpar if cfg.bar2 else 0, NSTEP, 2 if cfg.bar2 else 1):
        if not cfg.flags: S.put(barrier(i), its[i]); S.bars.append(its[i])
    if cfg.flags:
        for i in range(1, NSTEP + 1):
            inc, pub, rd, cmp_, br = flag_ops(i)
            e = its[i]
            a_ = T(inc, its[i - 1] + cfg.fchk + 4, e - cfg.fpub - 1)
            T(pub, e - cfg.fpub - 1, e - cfg.fpub, [(a_, 1)], zone=True)
            b_ = T(rd, e + cfg.frd, e + cfg.frd + 1)
            c_ = T(cmp_, e + cfg.fchk - 3, e + cfg.fchk - 2, [(b_, 7)])
            T(br, e + cfg.fchk, e + cfg.fchk, [(c_, 2)])
    for i in range(NSTEP):
        w = mkbarrier([], [], [i], [i - 1])
        S.sc[(its[i] - 1) % G].append(I("; frags ready", "label", [], [], 0, need=w.need))
    AH = NS - 1 if cfg.bar2 else NS
    mprev = None
    for i in range(NSTEP):
        for t in range(NT):
            nk = 1 if i == NSTEP - 1 else 2
            hi = pv0[(i + 1, t)] - 2
            if i == 0:
                ch, adds = max_chain(0, t)
                p = mprev
                lo = qkend[(0, t, 0)] + LAT
                negs = []
                for n, x in enumerate(ch):
                    isneg = n >= len(ch) - 3
                    q = T(x, lo, lo + cfg.maxwin, [] if p is None else [(p, 1 if x.kind == "perm" else 0)])
                    p = q
                    if isneg: negs.append(q)
                mprev = p
            pc = None
            for kt in range(nk):
                es = []
                for r in range(4):
                    if i == 0:
                        a_ = T(adds[(kt, r)], qkend[(0, t, kt)] + LAT, hi, [(negs[0], 0)])
                        es.append(T(exp_ins(0, 0, t, kt, r, ("Sm", 0, t, 4 * kt + r)), lo, hi, [(a_, 0)]))
                    else:
                        es.append(T(exp_ins(0, i, t, kt, r, ("S", 0, i, t, kt, 3, r)), qkend[(i, t, kt)] + LAT, hi))
                    if r & 1:
                        pc = T(cvt_ins(0, i, t, 2 * kt + (r >> 1)), 0, hi, [(es[r - 1], 1), (es[r], 1)] + ([(pc, 0)] if pc else []))
    pd = None
    for i in range(NSTEP):
        lo = its[i] + 1; n = its[i + 1] - its[i]
        hi = its[i + 1] - cfg.rdmargin
        if cfg.flags: lo = its[i] + cfg.fchk + 1; hi = its[i + 1] - cfg.fpub - 9
        kj, kti = (0, i + 1) if i + 1 < NSTEP else (1, 0)
        vr = [v_read(0, i, dt, half) for dt in range(8) for half in range(1 if i == NSTEP - 1 else 2)]
        kr = [k_read(kj, kti, kt, s) for kt in range(1 if kti == NSTEP - 1 else 2) for s in range(4)]
        rds = weave2(vr, kr)
        pr_ = None
        for k, x in enumerate(rds):
            r = lo + int(k * (hi - lo - cfg.rdwin) / len(rds))
            pr_ = T(x, r, min(hi, r + cfg.rdwin), [(pr_, cfg.rdgap)] if pr_ else [])
        for x, (which, tile) in enumerate((("K", i + AH), ("V", i - 1 + AH))):
            so, m0, d0, d1 = kv_dma(which, tile // NSTEP, tile % NSTEP)
            r = lo + x * (cfg.dma2 if (cfg.flags or cfg.bar2 and i % 2 == cfg.barpar) else n // 3)
            a_ = T(so, lo, hi)
            b_ = T(m0, r, hi, [(pd, 1)] if x else [])
            if cfg.dsplit:
                d1.kind = "dma"
                pd = T(d0, r, r + cfg.zpost + 8, [(a_, 1), (b_, 1)], zone=True)
                pd = T(d1, r, r + cfg.zpost + 16, [(pd, cfg.dsplit)], zone=True)
            else:
                pd = T([d0, d1], r, r + cfg.zpost + 8, [(a_, 1), (b_, 1)], zone=True)
    epi_w = {}
    pacc = None; qr = {}
    c0 = its[2] + cfg.c0
    step = (G - cfg.zpre - 2 - c0) / 20
    NQ = len(V_QS)
    wt = {}; lt = {}; drt = {}
    def mkload(b, rel, preds):
        so, ld = q_load(1, b, V_QS[b % NQ])
        if so is not None:
            preds = preds + [(T(so, max(1, rel - 4), rel + 30, [(lt[b - 1], 1)] if b else []), 1)]
        if b: preds = preds + [(lt[b - 1], 0)]
        lt[b] = T(ld, rel, rel + cfg.qldwin, preds, zone=True)
    for b in range(NQ): mkload(b, 6 + b * cfg.q0step, [])
    epi = {t: epilogue(0, t, pk=cfg.pk_epi) for t in range(NT)}
    pst = None; pv_ = None
    for b in range(20):
        lo = c0 + int(b * step); hi = c0 + int((b + 1) * step) - 1
        so, rd, st = o_drain(-1, b, b & 3)
        drt[b] = T(rd, lo - cfg.dlead if b else lo, hi - 1)
        pr = [(drt[b], 9)]
        if so is not None: pr.append((T(so, lo - cfg.dlead if b else lo, hi + 30, [(pst, 1)] if pst else []), 1))
        if pst: pr.append((pst, 0))
        pst = T(st, 0, min(hi + 30, G - 1), pr, zone=True)
        vs, wr = q_scale(1, b, V_QS[b % NQ], pk=b < cfg.qpk, tmp=(V_RCP, V_RCP + 1))
        p = pv_
        if b < cfg.qpk: vs = vs[:8] + [vs[8:12]] + vs[12:]
        for v in vs:
            p = T(v, lo, hi + cfg.qslack, [(p, 0)] if p else [])
        pv_ = p
        wt[b] = T(wr, lo, min(hi + cfg.qslack, G - 1), [(p, 1), (drt[b], 0)], zone=True)
        if b + NQ < 20: mkload(b + NQ, hi + cfg.qslack + 1, [(wt[b], 1)])
    for t in range(NT):
        for s_ in range(4):
            qr[(t, s_)] = T(q_read(1, t, s_), qkend[(NSTEP - 1, t, 0)] + 1, qk0[(NSTEP, t)] - 12, [(wt[4 * t + 3], 0)] + ([(qr[(t, s_ - 1)], 2)] if s_ else []))
    wslot = 0
    for t in range(NT):
        head, acc, per = epi[t]
        lo = pvend[(NSTEP, t)] + LAT
        hi = pv0[(NSTEP + 1, t)] - 2
        h0 = T(head[0], lo, lo + 2)
        h1 = T(head[1], lo, lo + 2, [(h0, 0)] + ([(pacc, 0)] if pacc else []))
        pacc = T(acc, lo, lo + 12, [(h1, cfg.accd)])
        h2 = T(head[2], lo, lo + 2, [(h1, 0)])
        burst = [v for vs, w in per for v in vs if v.kind == "pk"]
        bt = T(burst, lo, hi, [(h2, 1)])
        for dt, (vs, w) in enumerate(per):
            wslot = max(wslot + cfg.epistep * (2 if cfg.w2 else 1), lo + cfg.epi0)
            while S.forbidden(wslot): wslot += 1
            h = min(hi + dt, wslot)
            p = bt
            for v in vs:
                if v.kind != "pk": p = T(v, lo, h, [(p, 0)])
            T(w, h - 1, h, [(p, 1)] + [(qr[(t, s_)], 0) for s_ in range(4)], zone=True)
        if t == NT - 1:
            T(fail_commit(0), lo, hi, [(pacc, 1)])
    if cfg.tpf:
        g0 = its[cfg.tpf] + 20
        a_ = T([salu(f"s_getpc_b64 s[{S_X0}:{S_X0+1}]", [], [(f"s{S_X0}", ("pc", 0))]), I("L_pc2:", "salu0")], g0, g0 + 4)
        b_ = T(valu("v_lshlrev_b32_e32 v12, 6, v0", [], [("v12", ("tp", 0, 0))]), g0, g0 + 8, [(wt[16], 2)])
        c_ = T(valu("v_add_u32_e32 v12, L_tail-L_pc2, v12", [("v12", ("tp", 0, 0))], [("v12", ("tp", 0, 1))]), g0, g0 + 8, [(b_, 0)])
        d_ = T(valu("v_mov_b32_e32 v13, 0", [], [("v13", ("tp", 0, 2))]), g0, g0 + 8, [(wt[16], 2)])
        e_ = T(valu(f"v_lshl_add_u64 v[12:13], v[12:13], 0, s[{S_X0}:{S_X0+1}]", [("v12", ("tp", 0, 1)), ("v13", ("tp", 0, 2)), (f"s{S_X0}", ("pc", 0))],
                    [("v12", ("tp", 0, 3)), ("v13", ("tp", 0, 4))]), g0, g0 + 10, [(a_, 1), (c_, 0), (d_, 0)])
        T(I("global_load_dword v12, v[12:13], off", "vload", [("v12", ("tp", 0, 3)), ("v13", ("tp", 0, 4))], [("v12", None)]), g0, g0 + 16, [(e_, 1)], zone=True)
    cutb = cfg.cutb
    S.run(c0 + int(cutb * step) if cfg.cut is None else cfg.cut)
    S.qkend = qkend; S.qk0 = qk0; S.pv0 = pv0
    sys.stderr.write(f"Q loads {[lt[b].g - lt[b].off for b in range(20)]} writes {[wt[b].g - wt[b].off for b in range(20)]}\n")
    return S, its

def raw(text, kind="salu", rd=(), wr=()): return I(text, kind, rd, wr)

def setup_code():
    o = []
    A = lambda t, k="salu", rd=(), wr=(): o.append(raw(t, k, [(r, None) for r in rd], [(r, None) for r in wr]))
    A("s_cmp_ge_u32 s2, 256"); A("s_cbranch_scc1 L_end", "branch")
    for b, off in ((S_K, 8), (S_Q, 0), (S_V, 16), (S_O, 24)):
        A(f"s_load_dwordx2 s[{b}:{b+1}], s[0:1], {off}")
    o.extend(code_prefetch())
    V = lambda t, rd=(), wr=(): A(t, "valu", rd, wr)
    V("v_lshrrev_b32_e32 v9, 6, v0", ["v0"], ["v9"])
    V("v_and_b32_e32 v0, 63, v0", ["v0"], ["v0"])
    V(f"v_readfirstlane_b32 s{S_W}, v9", ["v9"], [f"s{S_W}"])
    V("v_bfe_u32 v9, v0, 2, 2", ["v0"], ["v9"])
    V("v_bfe_u32 v10, v0, 3, 1", ["v0"], ["v10"])
    V("v_and_b32_e32 v11, 3, v0", ["v0"], ["v11"])
    V("v_xor_b32_e32 v10, v10, v11", ["v10", "v11"], ["v10"])
    V("v_lshlrev_b32_e32 v10, 4, v10", ["v10"], ["v10"])
    V("v_lshl_add_u32 v10, v9, 8, v10", ["v9", "v10"], ["v10"])
    V("v_lshrrev_b32_e32 v11, 4, v0", ["v0"], ["v11"])
    V(f"v_lshl_add_u32 v{V_VOFF}, v11, 6, v10", ["v11", "v10"], [f"v{V_VOFF}"])
    V(f"v_xor_b32_e32 v{V_VOFF1}, 32, v{V_VOFF}", [f"v{V_VOFF}"], [f"v{V_VOFF1}"])
    A(f"s_and_b32 s{S_X0}, s2, 7")
    A(f"s_lshr_b32 s{S_X0+1}, s2, 4")
    A(f"s_lshl_b32 s{S_X0}, s{S_X0}, 4")
    A(f"s_add_u32 s{S_X0}, s{S_X0}, s{S_X0+1}")
    A(f"s_mul_i32 s{S_H0}, s{S_X0}, {HEAD}")
    A(f"s_bfe_u32 s{S_X0}, s2, 0x10003")
    A(f"s_lshl_b32 s{S_LW}, s{S_W}, 11", rd=[f"s{S_W}"])
    A(f"s_mul_i32 s{S_LST}, s{S_W}, 20480")
    A(f"s_mul_i32 s{S_QREL}, s{S_X0}, {320*256}")
    A(f"s_add_u32 s{S_QREL}, s{S_QREL}, s{S_LST}")
    A(f"s_add_u32 s{S_LST}, s{S_LST}, {STAGE}")
    A(f"s_cmp_ge_u32 s{S_W}, 2")
    A(f"s_cselect_b32 s{S_W19}, {OOB}, {19*8192}")
    A(f"s_lshl_b32 s{S_X0}, s{S_X0}, 2")
    A(f"s_add_u32 s{S_X0}, s{S_X0}, s{S_W}")
    A(f"s_cmp_eq_u32 s{S_X0}, 7")
    A(f"s_cselect_b32 s{S_T4OFF}, {OOB}, {4*4096}")
    A(f"s_mov_b32 s{S_CAP}, 0x7f800000")
    A(f"s_cselect_b32 s{S_CAP}, 0xf149f2ca, s{S_CAP}")
    A(f"s_mov_b32 s{S_C}, {f32bits(CSCALE):#x}")
    A(f"s_mov_b32 s{S_MASK}, 0xffff0000")
    A(f"s_mov_b32 s{S_THR}, {f32bits(THRESH):#x}")
    A(f"s_mov_b64 s[{S_FACC}:{S_FACC+1}], 0")
    A(f"s_mov_b32 s{S_FAIL}, 0")
    A(f"s_mov_b32 s{S_JOB}, 4")
    A(f"s_mov_b32 s{S_CBIT}, 0")
    A(f"s_add_u32 s{S_KVN}, s{S_H0}, s{S_LW}")
    A(f"s_add_u32 s{S_QN}, s{S_H0}, s{S_QREL}")
    A(f"s_add_u32 s{S_QN4}, s{S_QN}, s{S_T4OFF}")
    A(f"s_mov_b32 s{S_QC}, {OOB}")
    A(f"s_mov_b32 s{S_QC4}, {OOB}")
    for b in (S_Q, S_K, S_V, S_O):
        A(f"s_mov_b32 s{b+2}, {TOTAL}"); A(f"s_mov_b32 s{b+3}, 0x20000")
    return o

def setup_addrs():
    o = []
    V = lambda t, rd=(), wr=(): o.append(raw(t, "valu", [(r, None) for r in rd], [(r, None) for r in wr]))
    V("v_bfe_u32 v9, v0, 2, 2", ["v0"], ["v9"])
    V("v_lshlrev_b32_e32 v9, 10, v9", ["v9"], ["v9"])
    V("v_and_b32_e32 v10, 3, v0", ["v0"], ["v10"])
    V("v_lshl_add_u32 v9, v10, 6, v9", ["v9", "v10"], ["v9"])
    V("v_bfe_u32 v10, v0, 1, 2", ["v0"], ["v10"])
    V("v_lshrrev_b32_e32 v11, 4, v0", ["v0"], ["v11"])
    V("v_xor_b32_e32 v12, v10, v11", ["v10", "v11"], ["v12"])
    V(f"v_lshl_add_u32 v{V_KADDR}, v12, 4, v9", ["v12", "v9"], [f"v{V_KADDR}"])
    V(f"v_add_u32_e32 v{V_QADDR}, s{S_LST}, v{V_KADDR}", [f"v{V_KADDR}"], [f"v{V_QADDR}"])
    V("v_lshrrev_b32_e32 v12, 5, v0", ["v0"], ["v12"])
    V("v_xor_b32_e32 v12, v10, v12", ["v10", "v12"], ["v12"])
    V("v_lshl_add_u32 v12, v12, 4, v9", ["v12", "v9"], ["v12"])
    V("v_bfe_u32 v13, v0, 4, 1", ["v0"], ["v13"])
    V("v_lshl_add_u32 v12, v13, 3, v12", ["v13", "v12"], ["v12"])
    V(f"v_add_u32_e32 v{V_OW0}, s{S_LST}, v12", ["v12"], [f"v{V_OW0}"])
    V(f"v_xor_b32_e32 v{V_OW1}, 32, v{V_OW0}", [f"v{V_OW0}"], [f"v{V_OW1}"])
    V("v_lshrrev_b32_e32 v9, 4, v0", ["v0"], ["v9"])
    V("v_lshlrev_b32_e32 v9, 10, v9", ["v9"], ["v9"])
    V("v_bfe_u32 v10, v0, 2, 2", ["v0"], ["v10"])
    V("v_lshl_add_u32 v9, v10, 6, v9", ["v9", "v10"], ["v9"])
    V("v_bfe_u32 v10, v0, 3, 2", ["v0"], ["v10"])
    V("v_bfe_u32 v11, v0, 1, 1", ["v0"], ["v11"])
    V("v_xor_b32_e32 v10, v10, v11", ["v10", "v11"], ["v10"])
    V("v_lshl_add_u32 v9, v10, 4, v9", ["v9", "v10"], ["v9"])
    V("v_and_b32_e32 v10, 1, v0", ["v0"], ["v10"])
    V("v_lshl_add_u32 v9, v10, 3, v9", ["v9", "v10"], ["v9"])
    V(f"v_add_u32_e32 v{V_VA0}, {VRING}, v9", ["v9"], [f"v{V_VA0}"])
    V(f"v_xor_b32_e32 v{V_VA1}, 32, v{V_VA0}", [f"v{V_VA0}"], [f"v{V_VA1}"])
    V("v_lshlrev_b32_e32 v9, 4, v0", ["v0"], ["v9"])
    V(f"v_add_u32_e32 v{V_LIN}, s{S_LST}, v9", ["v9"], [f"v{V_LIN}"])
    if cfg.flags:
        V("v_and_b32_e32 v9, 3, v0", ["v0"], ["v9"])
        V("v_lshlrev_b32_e32 v9, 2, v9", ["v9"], ["v9"])
        V(f"v_add_u32_e32 v{V_FR}, {FLAGS}, v9", ["v9"], [f"v{V_FR}"])
        V(f"v_mov_b32_e32 v9, s{S_W}", [], ["v9"])
        V("v_lshlrev_b32_e32 v9, 2, v9", ["v9"], ["v9"])
        V(f"v_add_u32_e32 v{V_FW}, {FLAGS}, v9", ["v9"], [f"v{V_FW}"])
        o.append(I(f"v_mov_b32_e32 v{V_CNT}, 1", "valu", [], [(f"v{V_CNT}", ("cnt", 0, 1)), ("chkd", ("chkd", 0, 1))]))
        o.append(raw(f"ds_write_b32 v{V_FW}, v{V_CNT}", "lds_w32", [(f"v{V_FW}", None), (f"v{V_CNT}", None)]))
        o.append(raw(f"s_mov_b32 s{S_SPIN}, 0x1000000"))
    V("v_mov_b32_e32 v9, 0x3f803f80", [], ["v9"])
    if cfg.sparse1:
        V("v_and_b32_e32 v10, 3, v0", ["v0"], ["v10"])
        V("v_cmp_eq_u32_e32 vcc, 0, v10", ["v10"], ["vcc"])
        V("v_cndmask_b32_e32 v9, 0, v9, vcc", ["v9", "vcc"], ["v9"])
    for x in range(4):
        o.append(I(f"v_accvgpr_write_b32 a{A_ONE+x}, v9", "valu", [("v9", None)], [(f"a{A_ONE+x}", ("one", None, x))]))
    V(f"v_add_u32_e32 v{V_OW2}, 256, v{V_OW0}", [f"v{V_OW0}"], [f"v{V_OW2}"])
    V(f"v_add_u32_e32 v{V_OW3}, 256, v{V_OW1}", [f"v{V_OW1}"], [f"v{V_OW3}"])
    return o

def rotate():
    o = []
    A = lambda t, rd=(), wr=(): o.append(salu(t, rd, wr))
    A(f"s_mov_b32 s{S_OP}, s{S_QC}", [], [(f"s{S_OP}", ("qb", -1))])
    A(f"s_mov_b32 s{S_OP4}, s{S_QC4}", [], [(f"s{S_OP4}", ("qb4", -1))])
    A(f"s_mov_b32 s{S_QC}, s{S_QN}", [], [(f"s{S_QC}", ("qb", 0))]); A(f"s_mov_b32 s{S_QC4}, s{S_QN4}", [], [(f"s{S_QC4}", ("qb4", 0))])
    A(f"s_mov_b32 s{S_KVC}, s{S_KVN}", [], [(f"s{S_KVC}", ("kvb", 0))])
    A(f"s_add_u32 s{S_KV19}, s{S_KVN}, s{S_W19}", [], [(f"s{S_KV19}", ("kv19", 0))])
    A(f"s_mov_b32 s{S_PBIT}, s{S_CBIT}", [], [(f"s{S_PBIT}", ("bit", -1))])
    A(f"s_lshl_b32 s{S_CBIT}, s{S_CBIT}, 1")
    A(f"s_max_u32 s{S_CBIT}, s{S_CBIT}, 1")
    A(f"s_cmp_gt_u32 s{S_JOB}, 1")
    A(f"s_cselect_b32 s{S_X0}, {JOBSTRIDE}, {OOB}")
    A(f"s_add_u32 s{S_KVN}, s{S_KVN}, s{S_X0}", [], [(f"s{S_KVN}", ("kvb", 1))])
    A(f"s_add_u32 s{S_QN}, s{S_QN}, s{S_X0}", [], [(f"s{S_QN}", ("qb", 1))])
    A(f"s_add_u32 s{S_QN4}, s{S_QN4}, s{S_X0}", [], [(f"s{S_QN4}", ("qb4", 1))])
    A(f"s_sub_u32 s{S_JOB}, s{S_JOB}, 1")
    return o

def tile_of(x):
    tg = x.wr[0][1]
    if tg[0] in ("S", "E", "P", "O", "L"): return (tg[2], tg[3])
    if tg[0] in ("mx", "negm", "Sm"): return (0, tg[2])
    return None

def code_prefetch():
    o = []
    A = lambda t, k="salu", rd=(), wr=(): o.append(raw(t, k, [(r, None) for r in rd], [(r, None) for r in wr]))
    if not cfg.cpf: return o
    A(f"s_getpc_b64 s[{S_X0+12}:{S_X0+13}]")
    A("L_pc:", "label")
    if cfg.cpf == 1:
        A(f"s_lshr_b32 s{S_X0}, s2, 3"); A(f"s_lshl_b32 s{S_X0}, s{S_X0}, 11")
        A("v_and_b32_e32 v26, 15, v0", "valu", ["v0"], ["v26"])
        A(f"v_lshl_add_u32 v26, v26, 7, s{S_X0}", "valu", ["v26"], ["v26"])
        A(f"v_min_u32_e32 v26, L_slow-L_pc, v26", "valu", ["v26"], ["v26"])
        A("v_mov_b32_e32 v27, 0", "valu", [], ["v27"])
        A(f"v_lshl_add_u64 v[26:27], v[26:27], 0, s[{S_X0+12}:{S_X0+13}]", "valu", ["v26", "v27"], ["v26", "v27"])
        A("global_load_dword v27, v[26:27], off", "vload", ["v26", "v27"], ["v27"])
        return o
    A("v_lshlrev_b32_e32 v26, 7, v0", "valu", ["v0"], ["v26"])
    for k in range(cfg.cpf):
        A(f"v_min_u32_e32 v27, L_slow-L_pc, v26", "valu", ["v26"], ["v27"])
        A(f"global_load_dword v27, v27, s[{S_X0+12}:{S_X0+13}]", "vload", ["v27"], ["v27"])
        if k + 1 < cfg.cpf: A("v_add_u32_e32 v26, 32768, v26", "valu", ["v26"], ["v26"])
    return o

def weave2(vs, ms):
    out = []; n = len(vs); k = len(ms); mi = 0
    for i, v in enumerate(vs):
        while mi < k and mi * n <= i * k: out.append(ms[mi]); mi += 1
        out.append(v)
    return out + ms[mi:]

def build_prologue(it01):
    o = []
    init = [("facc", ("facc", 0, -1))]
    for x in range(NS):
        init += [(f"KF{x}", ("freeK", 0, x)), (f"VF{x}", ("freeV", 0, x))]
    for b in range(20): init.append((f"ST{b}", ("Ofree", -2, b)))
    o.append(I("; init state", "label", [], init))
    land = lambda b: Oreg(b >> 2, b & 3)
    pend = []
    def kv(which, tile): pend.append(kv_dma(which, 0, tile))
    def qt(t):
        for b in range(4 * t, 4 * t + 4): pend.append([x for x in q_load(0, b, land(b)) if x is not None])
    kv("K", 0); qt(0); qt(1); kv("K", 1); kv("V", 0); qt(2); qt(3)
    if cfg.pord == 0: kv("K", 2); kv("V", 1); qt(4)
    else: qt(4); kv("K", 2); kv("V", 1)
    for x in range(3, NS):
        kv("K", x); kv("V", x - 1)
    order = [x for g in pend for x in g if x.kind in VMEM_KINDS]
    qidx = {x.wr[0][1][2]: n for n, x in enumerate(order) if x.kind == "vload"}
    cnt = [0]
    def issue(upto):
        r = []
        while pend and cnt[0] < upto:
            g = pend.pop(0); r.extend(g); cnt[0] += sum(1 for x in g if x.kind in VMEM_KINDS)
        return r
    o.extend(issue(cfg.pro_first))
    o.extend(setup_addrs())
    isflag = lambda x: x.kind == "branch" or (x.wr and x.wr[0][1] is not None and x.wr[0][1][0] in ("cnt", "pub", "ft", "fc"))
    mine = [x.copy() for x in it01 if x.aff >= 0 and x.kind != "label" and not isflag(x)]
    isv = lambda x: x.kind in VALU_KINDS and x.aff == 0
    C = {t: [x for x in mine if isv(x) and tile_of(x) == (0, t)] for t in range(NT)}
    E = {t: [x for x in mine if isv(x) and tile_of(x) == (1, t)] for t in range(NT)}
    B = {t: [x for x in mine if x.kind == "mfma" and x.wr[0][1][0] == "S" and tile_of(x) == (0, t)] for t in range(NT)}
    D = {t: [x for x in mine if x.kind == "mfma" and x not in B[t] and tile_of(x)[1] == t] for t in range(NT)}
    bars = [x for x in mine if x.kind == "barrier"]
    fr = lambda nm, i: [x for x in mine if x.kind == "lds_r" and x.wr[0][1][0] == nm and x.wr[0][1][2] == i]
    late = [x for x in mine if x.kind in VMEM_KINDS or x.kind == "salu"]
    nlate = len(late)
    if cfg.bar2:
        def isearly(x):
            tg = x.wr[0][1]
            return tg is not None and tg[0] in ("soK", "m0K", "Kd", "soV", "m0V", "Vd") and tg[2] == (NS - 1 if "K" in tg[0] else NS - 2)
        late = [x for x in late if not isearly(x)]
    acc = sum(len(d[t]) for d in (B, C, D, E) for t in range(NT)) + len(bars) + nlate + sum(len(fr(*z)) for z in (("Kf", 1), ("Kf", 2), ("Vf", 0), ("Vf", 1)))
    nqr = len([x for x in mine if x.kind == "lds_r" and x.wr[0][1][0] == "Q"])
    assert acc + nqr == len(mine), (acc, nqr, len(mine))
    bars = [mkbarrier([1], [0], [0], []), mkbarrier([2], [1], [1], [0])]
    def blk(b):
        vs, wr = q_scale(0, b, land(b))
        return vs[:1] + issue(qidx[b] + 1 + cfg.pro_depth) + vs[1:] + [wr]
    qrd = lambda t: [q_read(0, t, s_) for s_ in range(4)]
    def weave3(vs, ms):
        out = weave2(vs, ms)
        i = 1
        while i < len(out):
            x = out[i]
            if (x.kind in LDS_KINDS or x.kind in VMEM_KINDS) and out[i - 1].kind in VALU_KINDS:
                for k in range(i + 1, min(len(out), i + 5)):
                    if out[k].kind == "mfma":
                        out.insert(i, out.pop(k)); break
            i += 1
        return out
    A_ = lambda t: [x for b in range(4 * t, 4 * t + 4) for x in blk(b)]
    bk = mkbarrier([0], [], [], [])
    o.extend(A_(0)); o.extend(qrd(0))
    x = blk(4) + blk(5)
    o.extend(x[:-1]); o.append(bk)
    o.extend([k_read(0, 0, kt, s_) for kt in range(2) for s_ in range(4)])
    o.append(x[-1])
    o.extend(blk(6)); o.extend(weave3(blk(7), B[0])); o.extend(qrd(1))
    o.extend(C[0])
    o.append(bars[0])
    fr0 = weave2(fr("Vf", 0), fr("Kf", 1))
    o.extend(weave2(fr0, B[1]))
    o.extend(blk(8)); o.extend(weave3(blk(9) + blk(10) + blk(11), D[0])); o.extend(qrd(2)); o.extend(C[1])
    o.extend(weave3(A_(3), B[2] + D[1])); o.extend(qrd(3)); o.extend(C[2])
    o.extend(weave3(A_(4), B[3] + D[2])); o.extend(qrd(4)); o.extend(C[3])
    o.extend(weave3(issue(99) + E[0] + E[1] + E[2], B[4] + D[3][:9]))
    o.extend(weave2(C[4], D[3][9:])); o.append(bars[1])
    o.extend(weave2(weave2(fr("Vf", 1), fr("Kf", 2)), D[4][:12])); o.extend(weave3(late + E[3] + E[4], D[4][12:]))
    if cfg.bar2 and cfg.barpar: o.append(mkbarrier([3], [2], [], []))
    if cfg.flags:
        f = flag_ops(2); o += [f[0], f[1]]
    return o

def build_tail(it0, rest):
    left = [x.copy() for x in it0 + rest if x.aff == -1 and x.kind in VALU_KINDS and x.wr[0][1][0] in ("E", "P")]
    J = {t: [pv_mfma(-1, NSTEP - 1, t, dt) for dt in range(8)] + [sum_mfma(-1, NSTEP - 1, t)] for t in range(NT)}
    ep = {t: epilogue(-1, t, pk=(t >= cfg.tail_pk)) for t in range(NT)}
    dr = {b: o_drain(-1, b, 0, A_Q + 4 * b) for b in range(20)}
    def head(t): return [ep[t][0][0], ep[t][0][1], ep[t][0][2]]
    def muls(t): return [v for vs, w in ep[t][2] for v in vs if "cvt" not in v.text]
    def cvts(t): return [v for vs, w in ep[t][2] for v in vs if "cvt" in v.text]
    def wrs(t): return [w for vs, w in ep[t][2]]
    def rds(t): return [dr[b][1] for b in range(4 * t, 4 * t + 4)] + [dr[4 * t][0]]
    def sts(t): return [dr[b][2] for b in range(4 * t, 4 * t + 4)]
    o = []
    def under(ms, fill):
        fill = list(fill)
        for m in ms:
            o.append(m); c = 0
            while fill and (c + COST[fill[0].kind] <= 8 or c == 0):
                x = fill.pop(0); o.append(x); c += COST[x.kind]
        return fill
    JJ = {t: [J[t][8]] + J[t][:8] for t in range(NT)}
    o.extend(under(JJ[0][:6], left))
    o.extend(under(JJ[0][6:] + JJ[1][:4], head(0) + [ep[0][1]]))
    ms = JJ[1][4:] + JJ[2] + JJ[3] + JJ[4]
    for t in range(NT):
        o.extend(muls(t))
        cw = []
        c = cvts(t); w = wrs(t)
        nc = len(c) // len(w)
        for dt in range(len(w)):
            cw += c[nc * dt: nc * dt + nc]
            if dt >= 1: cw.append(w[dt - 1])
        cw.append(w[-1])
        if t >= 1: cw = cw[:4] + sts(t - 1) + cw[4:]
        if t + 1 < NT: cw = cw[:12] + head(t + 1) + cw[12:] + [ep[t + 1][1]]
        k = cfg.tailm
        o.extend(cw[:4]); o.extend(under(ms[:k], cw[4:])); ms = ms[k:]
        if t + 1 < NT: o.extend(rds(t))
    assert not ms
    o.extend(rds(NT - 1)); o.extend(fail_commit(-1)); o.extend(sts(NT - 1))
    return o

def build():
    S, its = build_schedule()
    G = S.G
    it0 = S.linear(0, its[2])
    rest = S.linear(its[2], G)
    setup = setup_code()
    rot_p = rotate() + [I("s_waitcnt lgkmcnt(0)", "wait", note="full")]
    pro = build_prologue(it0)
    rot = rotate()
    tail = build_tail(it0, rest)
    lab = lambda n: [I(n + ":", "label")]
    br = lambda t: [I(t, "branch")]
    seg_rest = lab("L_it1") + rest
    seg_rot = rot + br("s_cbranch_scc1 L_tail")
    seg_it0 = it0 + br("s_branch L_it1")
    seg_tail = lab("L_tail") + tail
    seq = [(x, 0, True) for x in setup + rot_p + pro]
    for J in range(4):
        if J:
            seq += [(x, J, True) for x in seg_rot]
            seq += [(x, J, 0 <= J + x.aff) for x in seg_it0]
        seq += [(x, J, 0 <= J + x.aff) for x in seg_rest]
    seq += [(x, 4, True) for x in seg_rot + seg_tail]
    errs = check_dataflow(seq)
    paths = [[setup, rot_p, pro, seg_rest, seg_rot, seg_it0, seg_rest, seg_rot, seg_it0, seg_rest, seg_rot, seg_tail]]
    nw = insert_waits(paths)
    nn = insert_nops(paths)
    firsts = {id(S.sp[g + 1]) for g in its[:NSTEP]}
    if cfg.fine is not None:
        g0, st = cfg.fine
        fg = [g0 + st * k for k in range(20)]
        firsts = {id(S.sp[g]) for g in fg}
        sys.stderr.write("fine est: " + str([sum(max(16, 8 + S.load(g)) for g in range(a_, a_ + st)) for a_ in fg[:-1]]) + "\n")
    if cfg.prof:
        def stamp(seg, first):
            out = []; i = first
            for x in seg:
                out.append(x)
                if id(x) in firsts:
                    out.append(raw(f"s_memtime s[{60+2*i}:{61+2*i}]")); i += 1
            seg[:] = out
        stamp(seg_rest, 2 if cfg.fine is None else 0); stamp(seg_it0, 0)
        out = [raw("s_memtime s[60:61]")]; i = 1; fw = True
        for x in pro:
            if fw and x.kind == "wait":
                out.append(raw(f"s_memtime s[{60+2*i}:{61+2*i}]")); i += 1
                out.append(x)
                out.append(raw(f"s_memtime s[{60+2*i}:{61+2*i}]")); i += 1
                fw = False; continue
            out.append(x)
            if (x.kind == "lds_w128" and int(x.text.split(":")[-1]) // 1024 % 2 == 1) or x.kind == "barrier":
                out.append(raw(f"s_memtime s[{60+2*i}:{61+2*i}]")); i += 1
        pro[:] = out
        setup.insert(2, raw("s_memtime s[98:99]"))
        setup.insert(2, raw("s_load_dwordx2 s[4:5], s[0:1], 40"))
        rot_p += [raw("s_mov_b32 s6, 327155712"), raw("s_mov_b32 s7, 0x20000"), raw("s_mov_b32 s100, s98"),
                  raw(f"s_lshl_b32 s3, s2, 2"), raw(f"s_add_u32 s3, s3, s{S_W}"), raw("s_mul_i32 s3, s3, 2048")]
        def dump():
            o = [raw("s_memtime s[56:57]"), raw("s_memrealtime s[58:59]"), raw("s_waitcnt lgkmcnt(0)", "wait")]
            for i in range(20): o.append(raw(f"v_writelane_b32 v11, s{60+2*i}, {i}", "valu"))
            o += [raw("v_writelane_b32 v11, s56, 20", "valu"), raw("v_writelane_b32 v11, s58, 21", "valu"), raw("v_writelane_b32 v11, s100, 22", "valu"),
                  raw("v_lshlrev_b32_e32 v0, 2, v0", "valu"),
                  raw("buffer_store_dword v11, v0, s[4:7], s3 offen", "vstore"), raw("s_nop 1"), raw("v_lshrrev_b32_e32 v0, 2, v0", "valu"), raw("s_add_u32 s3, s3, 256")]
            return o
        seg_rot[0:0] = dump()
        pro += dump() + [raw('s_memtime s[60:61]'), raw('s_memtime s[62:63]')]
        out = []; i = 0; ns = 0
        for x in seg_tail:
            out.append(x)
            if x.kind == "label" or (x.kind == "vstore" and (ns % 4) in (0, 3)) :
                out.append(raw(f"s_memtime s[{60+2*i}:{61+2*i}]")); i += 1
            if x.kind == "vstore": ns += 1
        seg_tail[:] = out
        seg_tail += [raw("s_waitcnt vmcnt(0)", "wait")] + dump()
    if cfg.dbgt:
        setup.insert(2, raw("s_memtime s[90:91]")); setup.insert(2, raw("s_memrealtime s[92:93]"))
        setup.insert(2, raw("s_load_dwordx2 s[4:5], s[0:1], 32"))
        rot_p += [raw("s_mov_b32 s6, 256"), raw("s_mov_b32 s7, 0x20000"), raw("s_mov_b32 s3, s2")]
        seg_tail += [raw(t) for t in """s_waitcnt vmcnt(0)
s_memtime s[94:95]
s_memrealtime s[96:97]
s_waitcnt lgkmcnt(0)
s_not_b32 s93, s92
v_mov_b32 v11, 0
v_mov_b32 v12, s93
v_mov_b32 v13, s96
s_mov_b64 exec, 1
buffer_atomic_umax v12, v11, s[4:7], 0 offen
buffer_atomic_umax v13, v11, s[4:7], 0 offen offset:4
s_sub_u32 s94, s94, s90
s_sub_u32 s96, s96, s92
s_and_b32 s3, s3, 7
s_min_u32 s3, s3, 6
s_lshl_b32 s3, s3, 2
v_mov_b32 v14, s94
v_mov_b32 v15, s96
buffer_atomic_umax v14, v11, s[4:7], s3 offen offset:8
buffer_atomic_umax v15, v11, s[4:7], s3 offen offset:36
s_waitcnt vmcnt(0)
s_mov_b64 exec, -1""".split("\n")]
    est = [estimate(S_) for S_ in (pro, seg_it0, seg_rest, seg_tail)]
    per = []; cur = []
    for x in seg_it0[1:] + seg_rest + seg_rot + seg_it0[:1]:
        if id(x) in firsts and len(cur) > 8: per.append(estimate(cur)); cur = []
        cur.append(x)
    per.append(estimate(cur))
    sys.stderr.write(f"per-iter est {per}\n")
    for i in range(NSTEP):
        l = [S.load(g) for g in range(its[i], (its + [G])[i + 1])]
        sys.stderr.write(f" it{i}: idle={sum(max(0,8-x) for x in l)} over={sum(max(0,x-8) for x in l)} " + "".join("0123456789abcdefghijklmnopqrstuvwxyz"[min(35,x//4)] for x in l) + "\n")
    sys.stderr.write(f"G={G} waits={nw} nops={nn} est pro/it0/rest/tail={est} job={est[1]+est[2]} mfma_floor={16*G}\n")
    return errs, [setup, rot_p, pro, seg_rest, seg_rot, seg_it0, seg_tail], S, its

HEADER = f"""; MHA forward, B=16 H=32 S=624 D=128 bf16.  Generated by gen/gen.py (hand written generator).
; @launch grid=(256,1,1) block=(256,1,1) lds={LDS_BYTES}
.amdgcn_target "amdgcn-amd-amdhsa--gfx950"
.text
.globl {NAME}_kernel
.p2align 8
.type {NAME}_kernel,@function
{NAME}_kernel:
"""
FOOTER = f"""L_end:
    s_endpgm
.section .rodata,"a"
.p2align 6
.amdhsa_kernel {NAME}_kernel
  .amdhsa_next_free_vgpr 512
  .amdhsa_next_free_sgpr 102
  .amdhsa_accum_offset 256
  .amdhsa_group_segment_fixed_size 0
  .amdhsa_kernarg_size 48
  .amdhsa_user_sgpr_count 2
  .amdhsa_user_sgpr_kernarg_segment_ptr 1
  .amdhsa_system_sgpr_workgroup_id_x 1
.end_amdhsa_kernel
"""

def ablated(x):
    ab = cfg.ablate
    if not ab: return False
    tg = x.wr[0][1][0] if x.wr and x.wr[0][1] else None
    if "sum" in ab and x.kind == "mfma" and tg == "L": return True
    if "pv" in ab and x.kind == "mfma" and tg == "O": return True
    if "qk" in ab and x.kind == "mfma" and tg == "S": return True
    if "exp" in ab and tg == "E": return True
    if "cvt" in ab and tg == "P": return True
    if "frag" in ab and tg in ("Kf", "Vf"): return True
    if "dma" in ab and x.kind in ("dma", "dma2"): return True
    if "qs" in ab and tg in ("u0", "u1", "qs1", "qs2", "qs3"): return True
    if "qo" in ab and x.kind in ("vload", "vstore") and x.aff != 0: return True
    return False

def emit(segs, extra=""):
    s = HEADER
    for n, seg in enumerate(segs):
        for x in seg:
            if n in (3, 5) and ablated(x):
                if cfg.abnop: s += "    s_nop 0\n"
                continue
            if x.kind == "label": s += x.text + "\n"
            else: s += "    " + x.text + "\n"
    return s + extra + FOOTER

if __name__ == "__main__":
    cfg.c0 = 0
    cfg.lat = 5
    cfg.sparse1 = True
    cfg.ptrunc = False
    cfg.flags = True
    cfg.fpub = 9
    cfg.frd = 0
    cfg.fchk = 11
    cfg.tpf = 18
    cfg.qpk = 0
    cfg.w2 = True
    cfg.pkurg = 3
    cfg.pord = 1
    cfg.barpar = 1
    cfg.cutb = 17
    cfg.ablate = ()
    cfg.abnop = True
    cfg.dsplit = 3
    cfg.accd = 3
    cfg.fine = None
    cfg.bar2 = False
    cfg.dma2 = 14
    cfg.bigsep = 3
    cfg.epi0 = 5
    cfg.epistep = 3
    cfg.rdwin = 8
    cfg.rdgap = 1
    cfg.zpre = 10
    cfg.zpost = 5
    cfg.maxwin = 16
    cfg.rdmargin = 10
    cfg.qslack = 10
    cfg.qldwin = 24
    cfg.cut = None
    cfg.pk_epi = True
    cfg.q0step = 40
    cfg.dlead = 20
    cfg.cpf = 1
    cfg.pro_first = 10
    cfg.pro_depth = 10
    cfg.tail_pk = 0
    cfg.tailm = 14
    for a in sys.argv[2:]:
        k, v = a.split("="); setattr(cfg, k, eval(v))
    if cfg.dsplit: COST["dma"] = 8; COST["vload"] = 8
    errs, segs, S, its = build()
    for e in errs[:30]: sys.stderr.write(e + "\n")
    sys.stderr.write(f"{len(errs)} dataflow errors\n")
    from slow import slow_path
    segs += [[I("L_slow:", "label")]] + slow_path(sys.modules["__main__"])
    if cfg.flags: segs += [[I("s_branch L_end", "branch")], retry_stubs()]
    open(sys.argv[1], "w").write(emit(segs))
```

```python
from core import *

def slow_path(G):
    cfg = G.cfg
    S_J, S_HO, S_KO, S_CNT = G.S_X0 + 2, G.S_X0 + 3, G.S_X0 + 4, G.S_X0 + 5
    VA0, VA1 = 12, 13
    MX = 28
    def raw(t, k="salu", rd=(), wr=()): return I(t, k, [(r, None) for r in rd], [(r, None) for r in wr])
    full = lambda: raw("s_waitcnt vmcnt(0) lgkmcnt(0)", "wait")
    lab = lambda n: I(n + ":", "label")
    def dma(srd, ldsoff):
        o = [raw(f"s_add_u32 m0, s{G.S_LST}, {ldsoff}", wr=["m0"])]
        for b in range(4):
            off = f" offset:{b*1024}" if b else ""
            o.append(raw(f"buffer_load_dwordx4 v{G.V_VOFF1 if b & 1 else G.V_VOFF}, {G.srd(srd)}, s{S_KO} offen{off} lds", "dma", ["m0"]))
        return o
    def kreads():
        return [raw(f"ds_read_b128 {rs('a', G.Kreg(0,0,s), 4)}, v{G.V_QADDR} offset:{s*256}", "lds_r", [], R("a", G.Kreg(0, 0, s), 4)) for s in range(4)]
    def qk(t, withm):
        o = []
        for s in range(4):
            c = G.Sreg(t, 0, 19) if s else (G.Nreg(t) if withm else None)
            o.append(G.mfma("v", G.Sreg(t, 0, 19), "a", G.Kreg(0, 0, s), "a", G.Qreg(t, s), "v", c, None, None, None, None))
        return o
    head = [raw(f"s_cmp_eq_u32 s{G.S_FAIL}, 0"), raw("s_cbranch_scc1 L_end", "branch"), full(),
            raw(f"s_mov_b32 s{S_J}, 0"), raw(f"s_mov_b32 s{S_HO}, s{G.S_H0}"),
            raw(f"s_add_u32 s{S_KO}, s{G.S_LST}, {4096 - G.VRING}"),
            raw(f"v_add_u32_e32 v{VA0}, s{S_KO}, v{G.V_VA0}", "valu", [], [f"v{VA0}"]),
            raw(f"v_add_u32_e32 v{VA1}, s{S_KO}, v{G.V_VA1}", "valu", [], [f"v{VA1}"])]
    job = [lab("L_sj"), raw(f"s_bitcmp1_b32 s{G.S_FAIL}, s{S_J}"), raw("s_cbranch_scc0 L_snext", "branch"),
           raw(f"s_add_u32 s{G.S_QC}, s{S_HO}, s{G.S_QREL}"), raw(f"s_add_u32 s{G.S_QC4}, s{G.S_QC}, s{G.S_T4OFF}"),
           raw(f"s_mov_b32 s{G.S_OP}, s{G.S_QC}"), raw(f"s_mov_b32 s{G.S_OP4}, s{G.S_QC4}")]
    land = lambda b: G.V_O + 4 * b
    for b in range(20): job += [x for x in G.q_load(0, b, land(b)) if x is not None]
    job.append(full())
    for b in range(20):
        vs, wr = G.q_scale(0, b, land(b), tmp=(14, 15)); job += vs + [wr]
    job += [G.q_read(0, t, s) for t in range(G.NT) for s in range(4)]
    for t in range(G.NT): job.append(raw(f"v_mov_b32_e32 v{MX+t}, 0xff800000", "valu", [], [f"v{MX+t}"]))
    job += [raw(f"s_mov_b32 s{S_KO}, s{S_HO}"), raw(f"s_mov_b32 s{S_CNT}, 39"), full()]
    p1 = [lab("L_sp1")] + dma(G.S_K, 0) + [full()] + kreads() + [full()]
    for t in range(G.NT): p1 += qk(t, False)
    for t in range(G.NT):
        s = G.Sreg(t, 0, 19); m = f"v{MX+t}"
        p1.append(raw(f"v_max3_f32 {m}, {m}, v{s}, v{s+1}", "valu", [m, f"v{s}", f"v{s+1}"], [m]))
        p1.append(raw(f"v_max3_f32 {m}, {m}, v{s+2}, v{s+3}", "valu", [m, f"v{s+2}", f"v{s+3}"], [m]))
    loopend = lambda l: [raw(f"s_add_u32 s{S_KO}, s{S_KO}, 4096"), raw(f"s_sub_u32 s{S_CNT}, s{S_CNT}, 1"),
                         raw(f"s_cmp_lg_u32 s{S_CNT}, 0"), raw(f"s_cbranch_scc1 {l}", "branch")]
    p1 += loopend("L_sp1")
    mid = []
    tmp = f"v{MX+5}"
    for t in range(G.NT):
        m = f"v{MX+t}"
        for sw in ("v_permlane32_swap_b32_e32", "v_permlane16_swap_b32_e32"):
            mid.append(raw(f"v_mov_b32_e32 {tmp}, {m}", "valu", [m], [tmp]))
            mid.append(raw(f"{sw} {m}, {tmp}", "perm", [m, tmp], [m, tmp]))
            mid.append(raw(f"v_max_f32_e32 {m}, {m}, {tmp}", "valu", [m, tmp], [m]))
        for x in range(4):
            n = f"v{G.Nreg(t)+x}"
            mid.append(raw(f"v_sub_f32_e32 {n}, 0, {m}", "valu", [m], [n]))
    for r in range(16): mid.append(raw(f"v_accvgpr_write_b32 a{G.A_O+r}, 0", "valu", [], [f"a{G.A_O+r}"]))
    for r in range(144): mid.append(raw(f"v_mov_b32_e32 v{G.V_O+r}, 0", "valu", [], [f"v{G.V_O+r}"]))
    for r in range(20): mid.append(raw(f"v_accvgpr_write_b32 a{G.A_L+r}, 0", "valu", [], [f"a{G.A_L+r}"]))
    mid += [raw(f"s_mov_b32 s{S_KO}, s{S_HO}"), raw(f"s_mov_b32 s{S_CNT}, 39")]
    L = G.NSTEP - 1
    vb = L & 1
    p2 = [lab("L_sp2")] + dma(G.S_K, 0) + dma(G.S_V, 4096) + [full()] + kreads()
    for dt in range(8):
        r = G.Vreg(vb, dt)
        p2.append(raw(f"ds_read_b64_tr_b16 {rs('a', r, 2)}, v{VA1 if dt & 1 else VA0} offset:{(dt>>1)*256}", "lds_r", [], R("a", r, 2)))
    p2.append(full())
    for t in range(G.NT): p2 += qk(t, True)
    for t in range(G.NT):
        p2 += [G.exp_ins(0, L, t, 0, r, None) for r in range(4)]
    for t in range(G.NT):
        p2 += [G.cvt_ins(0, L, t, p) for p in range(2)]
    for t in range(G.NT):
        p2 += [G.pv_mfma(0, L, t, dt) for dt in range(8)] + [G.sum_mfma(0, L, t)]
    p2 += loopend("L_sp2")
    fin = []
    for t in range(G.NT):
        hd, acc, per = G.epilogue(0, t)
        fin += [hd[0], hd[2]] + hd[3:]
        for vs, w in per: fin += vs + [w]
    for b0 in range(0, 20, 4):
        dr = [G.o_drain(0, b, 0, G.A_K + 4 * (b & 3)) for b in range(b0, b0 + 4)]
        fin += [d[1] for d in dr] + [dr[0][0], full()] + [d[2] for d in dr]
    fin.append(full())
    nxt = [lab("L_snext"), raw(f"s_add_u32 s{S_J}, s{S_J}, 1"), raw(f"s_add_u32 s{S_HO}, s{S_HO}, {G.JOBSTRIDE}"),
           raw(f"s_cmp_lt_u32 s{S_J}, 4"), raw("s_cbranch_scc1 L_sj", "branch")]
    insert_nops([[head, job, p1, p1, mid, p2, p2, fin, nxt, job]])
    return [head, job, p1, mid, p2, fin, nxt]
```

```python
import sys, struct
from core import *

NAME = "standalone__mha_softmax__near_ridge"
HEAD = 624 * 256
TOTAL = 512 * HEAD
OOB = 0x40000000
import os
NS = int(os.environ.get("NS", "4"))
KRING = 0
VRING = NS * 8192
STAGE = 2 * NS * 8192
FLAGS = STAGE + 4 * 20480
LDS_BYTES = min(163840, FLAGS + 256)
NT = 5
NSTEP = 20
JOBSTRIDE = 128 * HEAD
CSCALE = 0.08838834764831845 * 1.4426950408889634
THRESH = float(2 ** 30)
def f32bits(x): return struct.unpack("<I", struct.pack("<f", x))[0]

class Cfg:
    pk_epi = False
    qflags = 'nt'
    kvflags = 'nt'
    oflags = 'nt'
    prof = False
    dbgt = False
cfg = Cfg()

V_TMP0 = 0
V_VOFF, V_KADDR, V_VA0, V_VA1, V_LIN, V_OW0, V_OW1, V_QADDR = 1, 2, 3, 4, 5, 6, 7, 8
V_OW2, V_OW3 = 9, 10
V_VOFF1 = 25
V_QS = [12, 16, 28, 32]
V_RCP = 20
V_CNT, V_FW, V_FR, V_FT = 22, 23, 24, 11
V_MX = 26
V_NEGM = 36
V_S = 56
V_U = 96
V_O = 112
A_Q = 0
A_K = 80
A_V = 144
A_L = 208
A_ONE = 228
A_RB = 232
A_O = 240
def Oloc(t, dt):
    if t == 0: return ("v", V_O + 4 * dt) if dt < 4 else ("a", A_O + 4 * (dt - 4))
    return ("v", V_O + 16 + 32 * (t - 1) + 4 * dt)
def Oreg(t, dt):
    f, r = Oloc(t, dt)
    return r if f == "v" else V_U + 4 * (dt - 4)
def Sreg(t, kt, i):
    if i & 1 == 0: return V_S + 8 * t + 4 * kt
    return V_S + 8 * t + 4 if kt == 0 else V_U + 4 * (t & 3)
def Preg(t, i): return V_S + 8 * t + 4 * (i & 1)
def Nreg(t): return V_NEGM + 4 * t
def Qreg(t, s): return A_Q + 16 * t + 4 * s
def Kreg(b, kt, s): return A_K + 32 * b + 16 * kt + 4 * s
def Vreg(b, dt): return A_V + 32 * b + 4 * dt
def Lreg(t): return A_L + 4 * t

S_Q, S_K, S_V, S_O = 8, 12, 16, 20
S_W = 24
S_JOB = 25
S_KVC, S_KVN, S_KV19 = 26, 27, 28
S_QN, S_QN4, S_QC, S_QC4, S_OP, S_OP4 = 29, 30, 31, 32, 33, 34
S_LW = 35
S_LST = 36
S_C = 37
S_MASK = 38
S_THR = 39
S_FACC = 40
S_FAIL = 42
S_PBIT, S_CBIT = 43, 44
S_T0, S_T1, S_T2, S_T3 = 45, 46, 47, 48
S_W19 = 49
S_T4OFF = 50
S_QREL = 51
S_H0 = 52
S_SPIN = 53
S_CAP = 101
S_X0 = 54
S_CHK = 102 - 2

S_CHK = 58
def srd(b): return f"s[{b}:{b+3}]"

def salu(text, rd=(), wr=(), aff=0): return I(text, "salu", rd, wr, aff)
def valu(text, rd=(), wr=(), aff=0, kind="valu"): return I(text, kind, rd, wr, aff)

def mfma(dF, d, aF, a, bF, b, cF, c, dtag, atag, btag, ctag, k16=False, aff=0):
    n = 2 if k16 else 4
    op = "v_mfma_f32_16x16x16_bf16" if k16 else "v_mfma_f32_16x16x32_bf16"
    ctext = "0" if c is None else rs(cF, c, 4)
    A = R(aF, a, n); B = R(bF, b, n); C = [] if c is None else R(cF, c, 4)
    return I(f"{op} {rs(dF,d,4)}, {rs(aF,a,n)}, {rs(bF,b,n)}, {ctext}", "mfma",
             tagged(A, atag) + tagged(B, btag) + tagged(C, ctag), tagged(R(dF, d, 4), dtag), aff, ab=A + B, c=C)

def pv_mfma(j, i, t, dt):
    k16 = i == NSTEP - 1
    f, r = Oloc(t, dt)
    c = None if i == 0 else r
    return mfma(f, r, "a", Vreg(i & 1, dt), "v", Preg(t, i), f, c,
                ("O", j, i, t, dt), ("Vf", j, i, dt), ("P", j, i, t), ("O", j, i - 1, t, dt), k16, aff=j)
def sum_mfma(j, i, t):
    k16 = i == NSTEP - 1
    c = None if i == 0 else Lreg(t)
    return mfma("a", Lreg(t), "a", A_ONE, "v", Preg(t, i), "a", c,
                ("L", j, i, t), ("one", None), ("P", j, i, t), ("L", j, i - 1, t), k16, aff=j)
def qk_mfma(j, i, t, kt, s):
    if s == 0:
        c = None if i == 0 else Nreg(t); ctag = ("negm", j, t)
    else:
        c = Sreg(t, kt, i); ctag = ("S", j, i, t, kt, s - 1)
    return mfma("v", Sreg(t, kt, i), "a", Kreg(i & 1, kt, s), "a", Qreg(t, s), "v", c,
                ("S", j, i, t, kt, s), ("Kf", j, i, kt, s), ("Q", j, t, s), ctag, aff=j)

def k_read(j, i, kt, s):
    off = KRING + (i % NS) * 8192 + kt * 4096 + s * 256
    r = Kreg(i & 1, kt, s)
    return I(f"ds_read_b128 {rs('a',r,4)}, v{V_KADDR} offset:{off}", "lds_r",
             [(f"v{V_KADDR}", None), (f"KV{i%NS}", ("Kv", j, i))], tagged(R("a", r, 4), ("Kf", j, i, kt, s)), j)
def v_read(j, i, dt, half):
    off = (i % NS) * 8192 + half * 4096 + (dt >> 1) * 256
    r = Vreg(i & 1, dt) + 2 * half
    va = V_VA1 if dt & 1 else V_VA0
    wr = [(f"a{r+x}", ("Vf", j, i, dt, 2 * half + x)) for x in range(2)]
    return I(f"ds_read_b64_tr_b16 {rs('a',r,2)}, v{va} offset:{off}", "lds_r",
             [(f"v{va}", None), (f"VV{i%NS}", ("Vv", j, i))], wr, j)
def q_read(j, t, s):
    off = t * 4096 + s * 256
    r = Qreg(t, s)
    need = [(f"ST{t*4+rb}", ("Qs", j, t * 4 + rb)) for rb in range(4)]
    return I(f"ds_read_b128 {rs('a',r,4)}, v{V_QADDR} offset:{off}", "lds_r",
             [(f"v{V_QADDR}", None)] + need, tagged(R("a", r, 4), ("Q", j, t, s)), j)

def kv_dma(which, j, tile):
    st = S_T0 if which == "K" else S_T1
    sr = S_K if which == "K" else S_V
    ring = KRING if which == "K" else VRING
    out = []
    stag = ("so" + which, j, tile)
    if tile == NSTEP - 1:
        assert j == 0
        out.append(salu(f"s_mov_b32 s{st}, s{S_KV19}", [(f"s{S_KV19}", ("kv19", j))], [(f"s{st}", stag)], j))
    else:
        base = S_KVC if j == 0 else S_KVN
        out.append(salu(f"s_add_u32 s{st}, s{base}, {tile*8192}", [(f"s{base}", ("kvb", j))], [(f"s{st}", stag)], j))
    mtag = ("m0" + which, j, tile)
    out.append(salu(f"s_add_u32 m0, s{S_LW}, {ring + (tile % NS) * 8192}", [], [("m0", mtag)], j))
    for a in range(2):
        res = ("KR" if which == "K" else "VR") + f"{tile % NS}_{a}"
        free = ("KF" if which == "K" else "VF") + f"{tile % NS}"
        o = " offset:1024" if a else ""
        if cfg.kvflags: o += " " + cfg.kvflags
        out.append(I(f"buffer_load_dwordx4 v{V_VOFF1 if a else V_VOFF}, {srd(sr)}, s{st} offen{o} lds", "dma2" if a else "dma",
                     [("m0", mtag), (f"s{st}", stag), (f"v{V_VOFF}", None), (free, ("free" + which, j, tile))],
                     [(res, (which + "d", j, tile, a))], j))
    return out

def mkbarrier(pubK, pubV, doneK, doneV):
    need = []; wr = []
    for nm, tiles in (("K", pubK), ("V", pubV)):
        for x in tiles:
            need += [(f"{nm}R{x%NS}_{a}", (nm + "d", x // NSTEP, x % NSTEP, a)) for a in range(2)]
            wr.append((f"{nm}V{x%NS}", (nm + "v", x // NSTEP, x % NSTEP)))
    for x in doneK:
        for kt in range(2):
            for s in range(4): need += [(r, None) for r in R("a", Kreg(x & 1, kt, s), 4)]
        f = x + NS
        wr += [(f"KF{f%NS}", ("freeK", f // NSTEP, f % NSTEP)), (f"KV{x%NS}", ("dead", None))]
    for x in doneV:
        for dt in range(8): need += [(r, None) for r in R("a", Vreg(x & 1, dt), 4)]
        f = x + NS
        wr += [(f"VF{f%NS}", ("freeV", f // NSTEP, f % NSTEP)), (f"VV{x%NS}", ("dead", None))]
    return I("s_barrier", "barrier", [], wr, 0, need=need)

def barrier(i):
    if cfg.bar2:
        return mkbarrier([i + 1, i + 2], [i, i + 1], [i - 1, i], [i - 2, i - 1])
    return mkbarrier([i + 1], [i], [i], [i - 1])

def flag_ops(i):
    if i & 1 == 0: b = mkbarrier([i + 1], [], [i], [i - 2, i - 1])
    else: b = mkbarrier([i + 1], [i - 1, i], [i], [])
    tg = lambda n, k: (n, k // NSTEP, k % NSTEP)
    inc = valu(f"v_add_u32_e32 v{V_CNT}, 1, v{V_CNT}", [(f"v{V_CNT}", tg("cnt", i - 1)), ("chkd", tg("chkd", i - 1))], [(f"v{V_CNT}", tg("cnt", i))])
    pub = I(f"ds_write_b32 v{V_FW}, v{V_CNT}", "lds_w32", [(f"v{V_CNT}", tg("cnt", i))], [("pub", tg("pub", i))] + [x for x in b.wr if x[1][0] == "dead"], 0, need=b.need)
    rd = I(f"ds_read_b32 v{V_FT}, v{V_FR}", "lds_r", [("pub", tg("pub", i))], [(f"v{V_FT}", tg("ft", i))])
    cmp_ = valu(f"v_cmp_lt_u32_e32 vcc, v{V_FT}, v{V_CNT}", [(f"v{V_FT}", tg("ft", i)), (f"v{V_CNT}", tg("cnt", i))], [("vcc", tg("fc", i))])
    br = I(f"s_cbranch_vccnz L_rt{i % NSTEP}", "branch", [("vcc", tg("fc", i))], b.wr + [("chkd", tg("chkd", i))])
    return inc, pub, rd, cmp_, [br, I(f"L_bk{i % NSTEP}:", "salu0")]

def retry_stubs():
    o = []
    for i in range(NSTEP):
        o += [I(f"L_rt{i}:", "label"),
              raw(f"ds_read_b32 v{V_FT}, v{V_FR}", "lds_r"), raw(f"s_sub_u32 s{S_SPIN}, s{S_SPIN}, 1"), raw(f"s_cbranch_scc1 L_giveup{i}", "branch"),
              raw("s_waitcnt lgkmcnt(0)", "wait"), raw(f"v_cmp_lt_u32_e32 vcc, v{V_FT}, v{V_CNT}", "valu"), raw("s_nop 1", "nop"),
              raw(f"s_cbranch_vccnz L_rt{i}", "branch"), raw(f"s_branch L_bk{i}", "branch"),
              I(f"L_giveup{i}:", "label"), raw(f"s_mov_b32 s{S_SPIN}, 0"), raw("s_waitcnt lgkmcnt(0)", "wait"), raw(f"s_branch L_bk{i}", "branch")]
    return o

def blk_goff(b):
    return (b & 3) * 1024

def q_load(j, b, q):
    t = b >> 2
    stag = ("soQ", j, t)
    so = None
    if b & 3 == 0:
        if t == 4:
            bs = S_QN4 if j == 1 else S_QC4
            so = salu(f"s_mov_b32 s{S_T2}, s{bs}", [(f"s{bs}", ("qb4", j))], [(f"s{S_T2}", stag)], j)
        else:
            bs = S_QN if j == 1 else S_QC
            so = salu(f"s_add_u32 s{S_T2}, s{bs}, {t*4096}", [(f"s{bs}", ("qb", j))], [(f"s{S_T2}", stag)], j)
    go = blk_goff(b)
    o = f" offset:{go}" if go else ""
    nt = (" " + cfg.qflags) if cfg.qflags else ""
    ld = I(f"buffer_load_dwordx4 {rs('v',q,4)}, v{V_VOFF1 if b & 1 else V_VOFF}, {srd(S_Q)}, s{S_T2} offen{o}{nt}", "vload",
           [(f"s{S_T2}", stag), (f"v{V_VOFF}", None)], tagged(R("v", q, 4), ("qs0", j, b)), j)
    return so, ld

def q_scale(j, b, q, pk=False, tmp=(12, 13)):
    vs = []
    if pk:
        U = [V_RCP, V_RCP + 1, V_MX, V_MX + 1]
        for x in range(4):
            r = q + x; u = U[x]
            vs.append(valu(f"v_lshlrev_b32_e32 v{u}, 16, v{r}", [(f"v{r}", ("qs0", j, b, x))], [(f"v{u}", ("u0", j, b, x))], j))
            vs.append(valu(f"v_and_b32_e32 v{r}, s{S_MASK}, v{r}", [(f"v{r}", ("qs0", j, b, x))], [(f"v{r}", ("qs1", j, b, x))], j))
        assert S_C & 1
        for base, x, ti, to in ((U[0], 0, "u0", "u1"), (q, 0, "qs1", "qs2"), (U[2], 2, "u0", "u1"), (q + 2, 2, "qs1", "qs2")):
            vs.append(valu(f"v_pk_mul_f32 v[{base}:{base+1}], v[{base}:{base+1}], s[{S_C-1}:{S_C}] op_sel:[0,1] op_sel_hi:[1,1]",
                           [(f"v{base+y}", (ti, j, b, x + y)) for y in range(2)], [(f"v{base+y}", (to, j, b, x + y)) for y in range(2)], j, "pk"))
        for x in range(4):
            r = q + x; u = U[x]
            vs.append(valu(f"v_cvt_pk_bf16_f32 v{r}, v{u}, v{r}", [(f"v{u}", ("u1", j, b, x)), (f"v{r}", ("qs2", j, b, x))],
                           [(f"v{r}", ("qs3", j, b, x))], j))
    else:
      for x in range(4):
        r = q + x; u = tmp[x & 1]
        vs.append(valu(f"v_lshlrev_b32_e32 v{u}, 16, v{r}", [(f"v{r}", ("qs0", j, b, x))], [(f"v{u}", ("u0", j, b, x))], j))
        vs.append(valu(f"v_and_b32_e32 v{r}, s{S_MASK}, v{r}", [(f"v{r}", ("qs0", j, b, x))], [(f"v{r}", ("qs1", j, b, x))], j))
        vs.append(valu(f"v_mul_f32_e32 v{u}, s{S_C}, v{u}", [(f"v{u}", ("u0", j, b, x))], [(f"v{u}", ("u1", j, b, x))], j))
        vs.append(valu(f"v_mul_f32_e32 v{r}, s{S_C}, v{r}", [(f"v{r}", ("qs1", j, b, x))], [(f"v{r}", ("qs2", j, b, x))], j))
        vs.append(valu(f"v_cvt_pk_bf16_f32 v{r}, v{u}, v{r}", [(f"v{u}", ("u1", j, b, x)), (f"v{r}", ("qs2", j, b, x))],
                       [(f"v{r}", ("qs3", j, b, x))], j))
    wr = I(f"ds_write_b128 v{V_LIN}, {rs('v',q,4)} offset:{b*1024}", "lds_w128",
           [(f"v{V_LIN}", None), (f"ST{b}", ("Ofree", j - 2, b))] + tagged(R("v", q, 4), ("qs3", j, b)), [(f"ST{b}", ("Qs", j, b))], j)
    return vs, wr

def o_drain(j, b, buf, reg=None):
    t = b >> 2
    r = A_RB + 4 * buf if reg is None else reg
    stag = ("soO", j, t)
    so = None
    if b & 3 == 0:
        if t == 4:
            so = salu(f"s_mov_b32 s{S_T3}, s{S_OP4}", [(f"s{S_OP4}", ("qb4", j))], [(f"s{S_T3}", stag)], j)
        else:
            so = salu(f"s_add_u32 s{S_T3}, s{S_OP}, {t*4096}", [(f"s{S_OP}", ("qb", j))], [(f"s{S_T3}", stag)], j)
    rdeps = [(f"SO{t}_{dt}", ("Ow", j, t, dt)) for dt in range(8)]
    rd = I(f"ds_read_b128 {rs('a',r,4)}, v{V_LIN} offset:{b*1024}", "lds_r",
           [(f"v{V_LIN}", None)] + rdeps, tagged(R("a", r, 4), ("rb", j, b)) + [(f"ST{b}", ("Ofree", j, b))], j)
    go = blk_goff(b)
    o = f" offset:{go}" if go else ""
    nt = (" " + cfg.oflags) if cfg.oflags else ""
    st = I(f"buffer_store_dwordx4 {rs('a',r,4)}, v{V_VOFF1 if b & 1 else V_VOFF}, {srd(S_O)}, s{S_T3} offen{o}{nt}", "vstore",
           tagged(R("a", r, 4), ("rb", j, b)) + [(f"s{S_T3}", stag), (f"v{V_VOFF}", None)], [], j, note=f"free{b}")
    return so, rd, st

def exp_ins(j, i, t, kt, r, srctag):
    reg = Sreg(t, kt, i) + r
    return valu(f"v_exp_f32_e32 v{reg}, v{reg}", [(f"v{reg}", srctag)], [(f"v{reg}", ("E", j, i, t, kt, r))], j, "trans")
def cvt_ins(j, i, t, p):
    kt = p >> 1; r = (p & 1) * 2
    a = Sreg(t, kt, i) + r; d = Preg(t, i) + p
    txt = f"v_cvt_pk_bf16_f32 v{d}, v{a}, v{a+1}"
    return valu(txt,
                [(f"v{a}", ("E", j, i, t, kt, r)), (f"v{a+1}", ("E", j, i, t, kt, r + 1))], [(f"v{d}", ("P", j, i, t, p))], j)

def max_chain(j, t):
    m0 = V_MX; m1 = m0 + 1
    s = Sreg(t, 0, 0)
    def st(x): return (f"v{s+x}", ("S", j, 0, t, x >> 2, 3, x & 3))
    T = lambda n: ("mx", j, t, n)
    ch = [
        valu(f"v_max3_f32 v{m0}, v{s}, v{s+1}, v{s+2}", [st(0), st(1), st(2)], [(f"v{m0}", T(2))], j),
        valu(f"v_max_f32_e32 v{m1}, v{m0}, v{s+3}", [(f"v{m0}", T(2)), st(3)], [(f"v{m1}", T(3))], j),
        valu(f"v_max_f32_e32 v{m0}, v{m0}, v{s+3}", [(f"v{m0}", T(2)), st(3)], [(f"v{m0}", T(3))], j),
        valu(f"v_permlane32_swap_b32_e32 v{m0}, v{m1}", [(f"v{m0}", T(3)), (f"v{m1}", T(3))], [(f"v{m0}", T(4)), (f"v{m1}", T(5))], j, "perm"),
        valu(f"v_max_f32_e32 v{m0}, v{m0}, v{m1}", [(f"v{m0}", T(4)), (f"v{m1}", T(5))], [(f"v{m0}", T(6))], j),
        valu(f"v_mov_b32_e32 v{m1}, v{m0}", [(f"v{m0}", T(6))], [(f"v{m1}", T(6))], j),
        valu(f"v_permlane16_swap_b32_e32 v{m0}, v{m1}", [(f"v{m0}", T(6)), (f"v{m1}", T(6))], [(f"v{m0}", T(7)), (f"v{m1}", T(8))], j, "perm"),
    ]
    n = Nreg(t)
    for x in range(2):
        txt = f"v_min3_f32 v{n+x}, -v{m0}, -v{m1}, s{S_CAP}" if t == NT - 1 else f"v_min_f32_e64 v{n+x}, -v{m0}, -v{m1}"
        ch.append(valu(txt, [(f"v{m0}", T(7)), (f"v{m1}", T(8))], [(f"v{n+x}", ("negm", j, t, x))], j))
    ch.append(valu(f"v_mov_b64_e32 v[{n+2}:{n+3}], v[{n}:{n+1}]", [(f"v{n+x}", ("negm", j, t, x)) for x in range(2)],
                   [(f"v{n+2+x}", ("negm", j, t, 2 + x)) for x in range(2)], j))
    adds = {}
    for x in range(8):
        n = Nreg(t)
        adds[(x >> 2, x & 3)] = valu(f"v_add_f32_e32 v{s+x}, v{n}, v{s+x}", [(f"v{n}", ("negm", j, t, 0)), st(x)],
                                     [(f"v{s+x}", ("Sm", j, t, x))], j)
    return ch, adds

def epilogue(j, t, pk=False):
    L = NSTEP - 1
    rc = V_RCP + (t & 1)
    head = [
        valu(f"v_accvgpr_read_b32 v{rc}, a{Lreg(t)}", [(f"a{Lreg(t)}", ("L", j, L, t, 0))], [(f"v{rc}", ("l", j, t))], j),
        valu(f"v_cmp_nge_f32_e64 s[{S_CHK}:{S_CHK+1}], s{S_THR}, v{rc}", [(f"v{rc}", ("l", j, t))], [(f"s{S_CHK}", ("chk", j, t))], j),
        valu(f"v_rcp_f32_e32 v{rc}, v{rc}", [(f"v{rc}", ("l", j, t))], [(f"v{rc}", ("rl", j, t))], j, "trans"),
    ]
    acc = salu(f"s_or_b64 s[{S_FACC}:{S_FACC+1}], s[{S_FACC}:{S_FACC+1}], s[{S_CHK}:{S_CHK+1}]", [(f"s{S_CHK}", ("chk", j, t)), ("facc", ("facc", j, t - 1))],
               [("facc", ("facc", j, t)), ("scc", None)], j)
    per = []
    for dt in range(8):
        o = Oreg(t, dt)
        vs = []
        if Oloc(t, dt)[0] == "a":
            ar = Oloc(t, dt)[1]
            for x in range(4):
                head.append(valu(f"v_accvgpr_read_b32 v{o+x}, a{ar+x}", [(f"a{ar+x}", ("O", j, L, t, dt, x))], [(f"v{o+x}", ("O", j, L, t, dt, x))], j))
        if pk:
            rb = rc & ~1
            sel = "op_sel:[0,1] op_sel_hi:[1,1]" if rc & 1 else "op_sel_hi:[1,0]"
            for x in (0, 2):
                vs.append(valu(f"v_pk_mul_f32 v[{o+x}:{o+x+1}], v[{o+x}:{o+x+1}], v[{rb}:{rb+1}] {sel}",
                               [(f"v{rc}", ("rl", j, t))] + [(f"v{o+x+y}", ("O", j, L, t, dt, x + y)) for y in range(2)],
                               [(f"v{o+x+y}", ("On", j, t, dt, x + y)) for y in range(2)], j, "pk"))
        else:
          for x in range(4):
            vs.append(valu(f"v_mul_f32_e32 v{o+x}, v{rc}, v{o+x}", [(f"v{rc}", ("rl", j, t)), (f"v{o+x}", ("O", j, L, t, dt, x))],
                           [(f"v{o+x}", ("On", j, t, dt, x))], j))
        vs.append(valu(f"v_cvt_pk_bf16_f32 v{o}, v{o}, v{o+1}", [(f"v{o}", ("On", j, t, dt, 0)), (f"v{o+1}", ("On", j, t, dt, 1))],
                       [(f"v{o}", ("Ob", j, t, dt, 0))], j))
        vs.append(valu(f"v_cvt_pk_bf16_f32 v{o+1}, v{o+2}, v{o+3}", [(f"v{o+2}", ("On", j, t, dt, 2)), (f"v{o+3}", ("On", j, t, dt, 3))],
                       [(f"v{o+1}", ("Ob", j, t, dt, 1))], j))
        ow = V_OW1 if dt & 1 else V_OW0
        off = t * 4096 + (dt >> 1) * 256
        w = I(f"ds_write_b64 v{ow}, {rs('v',o,2)} offset:{off}", "lds_w64",
              [(f"v{ow}", None)] + tagged(R("v", o, 2), ("Ob", j, t, dt)),
              [(f"SO{t}_{dt}", ("Ow", j, t, dt))] + [(f"ST{t*4+rb}", ("Ob", j)) for rb in range(4)], j)
        per.append((vs, w))
    if cfg.w2:
        per2 = []
        for da, db in ((0, 4), (1, 5), (2, 6), (3, 7)):
            (va, wa), (vb, wb) = per[da], per[db]
            ow = (V_OW1 if da & 1 else V_OW0) if da < 2 else (V_OW3 if da & 1 else V_OW2)
            w = I(f"ds_write2st64_b64 v{ow}, {rs('v', Oreg(t, da), 2)}, {rs('v', Oreg(t, db), 2)} offset0:{t*8} offset1:{t*8+1}", "lds_w128",
                  wa.rd + wb.rd, wa.wr + wb.wr, j)
            nm = len(va) - 2
            per2.append((va[:nm] + vb[:nm] + va[nm:] + vb[nm:], w))
        per = per2
    return head, acc, per

def fail_commit(j):
    return [
        salu(f"s_cmp_lg_u64 s[{S_FACC}:{S_FACC+1}], 0", [("facc", ("facc", j, 4))], [("scc", ("fc", j))], j),
        salu(f"s_cselect_b32 s{S_X0}, s{S_PBIT}, 0", [("scc", ("fc", j)), (f"s{S_PBIT}", ("bit", j))], [(f"s{S_X0}", None)], j),
        salu(f"s_or_b32 s{S_FAIL}, s{S_FAIL}, s{S_X0}", [], [("scc", None)], j),
        salu(f"s_mov_b64 s[{S_FACC}:{S_FACC+1}], 0", [], [("facc", ("facc", j + 1, -1))], j),
    ]

class Task:
    n = 0
    def __init__(self, ins, rel, dl, preds=(), zone=False):
        self.ins = ins if isinstance(ins, list) else [ins]
        self.kind = self.ins[0].kind
        self.cost = sum(COST[x.kind] for x in self.ins)
        self.rel = rel; self.dl = dl; self.preds = list(preds); self.succ = []
        self.zone = zone
        self.g = None; self.id = Task.n; Task.n += 1
        for p, d in self.preds: p.succ.append((self, d))

class Sched:
    def __init__(self):
        self.sp = []
        self.sc = []; self.mem = []; self.val = []
        self.it_start = []
        self.tasks = []
        self.bars = []
    def add(self, m):
        self.sp.append(m); self.sc.append([]); self.mem.append([]); self.val.append([])
        return len(self.sp) - 1
    @property
    def G(self): return len(self.sp)
    def load(self, g):
        g %= self.G
        nsc = sum(1 for x in self.sc[g] if x.kind != "label" or x.need)
        return sum(COST[x.kind] for x in self.mem[g] + self.val[g]) + 4 * max(0, nsc - 1)
    def put(self, ins, g):
        w = g // self.G
        if w: ins = ins.shifted(-w)
        gg = g % self.G
        ins.gap = gg
        if ins.kind == "salu0": ins.kind = "label"; self.sc[gg].append(ins)
        elif ins.kind in ("salu", "barrier", "branch"): self.sc[gg].append(ins)
        elif ins.kind in VALU_KINDS: self.val[gg].append(ins)
        else: self.mem[gg].append(ins)
        return g
    def task(self, ins, rel, dl, preds=(), zone=False):
        t = Task(ins, rel, dl, preds, zone); self.tasks.append(t); return t
    def forbidden(self, g):
        g %= self.G
        if not self.bars: return False
        for b in self.bars + [self.bars[0] + self.G]:
            if b - cfg.zpre <= g <= b + cfg.zpost: return True
        return False
    def run(self, cut, carry=frozenset(), clip=True):
        G = self.G
        for t in self.tasks:
            for p, d in t.preds: t.rel = max(t.rel, p.rel + d)
        for t in self.tasks:
            t.off = -((t.rel - cut) // G) * G
            if t.id in carry: t.off -= G
            t.r = max(cut, t.rel + t.off); t.d = min(t.dl + t.off, cut + G - 1) if clip else t.dl + t.off
        for t in self.tasks:
            t.lp = [(p, d) for p, d in t.preds if p.off == t.off]
            for p, d in t.preds:
                if p.off != t.off:
                    assert p.off == t.off + G, (t.ins[0].text, p.ins[0].text)
                    if clip or t.id in carry: p.d = min(p.d, t.r + G - d)
                    else: p.xs = getattr(p, "xs", []) + [(t, d)]
        for t in reversed(self.tasks):
            for s_, d in t.succ:
                if s_.off == t.off: t.d = min(t.d, s_.d - d)
            for s_, d in getattr(t, "xs", []): t.d = min(t.d, s_.d + G - d)
            if t.zone:
                while self.forbidden(t.d): t.d -= 1
            assert t.d >= t.r, ("infeasible", t.ins[0].text, t.r, t.d)
        pend = sorted(self.tasks, key=lambda t: t.r)
        act = []; pi = 0
        lastz = [-99]
        def ready(t, g):
            if t.zone and (self.forbidden(g) or (g - lastz[0] < cfg.bigsep and t.d > g)): return False
            return all(p.g is not None and p.g + d <= g for p, d in t.lp)
        def commit(t, g):
            t.g = g; act.remove(t)
            if t.zone: lastz[0] = g
            for x in t.ins: self.put(x, g - t.off)
        for g in range(cut, cut + G):
            while pi < len(pend) and pend[pi].r <= g: act.append(pend[pi]); pi += 1
            key = lambda t: (t.d, t.id)
            isbar = (g % G) in self.bars
            while True:
                rs_ = sorted([t for t in act if t.kind in ("salu", "branch") and ready(t, g)], key=key)
                if rs_ and (not self.sc[g % G] or rs_[0].d <= g): commit(rs_[0], g)
                else: break
            def chain_before(t):
                ch_ = []
                while True:
                    un = [(p, d) for p, d in t.lp if p.g is None or p.g + d > g]
                    if not un: return ch_
                    if len(un) > 1 or un[0][1] != 0 or un[0][0] not in act or un[0][0].kind not in ("valu",): return None
                    t = un[0][0]; ch_.insert(0, t)
                    if len(ch_) > 5: return None
            cap = 8
            if not isbar and self.load(g) == 0:
                for t in sorted([t for t in act if t.kind == "pk"], key=key):
                    ch_ = chain_before(t)
                    if ch_ is None: continue
                    others = [u for u in act if u.kind not in ("salu", "pk", "branch") and ready(u, g) and u not in ch_ and u.cost <= 8]
                    urgent = [u for u in others if key(u) < key(t)]
                    if len(urgent) > cfg.pkurg and t.d > g + 3 and len(t.ins) < 8: continue
                    for u in ch_: commit(u, g)
                    cap = 20
                    break
            while not isbar:
                free = cap - self.load(g)
                if free <= 0: break
                rd = sorted([t for t in act if t.kind not in ("salu", "pk", "branch") and ready(t, g)], key=key)
                if cap == 8:
                    def held(t):
                        n = 0
                        while t.kind == "valu" and len(t.succ) == 1 and t.succ[0][1] == 0 and n < 5:
                            t = t.succ[0][0]; n += 1
                            if t.kind == "pk": return True
                        return False
                    rd = [t for t in rd if not held(t)]
                if free == 8 and cap == 8:
                    if not rd: break
                    t = rd[0]
                    if t.cost == 4:
                        partner = any(u.cost == 4 for u in rd[1:]) or any(s_.cost == 4 and d == 0 and s_.kind != "salu" for s_, d in t.succ)
                        full = [u for u in rd if u.cost >= 8]
                        if not partner and full and t.d > g + 2: t = full[0]
                    commit(t, g)
                else:
                    rd = [t for t in rd if t.cost <= free]
                    if not rd: break
                    commit(rd[0], g)
            while True:
                f = sorted([t for t in act if ready(t, g) and (t.d <= g or (t.kind == "pk" and cap == 20))], key=key)
                if not f: break
                commit(f[0], g)
            late = [t for t in act if t.d <= g]
            assert not late, ("missed", g, late[0].ins[0].text, late[0].d)
        assert pi == len(pend) and (not act or not clip)
        self.left = {t.id for t in act}
    def linear(self, g0, g1):
        out = []
        for g in range(g0, g1):
            out.append(self.sp[g]); out += self.sc[g]; out += self.mem[g]; out += self.val[g]
        return out

def build_schedule(carry=frozenset(), clip=True):
    Task.n = 0
    S = Sched()
    NR = NSTEP // 2
    pv0 = {}; pvend = {}; qkend = {}; qk0 = {}; pvg = {}; qkg = {}
    rb = []
    for r in range(NR):
        rb.append(S.G); S.it_start.append(S.G)
        j, e = (-1, NSTEP - 2) if r == 0 else (0, 2 * r - 2)
        def qk(i, t):
            for kt in range(1 if i == NSTEP - 1 else 2):
                for s in range(4):
                    g = S.add(qk_mfma(0, i, t, kt, s)); qkg[(i, t, kt, s)] = g
                    if kt == 0 and s == 0: qk0[(i, t)] = g
                qkend[(i, t, kt)] = g
        for t in range(NT):
            if t == 3: S.it_start.append(S.G)
            pv0[(r, t)] = S.G
            if r == 0:
                for par in range(2):
                    for dt in range(8): pvg[(r, t, dt, par)] = S.add(pv_mfma(j, e + par, t, dt))
                    pvend[(r, t)] = S.add(sum_mfma(j, e + par, t))
            else:
                for dt in range(8):
                    for par in range(2): pvg[(r, t, dt, par)] = S.add(pv_mfma(j, e + par, t, dt))
                S.add(sum_mfma(j, e, t)); pvend[(r, t)] = S.add(sum_mfma(j, e + 1, t))
            qk(2 * r, t)
        for t in range(NT): qk(2 * r + 1, t)
    G = S.G
    its = S.it_start + [G]
    rb += [G, G + rb[1]]
    for t in range(NT):
        for d in range(2):
            pv0[(NR + d, t)] = pv0[(d, t)] + G; pvend[(NR + d, t)] = pvend[(d, t)] + G; qk0[(NSTEP + d, t)] = qk0[(d, t)] + G
        for dt in range(8):
            for par in range(2): pvg[(NR, t, dt, par)] = pvg[(0, t, dt, par)] + G
        for kt in range(2):
            for s in range(4): qkg[(NSTEP, t, kt, s)] = qkg[(0, t, kt, s)] + G; qkg[(NSTEP + 1, t, kt, s)] = qkg[(1, t, kt, s)] + G
    LAT = cfg.lat
    RL = cfg.rl
    T = S.task
    pubg = {}; chkg = {}
    for n in range(NSTEP + 1):
        base = rb[n // 2]
        pubg[n] = base + (cfg.pubA if n & 1 else cfg.pubB); chkg[n] = pubg[n] + cfg.fgap
    for n in range(NSTEP):
        inc, pub, rd, cmp_, br = flag_ops(n)
        a_ = T(inc, pubg[n] - 20, pubg[n] - 1)
        T(pub, pubg[n] - 1, pubg[n], [(a_, 1)], zone=True)
        b_ = T(rd, chkg[n] - 11, chkg[n] - 10)
        c_ = T(cmp_, chkg[n] - 3, chkg[n] - 2, [(b_, 7)])
        T(br, chkg[n], chkg[n], [(c_, 2)])
    mprev = None
    for i in range(NSTEP):
        for t in range(NT):
            nk = 1 if i == NSTEP - 1 else 2
            if i & 1 == 0: hi = qk0[(i + 1, t)] - 1
            else:
                hi = pv0[(i // 2 + 1, t)] - 1
                if t == 0 and nk == 2: hi = min(hi, qkg[(i, 4, 1, 0)] - 1)
            if i == 0:
                ch, adds = max_chain(0, t)
                p = mprev
                lo = qkend[(0, t, 0)] + LAT
                negs = []
                for n, x in enumerate(ch):
                    isneg = n >= len(ch) - 3
                    q = T(x, lo, lo + cfg.maxwin, [] if p is None else [(p, 1 if x.kind == "perm" else 0)])
                    p = q
                    if isneg: negs.append(q)
                mprev = p
            pc = None
            for kt in range(nk):
                es = []
                for r in range(4):
                    if i == 0:
                        a_ = T(adds[(kt, r)], qkend[(0, t, kt)] + LAT, hi, [(negs[0], 0)])
                        es.append(T(exp_ins(0, 0, t, kt, r, ("Sm", 0, t, 4 * kt + r)), lo, hi, [(a_, 0)]))
                    else:
                        es.append(T(exp_ins(0, i, t, kt, r, ("S", 0, i, t, kt, 3, r)), qkend[(i, t, kt)] + LAT, hi))
                    if r & 1:
                        pc = T(cvt_ins(0, i, t, 2 * kt + (r >> 1)), 0, hi, [(es[r - 1], 1), (es[r], 1)] + ([(pc, 0)] if pc else []))
    pd = None
    def dmas(lst, r0, step):
        nonlocal pd
        for x, (which, tile) in enumerate(lst):
            so, m0, d0, d1 = kv_dma(which, tile // NSTEP, tile % NSTEP)
            r = r0 + x * step
            a_ = T(so, r, r + 20, [(pd, 1)] if x else [])
            b_ = T(m0, r, r + 20, [(pd, 1)] if x else [])
            d1.kind = "dma"
            pd = T(d0, r, r + 12, [(a_, 1), (b_, 1)], zone=True)
            pd = T(d1, r, r + 20, [(pd, cfg.dsplit)], zone=True)
    for r in range(NR):
        e, o_ = 2 * r, 2 * r + 1
        kr = [k_read(0, o_, kt, s) for kt in range(1 if o_ == NSTEP - 1 else 2) for s in range(4)]
        lo = chkg[e] + 1; hi = pubg[o_] - RL
        pr_ = None
        for k, x in enumerate(kr):
            rr = lo + int(k * (hi - lo - cfg.rdwin) / len(kr))
            pr_ = T(x, rr, min(hi, rr + cfg.rdwin), [(pr_, 1)] if pr_ else [])
        items = []
        for dt in range(8):
            for par in range(2):
                for half in range(1 if e + par == NSTEP - 1 else 2):
                    items.append((v_read(0, e + par, dt, half), pvg[(r, 4, dt, par)] + 1, pvg[(r + 1, 0, dt, par)] - RL))
        for kt in range(2):
            for s in range(4):
                items.append((k_read((e + 2) // NSTEP, (e + 2) % NSTEP, kt, s), qkg[(e, 4, kt, s)] + 1, qkg[(e + 2, 0, kt, s)] - RL))
        lo = chkg[o_] + 1; hi = min(pubg[e + 2] - RL, max(d for _, _, d in items))
        items.sort(key=lambda z: z[2])
        vs_ = [x for x in items if "tr_b16" in x[0].text]; ks_ = [x for x in items if "tr_b16" not in x[0].text]
        h2 = len(vs_) // 2
        items = vs_[:h2] + weave2(vs_[h2:], ks_)
        pr_ = None
        for k, (x, a_, d_) in enumerate(items):
            rr = max(a_, lo + int(k * (hi - lo - cfg.rdwin - cfg.bmar) / len(items)))
            pr_ = T(x, rr, min(hi, d_, rr + cfg.rdwin), [(pr_, 1)] if pr_ else [])
        dmas([("V", e - 2 + NS), ("V", e - 1 + NS), ("K", e + NS)], chkg[e] + 1, cfg.dma2)
        dmas([("K", o_ + NS)], chkg[o_] + 1, 0)
    epi_w = {}
    pacc = None; qr = {}
    c0 = its[2] + cfg.c0
    step = (G - cfg.zpre - 2 - c0) / 20
    NQ = len(V_QS)
    wt = {}; lt = {}; drt = {}
    def mkload(b, rel, preds):
        so, ld = q_load(1, b, V_QS[b % NQ])
        if so is not None:
            preds = preds + [(T(so, max(1, rel - 4), rel + 30, [(lt[b - 1], 1)] if b else []), 1)]
        if b: preds = preds + [(lt[b - 1], 0)]
        lt[b] = T(ld, rel, rel + cfg.qldwin, preds, zone=True)
    for b in range(NQ): mkload(b, 6 + b * cfg.q0step, [])
    epi = {t: epilogue(0, t, pk=cfg.pk_epi) for t in range(NT)}
    pst = None; pv_ = None
    for b in range(20):
        lo = c0 + int(b * step); hi = c0 + int((b + 1) * step) - 1
        so, rd, st = o_drain(-1, b, b & 1)
        drt[b] = T(rd, lo - cfg.dlead if b else lo, hi - 1)
        pr = [(drt[b], 9)]
        if so is not None: pr.append((T(so, lo - cfg.dlead if b else lo, hi + 30, [(pst, 1)] if pst else []), 1))
        if pst: pr.append((pst, 0))
        pst = T(st, 0, min(hi + 30, G - 1), pr, zone=True)
        vs, wr = q_scale(1, b, V_QS[b % NQ], pk=b < cfg.qpk, tmp=(V_RCP, V_RCP + 1))
        p = pv_
        if b < cfg.qpk: vs = vs[:8] + [vs[8:12]] + vs[12:]
        for v in vs:
            p = T(v, lo, hi + cfg.qslack, [(p, 0)] if p else [])
        pv_ = p
        wt[b] = T(wr, lo, min(hi + cfg.qslack, G - 1), [(p, 1), (drt[b], 0)], zone=True)
        if b + NQ < 20: mkload(b + NQ, hi + cfg.qslack + 1, [(wt[b], 1)])
    for t in range(NT):
        for s_ in range(4):
            qr[(t, s_)] = T(q_read(1, t, s_), qkend[(NSTEP - 1, t, 0)] + 1, qk0[(NSTEP, t)] - 12, [(wt[4 * t + 3], 0)] + ([(qr[(t, s_ - 1)], 2)] if s_ else []))
    wslot = 0
    for t in range(NT):
        head, acc, per = epi[t]
        lo = pvend[(NR, t)] + LAT
        hi = pv0[(NR + 1, t)] - 2
        if t == 0: hi = qkg[(NSTEP + 1, 0, 1, 0)] - 12
        h0 = T(head[0], lo, lo + 2)
        h1 = T(head[1], lo, lo + 2, [(h0, 0)] + ([(pacc, 0)] if pacc else []))
        pacc = T(acc, lo, lo + 12, [(h1, cfg.accd)])
        h2 = T(head[2], lo, lo + 2, [(h1, 0)])
        burst = [v for vs, w in per for v in vs if v.kind == "pk"]
        pb = [(h2, 1)]
        p = None
        for x in head[3:]: p = T(x, lo, hi, [(p, 0)] if p else [])
        if p: pb.append((p, 0))
        bt = T(burst, lo, lo + cfg.bwin, pb)
        for dt, (vs, w) in enumerate(per):
            wslot = max(wslot + cfg.epistep * (2 if cfg.w2 else 1), lo + cfg.epi0)
            while S.forbidden(wslot): wslot += 1
            h = min(hi + dt, wslot)
            p = bt
            for v in vs:
                if v.kind != "pk": p = T(v, lo, h, [(p, 0)])
            T(w, h - 1, h, [(p, 1)] + [(qr[(t, s_)], 0) for s_ in range(4)], zone=True)
        if t == NT - 1:
            T(fail_commit(0), lo, hi, [(pacc, 1)])
    if cfg.tpf:
        g0 = its[cfg.tpf] + 20
        a_ = T([salu(f"s_getpc_b64 s[{S_X0}:{S_X0+1}]", [], [(f"s{S_X0}", ("pc", 0))]), I("L_pc2:", "salu0")], g0, g0 + 4)
        b_ = T(valu("v_lshlrev_b32_e32 v12, 6, v0", [], [("v12", ("tp", 0, 0))]), g0, g0 + 8, [(wt[16], 2)])
        c_ = T(valu("v_add_u32_e32 v12, L_tail-L_pc2, v12", [("v12", ("tp", 0, 0))], [("v12", ("tp", 0, 1))]), g0, g0 + 8, [(b_, 0)])
        d_ = T(valu("v_mov_b32_e32 v13, 0", [], [("v13", ("tp", 0, 2))]), g0, g0 + 8, [(wt[16], 2)])
        e_ = T(valu(f"v_lshl_add_u64 v[12:13], v[12:13], 0, s[{S_X0}:{S_X0+1}]", [("v12", ("tp", 0, 1)), ("v13", ("tp", 0, 2)), (f"s{S_X0}", ("pc", 0))],
                    [("v12", ("tp", 0, 3)), ("v13", ("tp", 0, 4))]), g0, g0 + 10, [(a_, 1), (c_, 0), (d_, 0)])
        T(I("global_load_dword v12, v[12:13], off", "vload", [("v12", ("tp", 0, 3)), ("v13", ("tp", 0, 4))], [("v12", None)]), g0, g0 + 16, [(e_, 1)], zone=True)
    cutb = cfg.cutb
    S.run(c0 + int(cutb * step) if cfg.cut is None else cfg.cut, carry, clip)
    if not clip: return S.left
    S.qkend = qkend; S.qk0 = qk0; S.pv0 = pv0
    sys.stderr.write(f"Q loads {[lt[b].g - lt[b].off for b in range(20)]} writes {[wt[b].g - wt[b].off for b in range(20)]}\n")
    return S, its

def raw(text, kind="salu", rd=(), wr=()): return I(text, kind, rd, wr)

def setup_code():
    o = []
    A = lambda t, k="salu", rd=(), wr=(): o.append(raw(t, k, [(r, None) for r in rd], [(r, None) for r in wr]))
    A("s_cmp_ge_u32 s2, 256"); A("s_cbranch_scc1 L_end", "branch")
    for b, off in ((S_K, 8), (S_Q, 0), (S_V, 16), (S_O, 24)):
        A(f"s_load_dwordx2 s[{b}:{b+1}], s[0:1], {off}")
    o.extend(code_prefetch())
    V = lambda t, rd=(), wr=(): A(t, "valu", rd, wr)
    V("v_lshrrev_b32_e32 v9, 6, v0", ["v0"], ["v9"])
    V("v_and_b32_e32 v0, 63, v0", ["v0"], ["v0"])
    V(f"v_readfirstlane_b32 s{S_W}, v9", ["v9"], [f"s{S_W}"])
    V("v_bfe_u32 v9, v0, 2, 2", ["v0"], ["v9"])
    V("v_bfe_u32 v10, v0, 3, 1", ["v0"], ["v10"])
    V("v_and_b32_e32 v11, 3, v0", ["v0"], ["v11"])
    V("v_xor_b32_e32 v10, v10, v11", ["v10", "v11"], ["v10"])
    V("v_lshlrev_b32_e32 v10, 4, v10", ["v10"], ["v10"])
    V("v_lshl_add_u32 v10, v9, 8, v10", ["v9", "v10"], ["v10"])
    V("v_lshrrev_b32_e32 v11, 4, v0", ["v0"], ["v11"])
    V(f"v_lshl_add_u32 v{V_VOFF}, v11, 6, v10", ["v11", "v10"], [f"v{V_VOFF}"])
    V(f"v_xor_b32_e32 v{V_VOFF1}, 32, v{V_VOFF}", [f"v{V_VOFF}"], [f"v{V_VOFF1}"])
    A(f"s_and_b32 s{S_X0}, s2, 7")
    A(f"s_lshr_b32 s{S_X0+1}, s2, 4")
    A(f"s_lshl_b32 s{S_X0}, s{S_X0}, 4")
    A(f"s_add_u32 s{S_X0}, s{S_X0}, s{S_X0+1}")
    A(f"s_mul_i32 s{S_H0}, s{S_X0}, {HEAD}")
    A(f"s_bfe_u32 s{S_X0}, s2, 0x10003")
    A(f"s_lshl_b32 s{S_LW}, s{S_W}, 11", rd=[f"s{S_W}"])
    A(f"s_mul_i32 s{S_LST}, s{S_W}, 20480")
    A(f"s_mul_i32 s{S_QREL}, s{S_X0}, {320*256}")
    A(f"s_add_u32 s{S_QREL}, s{S_QREL}, s{S_LST}")
    A(f"s_add_u32 s{S_LST}, s{S_LST}, {STAGE}")
    A(f"s_cmp_ge_u32 s{S_W}, 2")
    A(f"s_cselect_b32 s{S_W19}, {OOB}, {19*8192}")
    A(f"s_lshl_b32 s{S_X0}, s{S_X0}, 2")
    A(f"s_add_u32 s{S_X0}, s{S_X0}, s{S_W}")
    A(f"s_cmp_eq_u32 s{S_X0}, 7")
    A(f"s_cselect_b32 s{S_T4OFF}, {OOB}, {4*4096}")
    A(f"s_mov_b32 s{S_CAP}, 0x7f800000")
    A(f"s_cselect_b32 s{S_CAP}, 0xf149f2ca, s{S_CAP}")
    A(f"s_mov_b32 s{S_C}, {f32bits(CSCALE):#x}")
    A(f"s_mov_b32 s{S_MASK}, 0xffff0000")
    A(f"s_mov_b32 s{S_THR}, {f32bits(THRESH):#x}")
    A(f"s_mov_b64 s[{S_FACC}:{S_FACC+1}], 0")
    A(f"s_mov_b32 s{S_FAIL}, 0")
    A(f"s_mov_b32 s{S_JOB}, 4")
    A(f"s_mov_b32 s{S_CBIT}, 0")
    A(f"s_add_u32 s{S_KVN}, s{S_H0}, s{S_LW}")
    A(f"s_add_u32 s{S_QN}, s{S_H0}, s{S_QREL}")
    A(f"s_add_u32 s{S_QN4}, s{S_QN}, s{S_T4OFF}")
    A(f"s_mov_b32 s{S_QC}, {OOB}")
    A(f"s_mov_b32 s{S_QC4}, {OOB}")
    for b in (S_Q, S_K, S_V, S_O):
        A(f"s_mov_b32 s{b+2}, {TOTAL}"); A(f"s_mov_b32 s{b+3}, 0x20000")
    return o

def setup_addrs():
    o = []
    V = lambda t, rd=(), wr=(): o.append(raw(t, "valu", [(r, None) for r in rd], [(r, None) for r in wr]))
    V("v_bfe_u32 v9, v0, 2, 2", ["v0"], ["v9"])
    V("v_lshlrev_b32_e32 v9, 10, v9", ["v9"], ["v9"])
    V("v_and_b32_e32 v10, 3, v0", ["v0"], ["v10"])
    V("v_lshl_add_u32 v9, v10, 6, v9", ["v9", "v10"], ["v9"])
    V("v_bfe_u32 v10, v0, 1, 2", ["v0"], ["v10"])
    V("v_lshrrev_b32_e32 v11, 4, v0", ["v0"], ["v11"])
    V("v_xor_b32_e32 v12, v10, v11", ["v10", "v11"], ["v12"])
    V(f"v_lshl_add_u32 v{V_KADDR}, v12, 4, v9", ["v12", "v9"], [f"v{V_KADDR}"])
    V(f"v_add_u32_e32 v{V_QADDR}, s{S_LST}, v{V_KADDR}", [f"v{V_KADDR}"], [f"v{V_QADDR}"])
    V("v_lshrrev_b32_e32 v12, 5, v0", ["v0"], ["v12"])
    V("v_xor_b32_e32 v12, v10, v12", ["v10", "v12"], ["v12"])
    V("v_lshl_add_u32 v12, v12, 4, v9", ["v12", "v9"], ["v12"])
    V("v_bfe_u32 v13, v0, 4, 1", ["v0"], ["v13"])
    V("v_lshl_add_u32 v12, v13, 3, v12", ["v13", "v12"], ["v12"])
    V(f"v_add_u32_e32 v{V_OW0}, s{S_LST}, v12", ["v12"], [f"v{V_OW0}"])
    V(f"v_xor_b32_e32 v{V_OW1}, 32, v{V_OW0}", [f"v{V_OW0}"], [f"v{V_OW1}"])
    V("v_lshrrev_b32_e32 v9, 4, v0", ["v0"], ["v9"])
    V("v_lshlrev_b32_e32 v9, 10, v9", ["v9"], ["v9"])
    V("v_bfe_u32 v10, v0, 2, 2", ["v0"], ["v10"])
    V("v_lshl_add_u32 v9, v10, 6, v9", ["v9", "v10"], ["v9"])
    V("v_bfe_u32 v10, v0, 3, 2", ["v0"], ["v10"])
    V("v_bfe_u32 v11, v0, 1, 1", ["v0"], ["v11"])
    V("v_xor_b32_e32 v10, v10, v11", ["v10", "v11"], ["v10"])
    V("v_lshl_add_u32 v9, v10, 4, v9", ["v9", "v10"], ["v9"])
    V("v_and_b32_e32 v10, 1, v0", ["v0"], ["v10"])
    V("v_lshl_add_u32 v9, v10, 3, v9", ["v9", "v10"], ["v9"])
    V(f"v_add_u32_e32 v{V_VA0}, {VRING}, v9", ["v9"], [f"v{V_VA0}"])
    V(f"v_xor_b32_e32 v{V_VA1}, 32, v{V_VA0}", [f"v{V_VA0}"], [f"v{V_VA1}"])
    V("v_lshlrev_b32_e32 v9, 4, v0", ["v0"], ["v9"])
    V(f"v_add_u32_e32 v{V_LIN}, s{S_LST}, v9", ["v9"], [f"v{V_LIN}"])
    if cfg.flags:
        V("v_and_b32_e32 v9, 3, v0", ["v0"], ["v9"])
        V("v_lshlrev_b32_e32 v9, 2, v9", ["v9"], ["v9"])
        V(f"v_add_u32_e32 v{V_FR}, {FLAGS}, v9", ["v9"], [f"v{V_FR}"])
        V(f"v_mov_b32_e32 v9, s{S_W}", [], ["v9"])
        V("v_lshlrev_b32_e32 v9, 2, v9", ["v9"], ["v9"])
        V(f"v_add_u32_e32 v{V_FW}, {FLAGS}, v9", ["v9"], [f"v{V_FW}"])
        o.append(I(f"v_mov_b32_e32 v{V_CNT}, 1", "valu", [], [(f"v{V_CNT}", ("cnt", 0, 1)), ("chkd", ("chkd", 0, 1))]))
        o.append(raw(f"ds_write_b32 v{V_FW}, v{V_CNT}", "lds_w32", [(f"v{V_FW}", None), (f"v{V_CNT}", None)]))
        o.append(raw(f"s_mov_b32 s{S_SPIN}, 0x1000000"))
    V("v_mov_b32_e32 v9, 0x3f803f80", [], ["v9"])
    if cfg.sparse1:
        V("v_and_b32_e32 v10, 3, v0", ["v0"], ["v10"])
        V("v_cmp_eq_u32_e32 vcc, 0, v10", ["v10"], ["vcc"])
        V("v_cndmask_b32_e32 v9, 0, v9, vcc", ["v9", "vcc"], ["v9"])
    for x in range(4):
        o.append(I(f"v_accvgpr_write_b32 a{A_ONE+x}, v9", "valu", [("v9", None)], [(f"a{A_ONE+x}", ("one", None, x))]))
    V(f"v_add_u32_e32 v{V_OW2}, 256, v{V_OW0}", [f"v{V_OW0}"], [f"v{V_OW2}"])
    V(f"v_add_u32_e32 v{V_OW3}, 256, v{V_OW1}", [f"v{V_OW1}"], [f"v{V_OW3}"])
    return o

def rotate():
    o = []
    A = lambda t, rd=(), wr=(): o.append(salu(t, rd, wr))
    A(f"s_mov_b32 s{S_OP}, s{S_QC}", [], [(f"s{S_OP}", ("qb", -1))])
    A(f"s_mov_b32 s{S_OP4}, s{S_QC4}", [], [(f"s{S_OP4}", ("qb4", -1))])
    A(f"s_mov_b32 s{S_QC}, s{S_QN}", [], [(f"s{S_QC}", ("qb", 0))]); A(f"s_mov_b32 s{S_QC4}, s{S_QN4}", [], [(f"s{S_QC4}", ("qb4", 0))])
    A(f"s_mov_b32 s{S_KVC}, s{S_KVN}", [], [(f"s{S_KVC}", ("kvb", 0))])
    A(f"s_add_u32 s{S_KV19}, s{S_KVN}, s{S_W19}", [], [(f"s{S_KV19}", ("kv19", 0))])
    A(f"s_mov_b32 s{S_PBIT}, s{S_CBIT}", [], [(f"s{S_PBIT}", ("bit", -1))])
    A(f"s_lshl_b32 s{S_CBIT}, s{S_CBIT}, 1")
    A(f"s_max_u32 s{S_CBIT}, s{S_CBIT}, 1")
    A(f"s_cmp_gt_u32 s{S_JOB}, 1")
    A(f"s_cselect_b32 s{S_X0}, {JOBSTRIDE}, {OOB}")
    A(f"s_add_u32 s{S_KVN}, s{S_KVN}, s{S_X0}", [], [(f"s{S_KVN}", ("kvb", 1))])
    A(f"s_add_u32 s{S_QN}, s{S_QN}, s{S_X0}", [], [(f"s{S_QN}", ("qb", 1))])
    A(f"s_add_u32 s{S_QN4}, s{S_QN4}, s{S_X0}", [], [(f"s{S_QN4}", ("qb4", 1))])
    A(f"s_sub_u32 s{S_JOB}, s{S_JOB}, 1")
    return o

def tile_of(x):
    tg = x.wr[0][1]
    if tg[0] in ("S", "E", "P", "O", "L"): return (tg[2], tg[3])
    if tg[0] in ("mx", "negm", "Sm"): return (0, tg[2])
    return None

def code_prefetch():
    o = []
    A = lambda t, k="salu", rd=(), wr=(): o.append(raw(t, k, [(r, None) for r in rd], [(r, None) for r in wr]))
    if not cfg.cpf: return o
    A(f"s_getpc_b64 s[{S_X0+12}:{S_X0+13}]")
    A("L_pc:", "label")
    if cfg.cpf == 1:
        A(f"s_lshr_b32 s{S_X0}, s2, 3"); A(f"s_lshl_b32 s{S_X0}, s{S_X0}, 11")
        A("v_and_b32_e32 v26, 15, v0", "valu", ["v0"], ["v26"])
        A(f"v_lshl_add_u32 v26, v26, 7, s{S_X0}", "valu", ["v26"], ["v26"])
        A(f"v_min_u32_e32 v26, L_slow-L_pc, v26", "valu", ["v26"], ["v26"])
        A("v_mov_b32_e32 v27, 0", "valu", [], ["v27"])
        A(f"v_lshl_add_u64 v[26:27], v[26:27], 0, s[{S_X0+12}:{S_X0+13}]", "valu", ["v26", "v27"], ["v26", "v27"])
        A("global_load_dword v27, v[26:27], off", "vload", ["v26", "v27"], ["v27"])
        return o
    A("v_lshlrev_b32_e32 v26, 7, v0", "valu", ["v0"], ["v26"])
    for k in range(cfg.cpf):
        A(f"v_min_u32_e32 v27, L_slow-L_pc, v26", "valu", ["v26"], ["v27"])
        A(f"global_load_dword v27, v27, s[{S_X0+12}:{S_X0+13}]", "vload", ["v27"], ["v27"])
        if k + 1 < cfg.cpf: A("v_add_u32_e32 v26, 32768, v26", "valu", ["v26"], ["v26"])
    return o

def weave2(vs, ms):
    out = []; n = len(vs); k = len(ms); mi = 0
    for i, v in enumerate(vs):
        while mi < k and mi * n <= i * k: out.append(ms[mi]); mi += 1
        out.append(v)
    return out + ms[mi:]

def build_prologue(it01):
    o = []
    init = [("facc", ("facc", 0, -1))]
    for x in range(NS):
        init += [(f"KF{x}", ("freeK", 0, x)), (f"VF{x}", ("freeV", 0, x))]
    for b in range(20): init.append((f"ST{b}", ("Ofree", -2, b)))
    o.append(I("; init state", "label", [], init))
    land = lambda b: Oreg(b >> 2, b & 3)
    pend = []
    def kv(which, tile): pend.append(kv_dma(which, 0, tile))
    def qt(t):
        for b in range(4 * t, 4 * t + 4): pend.append([x for x in q_load(0, b, land(b)) if x is not None])
    kv("K", 0); qt(0); qt(1); kv("K", 1); qt(2); qt(3)
    if cfg.pord == 0: kv("V", 0); kv("V", 1); qt(4)
    else: qt(4); kv("V", 0); kv("V", 1)
    kv("K", 2); kv("K", 3)
    assert NS == 4
    order = [x for g in pend for x in g if x.kind in VMEM_KINDS]
    qidx = {x.wr[0][1][2]: n for n, x in enumerate(order) if x.kind == "vload"}
    cnt = [0]
    def issue(upto):
        r = []
        while pend and cnt[0] < upto:
            g = pend.pop(0); r.extend(g); cnt[0] += sum(1 for x in g if x.kind in VMEM_KINDS)
        return r
    o.extend(issue(cfg.pro_first))
    o.extend(setup_addrs())
    isflag = lambda x: x.kind == "branch" or (x.wr and x.wr[0][1] is not None and x.wr[0][1][0] in ("cnt", "pub", "ft", "fc"))
    mine = [x.copy() for x in it01 if x.aff >= 0 and x.kind != "label" and not isflag(x)]
    isv = lambda x: x.kind in VALU_KINDS and x.aff == 0
    C = {t: [x for x in mine if isv(x) and tile_of(x) == (0, t)] for t in range(NT)}
    E = {t: [x for x in mine if isv(x) and tile_of(x) == (1, t)] for t in range(NT)}
    B = {t: [x for x in mine if x.kind == "mfma" and x.wr[0][1][0] == "S" and tile_of(x) == (0, t)] for t in range(NT)}
    D = {t: [x for x in mine if x.kind == "mfma" and x not in B[t] and tile_of(x)[1] == t] for t in range(NT)}
    bars = [x for x in mine if x.kind == "barrier"]
    fr = lambda nm, i: [x for x in mine if x.kind == "lds_r" and x.wr[0][1][0] == nm and x.wr[0][1][2] == i]
    late = [x for x in mine if x.kind in VMEM_KINDS or x.kind == "salu"]
    nlate = len(late)
    if cfg.bar2:
        def isearly(x):
            tg = x.wr[0][1]
            return tg is not None and tg[0] in ("soK", "m0K", "Kd", "soV", "m0V", "Vd") and tg[2] == (NS - 1 if "K" in tg[0] else NS - 2)
        late = [x for x in late if not isearly(x)]
    acc = sum(len(d[t]) for d in (B, C, D, E) for t in range(NT)) + len(bars) + nlate + sum(len(fr(*z)) for z in (("Kf", 0), ("Kf", 1), ("Kf", 2), ("Vf", 0), ("Vf", 1)))
    nqr = len([x for x in mine if x.kind == "lds_r" and x.wr[0][1][0] == "Q"])
    assert acc + nqr == len(mine), (acc, nqr, len(mine))
    bars = [mkbarrier([1], [], [0], []), mkbarrier([2], [0, 1], [1], [])]
    def blk(b):
        vs, wr = q_scale(0, b, land(b))
        return vs[:1] + issue(qidx[b] + 1 + cfg.pro_depth) + vs[1:] + [wr]
    qrd = lambda t: [q_read(0, t, s_) for s_ in range(4)]
    def weave3(vs, ms):
        out = weave2(vs, ms)
        i = 1
        while i < len(out):
            x = out[i]
            if (x.kind in LDS_KINDS or x.kind in VMEM_KINDS) and out[i - 1].kind in VALU_KINDS:
                for k in range(i + 1, min(len(out), i + 5)):
                    if out[k].kind == "mfma":
                        out.insert(i, out.pop(k)); break
            i += 1
        return out
    A_ = lambda t: [x for b in range(4 * t, 4 * t + 4) for x in blk(b)]
    bk = mkbarrier([0], [], [], [])
    o.extend(A_(0)); o.extend(qrd(0))
    x = blk(4) + blk(5)
    o.extend(x[:-1]); o.append(bk)
    o.extend([k_read(0, 0, kt, s_) for kt in range(2) for s_ in range(4)])
    o.append(x[-1])
    o.extend(blk(6)); o.extend(weave3(blk(7), B[0])); o.extend(qrd(1))
    o.extend(C[0])
    o.append(bars[0])
    o.extend(weave2(fr("Kf", 1), B[1]))
    o.extend(blk(8)); o.extend(weave3(blk(9) + blk(10) + blk(11), D[0])); o.extend(qrd(2)); o.extend(C[1])
    o.extend(weave3(A_(3), B[2] + D[1])); o.extend(qrd(3)); o.extend(C[2]); o.extend(E[0])
    o.extend(weave3(A_(4), B[3] + D[2])); o.extend(qrd(4)); o.extend(C[3])
    o.extend(weave3(issue(99) + E[1] + E[2], B[4] + D[3]))
    o.extend(C[4]); o.append(bars[1])
    burst = [x for x in mine if x.kind == "lds_r" and x.wr[0][1][0] == "Vf"] + fr("Kf", 2)
    o.extend(weave2(burst, D[4])); o.extend(late + E[3] + E[4])
    return o

def build_tail(it0, rest):
    left = [x.copy() for x in it0 + rest if x.aff == -1 and x.kind in VALU_KINDS and x.wr[0][1][0] in ("E", "P")]
    lrd = [x.copy() for x in it0 + rest if x.aff == -1 and x.kind == "lds_r" and x.wr[0][1][0] == "Vf"]
    JJ = {t: [x for par in range(2) for x in [sum_mfma(-1, NSTEP - 2 + par, t)] + [pv_mfma(-1, NSTEP - 2 + par, t, dt) for dt in range(8)]]
          for t in range(NT)}
    ep = {t: epilogue(-1, t, pk=(t >= cfg.tail_pk)) for t in range(NT)}
    dr = {b: o_drain(-1, b, 0, A_Q + 4 * b) for b in range(20)}
    def head(t): return [ep[t][0][0], ep[t][0][1], ep[t][0][2]]
    def muls(t): return [v for vs, w in ep[t][2] for v in vs if "cvt" not in v.text]
    def cvts(t): return [v for vs, w in ep[t][2] for v in vs if "cvt" in v.text]
    def wrs(t): return [w for vs, w in ep[t][2]]
    def rds(t): return [dr[b][1] for b in range(4 * t, 4 * t + 4)] + [dr[4 * t][0]]
    def sts(t): return [dr[b][2] for b in range(4 * t, 4 * t + 4)]
    o = []
    def under(ms, fill):
        fill = list(fill)
        for m in ms:
            o.append(m); c = 0
            while fill and (c + COST[fill[0].kind] <= 8 or c == 0):
                x = fill.pop(0); o.append(x); c += COST[x.kind]
        return fill
    o.extend(lrd)
    o.extend(under(JJ[0], left))
    k0 = cfg.tail0
    o.extend(under(JJ[1][:5], head(0) + [ep[0][1]]))
    o.extend(under(JJ[1][5:k0], ep[0][0][3:]))
    ms = JJ[1][k0:] + JJ[2] + JJ[3] + JJ[4]
    for t in range(NT):
        o.extend(muls(t))
        cw = []
        c = cvts(t); w = wrs(t)
        nc = len(c) // len(w)
        for dt in range(len(w)):
            cw += c[nc * dt: nc * dt + nc]
            if dt >= 1: cw.append(w[dt - 1])
        cw.append(w[-1])
        if t >= 1: cw = cw[:4] + sts(t - 1) + cw[4:]
        if t + 1 < NT: cw = cw[:12] + head(t + 1) + cw[12:] + [ep[t + 1][1]]
        need = (18 - k0 if t == 0 else 18)
        k = min(len(ms), need + (5 if t == 0 else 0))
        o.extend(under(ms[:k], cw)); ms = ms[k:]
        if t + 1 < NT: o.extend(rds(t))
    assert not ms
    o.extend(rds(NT - 1)); o.extend(fail_commit(-1)); o.extend(sts(NT - 1))
    return o

def build():
    carry = frozenset()
    for _ in range(cfg.passes): carry = carry | build_schedule(carry, False)
    S, its = build_schedule(carry)
    G = S.G
    it0 = S.linear(0, its[2])
    rest = S.linear(its[2], G)
    setup = setup_code()
    rot_p = rotate() + [I("s_waitcnt lgkmcnt(0)", "wait", note="full")]
    pro = build_prologue(it0)
    rot = rotate()
    tail = build_tail(it0, rest)
    lab = lambda n: [I(n + ":", "label")]
    br = lambda t: [I(t, "branch")]
    seg_rest = lab("L_it1") + rest
    seg_rot = rot + br("s_cbranch_scc1 L_tail")
    seg_it0 = it0 + br("s_branch L_it1")
    seg_tail = lab("L_tail") + tail
    seq = [(x, 0, True) for x in setup + rot_p + pro]
    for J in range(4):
        if J:
            seq += [(x, J, True) for x in seg_rot]
            seq += [(x, J, 0 <= J + x.aff) for x in seg_it0]
        seq += [(x, J, 0 <= J + x.aff) for x in seg_rest]
    seq += [(x, 4, True) for x in seg_rot + seg_tail]
    errs = check_dataflow(seq)
    paths = [[setup, rot_p, pro, seg_rest, seg_rot, seg_it0, seg_rest, seg_rot, seg_it0, seg_rest, seg_rot, seg_tail]]
    nw = insert_waits(paths)
    nn = insert_nops(paths)
    firsts = {id(S.sp[g + 1]) for g in its[:NSTEP]}
    if cfg.fine is not None:
        g0, st = cfg.fine
        fg = [g0 + st * k for k in range(20)]
        firsts = {id(S.sp[g]) for g in fg}
        sys.stderr.write("fine est: " + str([sum(max(16, 8 + S.load(g)) for g in range(a_, a_ + st)) for a_ in fg[:-1]]) + "\n")
    if cfg.prof:
        def stamp(seg, first):
            out = []; i = first
            for x in seg:
                out.append(x)
                if id(x) in firsts:
                    out.append(raw(f"s_memtime s[{60+2*i}:{61+2*i}]")); i += 1
            seg[:] = out
        stamp(seg_rest, 2 if cfg.fine is None else 0); stamp(seg_it0, 0)
        out = [raw("s_memtime s[60:61]")]; i = 1; fw = True
        for x in pro:
            if fw and x.kind == "wait":
                out.append(raw(f"s_memtime s[{60+2*i}:{61+2*i}]")); i += 1
                out.append(x)
                out.append(raw(f"s_memtime s[{60+2*i}:{61+2*i}]")); i += 1
                fw = False; continue
            out.append(x)
            if (x.kind == "lds_w128" and int(x.text.split(":")[-1]) // 1024 % 2 == 1) or x.kind == "barrier":
                out.append(raw(f"s_memtime s[{60+2*i}:{61+2*i}]")); i += 1
        pro[:] = out
        setup.insert(2, raw("s_memtime s[98:99]"))
        setup.insert(2, raw("s_load_dwordx2 s[4:5], s[0:1], 40"))
        rot_p += [raw("s_mov_b32 s6, 327155712"), raw("s_mov_b32 s7, 0x20000"), raw("s_mov_b32 s100, s98"),
                  raw(f"s_lshl_b32 s3, s2, 2"), raw(f"s_add_u32 s3, s3, s{S_W}"), raw("s_mul_i32 s3, s3, 2048")]
        def dump():
            o = [raw("s_memtime s[56:57]"), raw("s_memrealtime s[58:59]"), raw("s_waitcnt lgkmcnt(0)", "wait")]
            for i in range(20): o.append(raw(f"v_writelane_b32 v11, s{60+2*i}, {i}", "valu"))
            o += [raw("v_writelane_b32 v11, s56, 20", "valu"), raw("v_writelane_b32 v11, s58, 21", "valu"), raw("v_writelane_b32 v11, s100, 22", "valu"),
                  raw("v_lshlrev_b32_e32 v0, 2, v0", "valu"),
                  raw("buffer_store_dword v11, v0, s[4:7], s3 offen", "vstore"), raw("s_nop 1"), raw("v_lshrrev_b32_e32 v0, 2, v0", "valu"), raw("s_add_u32 s3, s3, 256")]
            return o
        seg_rot[0:0] = dump()
        pro += dump() + [raw('s_memtime s[60:61]'), raw('s_memtime s[62:63]')]
        out = []; i = 0; ns = 0
        for x in seg_tail:
            out.append(x)
            if x.kind == "label" or (x.kind == "vstore" and (ns % 4) in (0, 3)) :
                out.append(raw(f"s_memtime s[{60+2*i}:{61+2*i}]")); i += 1
            if x.kind == "vstore": ns += 1
        seg_tail[:] = out
        seg_tail += [raw("s_waitcnt vmcnt(0)", "wait")] + dump()
    if cfg.dbgt:
        setup.insert(2, raw("s_memtime s[90:91]")); setup.insert(2, raw("s_memrealtime s[92:93]"))
        setup.insert(2, raw("s_load_dwordx2 s[4:5], s[0:1], 32"))
        rot_p += [raw("s_mov_b32 s6, 256"), raw("s_mov_b32 s7, 0x20000"), raw("s_mov_b32 s3, s2")]
        seg_tail += [raw(t) for t in """s_waitcnt vmcnt(0)
s_memtime s[94:95]
s_memrealtime s[96:97]
s_waitcnt lgkmcnt(0)
s_not_b32 s93, s92
v_mov_b32 v11, 0
v_mov_b32 v12, s93
v_mov_b32 v13, s96
s_mov_b64 exec, 1
buffer_atomic_umax v12, v11, s[4:7], 0 offen
buffer_atomic_umax v13, v11, s[4:7], 0 offen offset:4
s_sub_u32 s94, s94, s90
s_sub_u32 s96, s96, s92
s_and_b32 s3, s3, 7
s_min_u32 s3, s3, 6
s_lshl_b32 s3, s3, 2
v_mov_b32 v14, s94
v_mov_b32 v15, s96
buffer_atomic_umax v14, v11, s[4:7], s3 offen offset:8
buffer_atomic_umax v15, v11, s[4:7], s3 offen offset:36
s_waitcnt vmcnt(0)
s_mov_b64 exec, -1""".split("\n")]
    est = [estimate(S_) for S_ in (pro, seg_it0, seg_rest, seg_tail)]
    per = []; cur = []
    for x in seg_it0[1:] + seg_rest + seg_rot + seg_it0[:1]:
        if id(x) in firsts and len(cur) > 8: per.append(estimate(cur)); cur = []
        cur.append(x)
    per.append(estimate(cur))
    sys.stderr.write(f"per-iter est {per}\n")
    for i in range(NSTEP):
        l = [S.load(g) for g in range(its[i], (its + [G])[i + 1])]
        sys.stderr.write(f" it{i}: idle={sum(max(0,8-x) for x in l)} over={sum(max(0,x-8) for x in l)} " + "".join("0123456789abcdefghijklmnopqrstuvwxyz"[min(35,x//4)] for x in l) + "\n")
    sys.stderr.write(f"G={G} waits={nw} nops={nn} est pro/it0/rest/tail={est} job={est[1]+est[2]} mfma_floor={16*G}\n")
    return errs, [setup, rot_p, pro, seg_rest, seg_rot, seg_it0, seg_tail], S, its

HEADER = f"""; MHA forward, B=16 H=32 S=624 D=128 bf16.  Generated by gen/gen.py (hand written generator).
; @launch grid=(256,1,1) block=(256,1,1) lds={LDS_BYTES}
.amdgcn_target "amdgcn-amd-amdhsa--gfx950"
.text
.globl {NAME}_kernel
.p2align 8
.type {NAME}_kernel,@function
{NAME}_kernel:
"""
FOOTER = f"""L_end:
    s_endpgm
.section .rodata,"a"
.p2align 6
.amdhsa_kernel {NAME}_kernel
  .amdhsa_next_free_vgpr 512
  .amdhsa_next_free_sgpr 102
  .amdhsa_accum_offset 256
  .amdhsa_group_segment_fixed_size 0
  .amdhsa_kernarg_size 48
  .amdhsa_user_sgpr_count 2
  .amdhsa_user_sgpr_kernarg_segment_ptr 1
  .amdhsa_system_sgpr_workgroup_id_x 1
.end_amdhsa_kernel
"""

def ablated(x):
    ab = cfg.ablate
    if not ab: return False
    tg = x.wr[0][1][0] if x.wr and x.wr[0][1] else None
    if "sum" in ab and x.kind == "mfma" and tg == "L": return True
    if "pv" in ab and x.kind == "mfma" and tg == "O": return True
    if "qk" in ab and x.kind == "mfma" and tg == "S": return True
    if "exp" in ab and tg == "E": return True
    if "cvt" in ab and tg == "P": return True
    if "frag" in ab and tg in ("Kf", "Vf"): return True
    if "dma" in ab and x.kind in ("dma", "dma2"): return True
    if "qs" in ab and tg in ("u0", "u1", "qs1", "qs2", "qs3"): return True
    if "qo" in ab and x.kind in ("vload", "vstore") and x.aff != 0: return True
    return False

def emit(segs, extra=""):
    s = HEADER
    for n, seg in enumerate(segs):
        for x in seg:
            if n in (3, 5) and ablated(x):
                if cfg.abnop: s += "    s_nop 0\n"
                continue
            if x.kind == "label": s += x.text + "\n"
            else: s += "    " + x.text + "\n"
    return s + extra + FOOTER

if __name__ == "__main__":
    cfg.c0 = 0
    cfg.lat = 5
    cfg.passes = 2
    cfg.tail0 = 11
    cfg.rl = 9
    cfg.pubB = 26
    cfg.pubA = 84
    cfg.fgap = 20
    cfg.bmar = 0
    cfg.bwin = 20
    cfg.sparse1 = True
    cfg.ptrunc = False
    cfg.flags = True
    cfg.fpub = 9
    cfg.frd = 0
    cfg.fchk = 11
    cfg.tpf = 18
    cfg.qpk = 0
    cfg.w2 = True
    cfg.pkurg = 3
    cfg.pord = 1
    cfg.barpar = 1
    cfg.cutb = 17
    cfg.ablate = ()
    cfg.abnop = True
    cfg.dsplit = 3
    cfg.accd = 3
    cfg.fine = None
    cfg.bar2 = False
    cfg.dma2 = 14
    cfg.bigsep = 3
    cfg.epi0 = 5
    cfg.epistep = 5
    cfg.rdwin = 16
    cfg.rdgap = 1
    cfg.zpre = 10
    cfg.zpost = 5
    cfg.maxwin = 16
    cfg.rdmargin = 10
    cfg.qslack = 30
    cfg.qldwin = 24
    cfg.cut = 1400
    cfg.pk_epi = True
    cfg.q0step = 40
    cfg.dlead = 20
    cfg.cpf = 1
    cfg.pro_first = 10
    cfg.pro_depth = 10
    cfg.tail_pk = 0
    cfg.tailm = 14
    for a in sys.argv[2:]:
        k, v = a.split("="); setattr(cfg, k, eval(v))
    if cfg.dsplit: COST["dma"] = 8; COST["vload"] = 8
    errs, segs, S, its = build()
    for e in errs[:30]: sys.stderr.write(e + "\n")
    sys.stderr.write(f"{len(errs)} dataflow errors\n")
    from slow2 import slow_path
    segs += [[I("L_slow:", "label")]] + slow_path(sys.modules["__main__"])
    if cfg.flags: segs += [[I("s_branch L_end", "branch")], retry_stubs()]
    open(sys.argv[1], "w").write(emit(segs))
```

```python
import sys, struct
from core import *

NAME = "standalone__mha_softmax__near_ridge"
HEAD = 624 * 256
TOTAL = 512 * HEAD
OOB = 0x40000000
import os
NS = int(os.environ.get("NS", "4"))
KRING = 0
VRING = NS * 8192
STAGE = 2 * NS * 8192
FLAGS = STAGE + 4 * 20480
LDS_BYTES = min(163840, FLAGS + 256)
NT = 5
NSTEP = 20
JOBSTRIDE = 128 * HEAD
CSCALE = 0.08838834764831845 * 1.4426950408889634
THRESH = float(2 ** 30)
def f32bits(x): return struct.unpack("<I", struct.pack("<f", x))[0]

class Cfg:
    pk_epi = False
    qflags = 'nt'
    kvflags = 'nt'
    oflags = 'nt'
    prof = False
    dbgt = False
cfg = Cfg()

V_TMP0 = 0
V_VOFF, V_KADDR, V_VA0, V_VA1, V_LIN, V_OW0, V_OW1, V_QADDR = 1, 2, 3, 4, 5, 6, 7, 8
V_OW2, V_OW3 = 9, 10
V_VOFF1 = 25
V_QS = [12, 16, 28, 32]
V_RCP = 20
V_CNT, V_FW, V_FR, V_FT = 22, 23, 24, 11
V_MX = 26
V_NEGM = 36
V_S = 56
V_U = 96
V_O = 112
A_Q = 0
A_K = 80
A_V = 144
A_L = 208
A_ONE = 228
A_RB = 232
A_O = 240
def Oloc(t, dt):
    if t == 0: return ("v", V_O + 4 * dt) if dt < 4 else ("a", A_O + 4 * (dt - 4))
    return ("v", V_O + 16 + 32 * (t - 1) + 4 * dt)
def Oreg(t, dt):
    f, r = Oloc(t, dt)
    return r if f == "v" else V_U + 4 * (dt - 4)
def Sreg(t, kt, i):
    if i & 1 == 0: return V_S + 8 * t + 4 * kt
    return V_S + 8 * t + 4 if kt == 0 else V_U + 4 * (t & 3)
def Preg(t, i): return V_S + 8 * t + 4 * (i & 1)
def Nreg(t): return V_NEGM + 4 * t
def Qreg(t, s): return A_Q + 16 * t + 4 * s
def Kreg(b, kt, s): return A_K + 32 * b + 16 * kt + 4 * s
def Vreg(b, dt): return A_V + 32 * b + 4 * dt
def Lreg(t): return A_L + 4 * t

S_Q, S_K, S_V, S_O = 8, 12, 16, 20
S_W = 24
S_JOB = 25
S_KVC, S_KVN, S_KV19 = 26, 27, 28
S_QN, S_QN4, S_QC, S_QC4, S_OP, S_OP4 = 29, 30, 31, 32, 33, 34
S_LW = 35
S_LST = 36
S_C = 37
S_MASK = 38
S_THR = 39
S_FACC = 40
S_FAIL = 42
S_PBIT, S_CBIT = 43, 44
S_T0, S_T1, S_T2, S_T3 = 45, 46, 47, 48
S_W19 = 49
S_T4OFF = 50
S_QREL = 51
S_H0 = 52
S_SPIN = 53
S_CAP = 101
S_X0 = 54
S_CHK = 102 - 2

S_CHK = 58
def srd(b): return f"s[{b}:{b+3}]"

def salu(text, rd=(), wr=(), aff=0): return I(text, "salu", rd, wr, aff)
def valu(text, rd=(), wr=(), aff=0, kind="valu"): return I(text, kind, rd, wr, aff)

def mfma(dF, d, aF, a, bF, b, cF, c, dtag, atag, btag, ctag, k16=False, aff=0):
    n = 2 if k16 else 4
    op = "v_mfma_f32_16x16x16_bf16" if k16 else "v_mfma_f32_16x16x32_bf16"
    ctext = "0" if c is None else rs(cF, c, 4)
    A = R(aF, a, n); B = R(bF, b, n); C = [] if c is None else R(cF, c, 4)
    return I(f"{op} {rs(dF,d,4)}, {rs(aF,a,n)}, {rs(bF,b,n)}, {ctext}", "mfma",
             tagged(A, atag) + tagged(B, btag) + tagged(C, ctag), tagged(R(dF, d, 4), dtag), aff, ab=A + B, c=C)

def pv_mfma(j, i, t, dt):
    k16 = i == NSTEP - 1
    f, r = Oloc(t, dt)
    c = None if i == 0 else r
    return mfma(f, r, "a", Vreg(i & 1, dt), "v", Preg(t, i), f, c,
                ("O", j, i, t, dt), ("Vf", j, i, dt), ("P", j, i, t), ("O", j, i - 1, t, dt), k16, aff=j)
def sum_mfma(j, i, t):
    k16 = i == NSTEP - 1
    c = None if i == 0 else Lreg(t)
    return mfma("a", Lreg(t), "a", A_ONE, "v", Preg(t, i), "a", c,
                ("L", j, i, t), ("one", None), ("P", j, i, t), ("L", j, i - 1, t), k16, aff=j)
def qk_mfma(j, i, t, kt, s, pos=None):
    if pos is None: pos = s
    if pos == 0:
        c = None if i == 0 else Nreg(t); ctag = ("negm", j, t)
    else:
        c = Sreg(t, kt, i); ctag = ("S", j, i, t, kt, pos - 1)
    return mfma("v", Sreg(t, kt, i), "a", Kreg(i & 1, kt, s), "a", Qreg(t, s), "v", c,
                ("S", j, i, t, kt, pos), ("Kf", j, i, kt, s), ("Q", j, t, s), ctag, aff=j)

def k_read(j, i, kt, s):
    off = KRING + (i % NS) * 8192 + kt * 4096 + s * 256
    r = Kreg(i & 1, kt, s)
    return I(f"ds_read_b128 {rs('a',r,4)}, v{V_KADDR} offset:{off}", "lds_r",
             [(f"v{V_KADDR}", None), (f"KV{i%NS}", ("Kv", j, i))], tagged(R("a", r, 4), ("Kf", j, i, kt, s)), j)
def v_read(j, i, dt, half):
    off = (i % NS) * 8192 + half * 4096 + (dt >> 1) * 256
    r = Vreg(i & 1, dt) + 2 * half
    va = V_VA1 if dt & 1 else V_VA0
    wr = [(f"a{r+x}", ("Vf", j, i, dt, 2 * half + x)) for x in range(2)]
    return I(f"ds_read_b64_tr_b16 {rs('a',r,2)}, v{va} offset:{off}", "lds_r",
             [(f"v{va}", None), (f"VV{i%NS}", ("Vv", j, i))], wr, j)
def q_read(j, t, s):
    off = t * 4096 + s * 256
    r = Qreg(t, s)
    need = [(f"ST{t*4+rb}", ("Qs", j, t * 4 + rb)) for rb in range(4)]
    return I(f"ds_read_b128 {rs('a',r,4)}, v{V_QADDR} offset:{off}", "lds_r",
             [(f"v{V_QADDR}", None)] + need, tagged(R("a", r, 4), ("Q", j, t, s)), j)

def kv_dma(which, j, tile):
    st = S_T0 if which == "K" else S_T1
    sr = S_K if which == "K" else S_V
    ring = KRING if which == "K" else VRING
    out = []
    stag = ("so" + which, j, tile)
    if tile == NSTEP - 1:
        assert j == 0
        out.append(salu(f"s_mov_b32 s{st}, s{S_KV19}", [(f"s{S_KV19}", ("kv19", j))], [(f"s{st}", stag)], j))
    else:
        base = S_KVC if j == 0 else S_KVN
        out.append(salu(f"s_add_u32 s{st}, s{base}, {tile*8192}", [(f"s{base}", ("kvb", j))], [(f"s{st}", stag)], j))
    mtag = ("m0" + which, j, tile)
    out.append(salu(f"s_add_u32 m0, s{S_LW}, {ring + (tile % NS) * 8192}", [], [("m0", mtag)], j))
    for a in range(2):
        res = ("KR" if which == "K" else "VR") + f"{tile % NS}_{a}"
        free = ("KF" if which == "K" else "VF") + f"{tile % NS}"
        o = " offset:1024" if a else ""
        if cfg.kvflags: o += " " + cfg.kvflags
        out.append(I(f"buffer_load_dwordx4 v{V_VOFF1 if a else V_VOFF}, {srd(sr)}, s{st} offen{o} lds", "dma2" if a else "dma",
                     [("m0", mtag), (f"s{st}", stag), (f"v{V_VOFF}", None), (free, ("free" + which, j, tile))],
                     [(res, (which + "d", j, tile, a))], j))
    return out

def mkbarrier(pubK, pubV, doneK, doneV):
    need = []; wr = []
    for nm, tiles in (("K", pubK), ("V", pubV)):
        for x in tiles:
            need += [(f"{nm}R{x%NS}_{a}", (nm + "d", x // NSTEP, x % NSTEP, a)) for a in range(2)]
            wr.append((f"{nm}V{x%NS}", (nm + "v", x // NSTEP, x % NSTEP)))
    for x in doneK:
        for kt in range(2):
            for s in range(4): need += [(r, None) for r in R("a", Kreg(x & 1, kt, s), 4)]
        f = x + NS
        wr += [(f"KF{f%NS}", ("freeK", f // NSTEP, f % NSTEP)), (f"KV{x%NS}", ("dead", None))]
    for x in doneV:
        for dt in range(8): need += [(r, None) for r in R("a", Vreg(x & 1, dt), 4)]
        f = x + NS
        wr += [(f"VF{f%NS}", ("freeV", f // NSTEP, f % NSTEP)), (f"VV{x%NS}", ("dead", None))]
    return I("s_barrier", "barrier", [], wr, 0, need=need)

def barrier(i):
    if cfg.bar2:
        return mkbarrier([i + 1, i + 2], [i, i + 1], [i - 1, i], [i - 2, i - 1])
    return mkbarrier([i + 1], [i], [i], [i - 1])

def flag_ops(i):
    if i & 1 == 0: b = mkbarrier([i + 1], [], [i], [i - 2, i - 1])
    else: b = mkbarrier([i + 1], [i - 1, i], [i], [])
    tg = lambda n, k: (n, k // NSTEP, k % NSTEP)
    inc = valu(f"v_add_u32_e32 v{V_CNT}, 1, v{V_CNT}", [(f"v{V_CNT}", tg("cnt", i - 1)), ("chkd", tg("chkd", i - 1))], [(f"v{V_CNT}", tg("cnt", i))])
    pub = I(f"ds_write_b32 v{V_FW}, v{V_CNT}", "lds_w32", [(f"v{V_CNT}", tg("cnt", i))], [("pub", tg("pub", i))] + [x for x in b.wr if x[1][0] == "dead"], 0, need=b.need)
    rd = I(f"ds_read_b32 v{V_FT}, v{V_FR}", "lds_r", [("pub", tg("pub", i))], [(f"v{V_FT}", tg("ft", i))])
    cmp_ = valu(f"v_cmp_lt_u32_e32 vcc, v{V_FT}, v{V_CNT}", [(f"v{V_FT}", tg("ft", i)), (f"v{V_CNT}", tg("cnt", i))], [("vcc", tg("fc", i))])
    br = I(f"s_cbranch_vccnz L_rt{i % NSTEP}", "branch", [("vcc", tg("fc", i))], b.wr + [("chkd", tg("chkd", i))])
    return inc, pub, rd, cmp_, [br, I(f"L_bk{i % NSTEP}:", "salu0")]

def retry_stubs():
    o = []
    for i in range(NSTEP):
        o += [I(f"L_rt{i}:", "label"),
              raw(f"ds_read_b32 v{V_FT}, v{V_FR}", "lds_r"), raw(f"s_sub_u32 s{S_SPIN}, s{S_SPIN}, 1"), raw(f"s_cbranch_scc1 L_giveup{i}", "branch"),
              raw("s_waitcnt lgkmcnt(0)", "wait"), raw(f"v_cmp_lt_u32_e32 vcc, v{V_FT}, v{V_CNT}", "valu"), raw("s_nop 1", "nop"),
              raw(f"s_cbranch_vccnz L_rt{i}", "branch"), raw(f"s_branch L_bk{i}", "branch"),
              I(f"L_giveup{i}:", "label"), raw(f"s_mov_b32 s{S_SPIN}, 0"), raw("s_waitcnt lgkmcnt(0)", "wait"), raw(f"s_branch L_bk{i}", "branch")]
    return o

def blk_goff(b):
    return (b & 3) * 1024

def q_load(j, b, q):
    t = b >> 2
    stag = ("soQ", j, t)
    so = None
    if b & 3 == 0:
        if t == 4:
            bs = S_QN4 if j == 1 else S_QC4
            so = salu(f"s_mov_b32 s{S_T2}, s{bs}", [(f"s{bs}", ("qb4", j))], [(f"s{S_T2}", stag)], j)
        else:
            bs = S_QN if j == 1 else S_QC
            so = salu(f"s_add_u32 s{S_T2}, s{bs}, {t*4096}", [(f"s{bs}", ("qb", j))], [(f"s{S_T2}", stag)], j)
    go = blk_goff(b)
    o = f" offset:{go}" if go else ""
    nt = (" " + cfg.qflags) if cfg.qflags else ""
    ld = I(f"buffer_load_dwordx4 {rs('v',q,4)}, v{V_VOFF1 if b & 1 else V_VOFF}, {srd(S_Q)}, s{S_T2} offen{o}{nt}", "vload",
           [(f"s{S_T2}", stag), (f"v{V_VOFF}", None)], tagged(R("v", q, 4), ("qs0", j, b)), j)
    return so, ld

def q_scale(j, b, q, pk=False, tmp=(12, 13)):
    vs = []
    if pk:
        U = [V_RCP, V_RCP + 1, V_MX, V_MX + 1]
        for x in range(4):
            r = q + x; u = U[x]
            vs.append(valu(f"v_lshlrev_b32_e32 v{u}, 16, v{r}", [(f"v{r}", ("qs0", j, b, x))], [(f"v{u}", ("u0", j, b, x))], j))
            vs.append(valu(f"v_and_b32_e32 v{r}, s{S_MASK}, v{r}", [(f"v{r}", ("qs0", j, b, x))], [(f"v{r}", ("qs1", j, b, x))], j))
        assert S_C & 1
        for base, x, ti, to in ((U[0], 0, "u0", "u1"), (q, 0, "qs1", "qs2"), (U[2], 2, "u0", "u1"), (q + 2, 2, "qs1", "qs2")):
            vs.append(valu(f"v_pk_mul_f32 v[{base}:{base+1}], v[{base}:{base+1}], s[{S_C-1}:{S_C}] op_sel:[0,1] op_sel_hi:[1,1]",
                           [(f"v{base+y}", (ti, j, b, x + y)) for y in range(2)], [(f"v{base+y}", (to, j, b, x + y)) for y in range(2)], j, "pk"))
        for x in range(4):
            r = q + x; u = U[x]
            vs.append(valu(f"v_cvt_pk_bf16_f32 v{r}, v{u}, v{r}", [(f"v{u}", ("u1", j, b, x)), (f"v{r}", ("qs2", j, b, x))],
                           [(f"v{r}", ("qs3", j, b, x))], j))
    else:
      for x in range(4):
        r = q + x; u = tmp[x & 1]
        vs.append(valu(f"v_lshlrev_b32_e32 v{u}, 16, v{r}", [(f"v{r}", ("qs0", j, b, x))], [(f"v{u}", ("u0", j, b, x))], j))
        vs.append(valu(f"v_and_b32_e32 v{r}, s{S_MASK}, v{r}", [(f"v{r}", ("qs0", j, b, x))], [(f"v{r}", ("qs1", j, b, x))], j))
        vs.append(valu(f"v_mul_f32_e32 v{u}, s{S_C}, v{u}", [(f"v{u}", ("u0", j, b, x))], [(f"v{u}", ("u1", j, b, x))], j))
        vs.append(valu(f"v_mul_f32_e32 v{r}, s{S_C}, v{r}", [(f"v{r}", ("qs1", j, b, x))], [(f"v{r}", ("qs2", j, b, x))], j))
        vs.append(valu(f"v_cvt_pk_bf16_f32 v{r}, v{u}, v{r}", [(f"v{u}", ("u1", j, b, x)), (f"v{r}", ("qs2", j, b, x))],
                       [(f"v{r}", ("qs3", j, b, x))], j))
    wr = I(f"ds_write_b128 v{V_LIN}, {rs('v',q,4)} offset:{b*1024}", "lds_w128",
           [(f"v{V_LIN}", None), (f"ST{b}", ("Ofree", j - 2, b))] + tagged(R("v", q, 4), ("qs3", j, b)), [(f"ST{b}", ("Qs", j, b))], j)
    return vs, wr

def o_drain(j, b, buf, reg=None):
    t = b >> 2
    r = A_RB + 4 * buf if reg is None else reg
    stag = ("soO", j, t)
    so = None
    if b & 3 == 0:
        if t == 4:
            so = salu(f"s_mov_b32 s{S_T3}, s{S_OP4}", [(f"s{S_OP4}", ("qb4", j))], [(f"s{S_T3}", stag)], j)
        else:
            so = salu(f"s_add_u32 s{S_T3}, s{S_OP}, {t*4096}", [(f"s{S_OP}", ("qb", j))], [(f"s{S_T3}", stag)], j)
    rdeps = [(f"SO{t}_{dt}", ("Ow", j, t, dt)) for dt in range(8)]
    rd = I(f"ds_read_b128 {rs('a',r,4)}, v{V_LIN} offset:{b*1024}", "lds_r",
           [(f"v{V_LIN}", None)] + rdeps, tagged(R("a", r, 4), ("rb", j, b)) + [(f"ST{b}", ("Ofree", j, b))], j)
    go = blk_goff(b)
    o = f" offset:{go}" if go else ""
    nt = (" " + cfg.oflags) if cfg.oflags else ""
    st = I(f"buffer_store_dwordx4 {rs('a',r,4)}, v{V_VOFF1 if b & 1 else V_VOFF}, {srd(S_O)}, s{S_T3} offen{o}{nt}", "vstore",
           tagged(R("a", r, 4), ("rb", j, b)) + [(f"s{S_T3}", stag), (f"v{V_VOFF}", None)], [], j, note=f"free{b}")
    return so, rd, st

def exp_ins(j, i, t, kt, r, srctag):
    reg = Sreg(t, kt, i) + r
    return valu(f"v_exp_f32_e32 v{reg}, v{reg}", [(f"v{reg}", srctag)], [(f"v{reg}", ("E", j, i, t, kt, r))], j, "trans")
def cvt_ins(j, i, t, p):
    kt = p >> 1; r = (p & 1) * 2
    a = Sreg(t, kt, i) + r; d = Preg(t, i) + p
    txt = f"v_cvt_pk_bf16_f32 v{d}, v{a}, v{a+1}"
    return valu(txt,
                [(f"v{a}", ("E", j, i, t, kt, r)), (f"v{a+1}", ("E", j, i, t, kt, r + 1))], [(f"v{d}", ("P", j, i, t, p))], j)

def max_chain(j, t):
    m0 = V_MX; m1 = m0 + 1
    s = Sreg(t, 0, 0)
    def st(x): return (f"v{s+x}", ("S", j, 0, t, x >> 2, 3, x & 3))
    T = lambda n: ("mx", j, t, n)
    ch = [
        valu(f"v_max3_f32 v{m0}, v{s}, v{s+1}, v{s+2}", [st(0), st(1), st(2)], [(f"v{m0}", T(2))], j),
        valu(f"v_max_f32_e32 v{m1}, v{m0}, v{s+3}", [(f"v{m0}", T(2)), st(3)], [(f"v{m1}", T(3))], j),
        valu(f"v_max_f32_e32 v{m0}, v{m0}, v{s+3}", [(f"v{m0}", T(2)), st(3)], [(f"v{m0}", T(3))], j),
        valu(f"v_permlane32_swap_b32_e32 v{m0}, v{m1}", [(f"v{m0}", T(3)), (f"v{m1}", T(3))], [(f"v{m0}", T(4)), (f"v{m1}", T(5))], j, "perm"),
        valu(f"v_max_f32_e32 v{m0}, v{m0}, v{m1}", [(f"v{m0}", T(4)), (f"v{m1}", T(5))], [(f"v{m0}", T(6))], j),
        valu(f"v_mov_b32_e32 v{m1}, v{m0}", [(f"v{m0}", T(6))], [(f"v{m1}", T(6))], j),
        valu(f"v_permlane16_swap_b32_e32 v{m0}, v{m1}", [(f"v{m0}", T(6)), (f"v{m1}", T(6))], [(f"v{m0}", T(7)), (f"v{m1}", T(8))], j, "perm"),
    ]
    n = Nreg(t)
    for x in range(2):
        txt = f"v_min3_f32 v{n+x}, -v{m0}, -v{m1}, s{S_CAP}" if t == NT - 1 else f"v_min_f32_e64 v{n+x}, -v{m0}, -v{m1}"
        ch.append(valu(txt, [(f"v{m0}", T(7)), (f"v{m1}", T(8))], [(f"v{n+x}", ("negm", j, t, x))], j))
    ch.append(valu(f"v_mov_b64_e32 v[{n+2}:{n+3}], v[{n}:{n+1}]", [(f"v{n+x}", ("negm", j, t, x)) for x in range(2)],
                   [(f"v{n+2+x}", ("negm", j, t, 2 + x)) for x in range(2)], j))
    adds = {}
    for x in range(8):
        n = Nreg(t)
        adds[(x >> 2, x & 3)] = valu(f"v_add_f32_e32 v{s+x}, v{n}, v{s+x}", [(f"v{n}", ("negm", j, t, 0)), st(x)],
                                     [(f"v{s+x}", ("Sm", j, t, x))], j)
    return ch, adds

def epilogue(j, t, pk=False):
    L = NSTEP - 1
    rc = V_RCP + (t & 1)
    head = [
        valu(f"v_accvgpr_read_b32 v{rc}, a{Lreg(t)}", [(f"a{Lreg(t)}", ("L", j, L, t, 0))], [(f"v{rc}", ("l", j, t))], j),
        valu(f"v_cmp_nge_f32_e64 s[{S_CHK}:{S_CHK+1}], s{S_THR}, v{rc}", [(f"v{rc}", ("l", j, t))], [(f"s{S_CHK}", ("chk", j, t))], j),
        valu(f"v_rcp_f32_e32 v{rc}, v{rc}", [(f"v{rc}", ("l", j, t))], [(f"v{rc}", ("rl", j, t))], j, "trans"),
    ]
    acc = salu(f"s_or_b64 s[{S_FACC}:{S_FACC+1}], s[{S_FACC}:{S_FACC+1}], s[{S_CHK}:{S_CHK+1}]", [(f"s{S_CHK}", ("chk", j, t)), ("facc", ("facc", j, t - 1))],
               [("facc", ("facc", j, t)), ("scc", None)], j)
    per = []
    for dt in range(8):
        o = Oreg(t, dt)
        vs = []
        if Oloc(t, dt)[0] == "a":
            ar = Oloc(t, dt)[1]
            for x in range(4):
                head.append(valu(f"v_accvgpr_read_b32 v{o+x}, a{ar+x}", [(f"a{ar+x}", ("O", j, L, t, dt, x))], [(f"v{o+x}", ("O", j, L, t, dt, x))], j))
        if pk:
            rb = rc & ~1
            sel = "op_sel:[0,1] op_sel_hi:[1,1]" if rc & 1 else "op_sel_hi:[1,0]"
            for x in (0, 2):
                vs.append(valu(f"v_pk_mul_f32 v[{o+x}:{o+x+1}], v[{o+x}:{o+x+1}], v[{rb}:{rb+1}] {sel}",
                               [(f"v{rc}", ("rl", j, t))] + [(f"v{o+x+y}", ("O", j, L, t, dt, x + y)) for y in range(2)],
                               [(f"v{o+x+y}", ("On", j, t, dt, x + y)) for y in range(2)], j, "pk"))
        else:
          for x in range(4):
            vs.append(valu(f"v_mul_f32_e32 v{o+x}, v{rc}, v{o+x}", [(f"v{rc}", ("rl", j, t)), (f"v{o+x}", ("O", j, L, t, dt, x))],
                           [(f"v{o+x}", ("On", j, t, dt, x))], j))
        vs.append(valu(f"v_cvt_pk_bf16_f32 v{o}, v{o}, v{o+1}", [(f"v{o}", ("On", j, t, dt, 0)), (f"v{o+1}", ("On", j, t, dt, 1))],
                       [(f"v{o}", ("Ob", j, t, dt, 0))], j))
        vs.append(valu(f"v_cvt_pk_bf16_f32 v{o+1}, v{o+2}, v{o+3}", [(f"v{o+2}", ("On", j, t, dt, 2)), (f"v{o+3}", ("On", j, t, dt, 3))],
                       [(f"v{o+1}", ("Ob", j, t, dt, 1))], j))
        ow = V_OW1 if dt & 1 else V_OW0
        off = t * 4096 + (dt >> 1) * 256
        w = I(f"ds_write_b64 v{ow}, {rs('v',o,2)} offset:{off}", "lds_w64",
              [(f"v{ow}", None)] + tagged(R("v", o, 2), ("Ob", j, t, dt)),
              [(f"SO{t}_{dt}", ("Ow", j, t, dt))] + [(f"ST{t*4+rb}", ("Ob", j)) for rb in range(4)], j)
        per.append((vs, w))
    if cfg.w2:
        per2 = []
        for da, db in ((0, 4), (1, 5), (2, 6), (3, 7)):
            (va, wa), (vb, wb) = per[da], per[db]
            ow = (V_OW1 if da & 1 else V_OW0) if da < 2 else (V_OW3 if da & 1 else V_OW2)
            w = I(f"ds_write2st64_b64 v{ow}, {rs('v', Oreg(t, da), 2)}, {rs('v', Oreg(t, db), 2)} offset0:{t*8} offset1:{t*8+1}", "lds_w128",
                  wa.rd + wb.rd, wa.wr + wb.wr, j)
            nm = len(va) - 2
            per2.append((va[:nm] + vb[:nm] + va[nm:] + vb[nm:], w))
        per = per2
    return head, acc, per

def fail_commit(j):
    return [
        salu(f"s_cmp_lg_u64 s[{S_FACC}:{S_FACC+1}], 0", [("facc", ("facc", j, 4))], [("scc", ("fc", j))], j),
        salu(f"s_cselect_b32 s{S_X0}, s{S_PBIT}, 0", [("scc", ("fc", j)), (f"s{S_PBIT}", ("bit", j))], [(f"s{S_X0}", None)], j),
        salu(f"s_or_b32 s{S_FAIL}, s{S_FAIL}, s{S_X0}", [], [("scc", None)], j),
        salu(f"s_mov_b64 s[{S_FACC}:{S_FACC+1}], 0", [], [("facc", ("facc", j + 1, -1))], j),
    ]

class Task:
    n = 0
    def __init__(self, ins, rel, dl, preds=(), zone=False):
        self.ins = ins if isinstance(ins, list) else [ins]
        self.kind = self.ins[0].kind
        self.cost = sum(COST[x.kind] for x in self.ins)
        self.rel = rel; self.dl = dl; self.preds = list(preds); self.succ = []
        self.zone = zone
        self.g = None; self.id = Task.n; Task.n += 1
        for p, d in self.preds: p.succ.append((self, d))

class Sched:
    def __init__(self):
        self.sp = []
        self.sc = []; self.mem = []; self.val = []
        self.it_start = []
        self.tasks = []
        self.bars = []
    def add(self, m):
        self.sp.append(m); self.sc.append([]); self.mem.append([]); self.val.append([])
        return len(self.sp) - 1
    @property
    def G(self): return len(self.sp)
    def load(self, g):
        g %= self.G
        nsc = sum(1 for x in self.sc[g] if x.kind != "label" or x.need)
        return sum(COST[x.kind] for x in self.mem[g] + self.val[g]) + 4 * max(0, nsc - 1)
    def put(self, ins, g):
        w = g // self.G
        if w: ins = ins.shifted(-w)
        gg = g % self.G
        ins.gap = gg
        if ins.kind == "salu0": ins.kind = "label"; self.sc[gg].append(ins)
        elif ins.kind in ("salu", "barrier", "branch"): self.sc[gg].append(ins)
        elif ins.kind in VALU_KINDS: self.val[gg].append(ins)
        else: self.mem[gg].append(ins)
        return g
    def task(self, ins, rel, dl, preds=(), zone=False):
        t = Task(ins, rel, dl, preds, zone); self.tasks.append(t); return t
    def forbidden(self, g):
        g %= self.G
        if not self.bars: return False
        for b in self.bars + [self.bars[0] + self.G]:
            if b - cfg.zpre <= g <= b + cfg.zpost: return True
        return False
    def run(self, cut, carry=frozenset(), clip=True):
        G = self.G
        for t in self.tasks:
            for p, d in t.preds: t.rel = max(t.rel, p.rel + d)
        for t in self.tasks:
            t.off = -((t.rel - cut) // G) * G
            if t.id in carry: t.off -= G
            t.r = max(cut, t.rel + t.off); t.d = min(t.dl + t.off, cut + G - 1) if clip else t.dl + t.off
        for t in self.tasks:
            t.lp = [(p, d) for p, d in t.preds if p.off == t.off]
            for p, d in t.preds:
                if p.off != t.off:
                    assert p.off == t.off + G, (t.ins[0].text, p.ins[0].text)
                    if clip or t.id in carry: p.d = min(p.d, t.r + G - d)
                    else: p.xs = getattr(p, "xs", []) + [(t, d)]
        for t in reversed(self.tasks):
            for s_, d in t.succ:
                if s_.off == t.off: t.d = min(t.d, s_.d - d)
            for s_, d in getattr(t, "xs", []): t.d = min(t.d, s_.d + G - d)
            if t.zone:
                while self.forbidden(t.d): t.d -= 1
            assert t.d >= t.r, ("infeasible", t.ins[0].text, t.r, t.d)
        pend = sorted(self.tasks, key=lambda t: t.r)
        act = []; pi = 0
        lastz = [-99]
        def ready(t, g):
            if t.zone and (self.forbidden(g) or (g - lastz[0] < cfg.bigsep and t.d > g)): return False
            return all(p.g is not None and p.g + d <= g for p, d in t.lp)
        def commit(t, g):
            t.g = g; act.remove(t)
            if t.zone: lastz[0] = g
            for x in t.ins: self.put(x, g - t.off)
        for g in range(cut, cut + G):
            while pi < len(pend) and pend[pi].r <= g: act.append(pend[pi]); pi += 1
            key = lambda t: (t.d, t.id)
            isbar = (g % G) in self.bars
            while True:
                rs_ = sorted([t for t in act if t.kind in ("salu", "branch") and ready(t, g)], key=key)
                if rs_ and (not self.sc[g % G] or rs_[0].d <= g): commit(rs_[0], g)
                else: break
            def chain_before(t):
                ch_ = []
                while True:
                    un = [(p, d) for p, d in t.lp if p.g is None or p.g + d > g]
                    if not un: return ch_
                    if len(un) > 1 or un[0][1] != 0 or un[0][0] not in act or un[0][0].kind not in ("valu",): return None
                    t = un[0][0]; ch_.insert(0, t)
                    if len(ch_) > 5: return None
            cap = 8
            if not isbar and self.load(g) == 0:
                for t in sorted([t for t in act if t.kind == "pk"], key=key):
                    ch_ = chain_before(t)
                    if ch_ is None: continue
                    others = [u for u in act if u.kind not in ("salu", "pk", "branch") and ready(u, g) and u not in ch_ and u.cost <= 8]
                    urgent = [u for u in others if key(u) < key(t)]
                    if len(urgent) > cfg.pkurg and t.d > g + 3 and len(t.ins) < 8: continue
                    for u in ch_: commit(u, g)
                    cap = 20
                    break
            while not isbar:
                free = cap - self.load(g)
                if free <= 0: break
                rd = sorted([t for t in act if t.kind not in ("salu", "pk", "branch") and ready(t, g)], key=key)
                if cap == 8:
                    def held(t):
                        n = 0
                        while t.kind == "valu" and len(t.succ) == 1 and t.succ[0][1] == 0 and n < 5:
                            t = t.succ[0][0]; n += 1
                            if t.kind == "pk": return True
                        return False
                    rd = [t for t in rd if not held(t)]
                if free == 8 and cap == 8:
                    if not rd: break
                    t = rd[0]
                    if t.cost == 4:
                        partner = any(u.cost == 4 for u in rd[1:]) or any(s_.cost == 4 and d == 0 and s_.kind != "salu" for s_, d in t.succ)
                        full = [u for u in rd if u.cost >= 8]
                        if not partner and full and t.d > g + 2: t = full[0]
                    commit(t, g)
                else:
                    rd = [t for t in rd if t.cost <= free]
                    if not rd: break
                    commit(rd[0], g)
            while True:
                f = sorted([t for t in act if ready(t, g) and (t.d <= g or (t.kind == "pk" and cap == 20))], key=key)
                if not f: break
                commit(f[0], g)
            late = [t for t in act if t.d <= g]
            assert not late, ("missed", g, late[0].ins[0].text, late[0].d)
        assert pi == len(pend) and (not act or not clip)
        self.left = {t.id for t in act}
    def linear(self, g0, g1):
        out = []
        for g in range(g0, g1):
            out.append(self.sp[g]); out += self.sc[g]; out += self.mem[g]; out += self.val[g]
        return out

def build_schedule(carry=frozenset(), clip=True):
    Task.n = 0
    S = Sched()
    NR = NSTEP // 2
    pv0 = {}; pvend = {}; qkend = {}; qk0 = {}; pvg = {}; qkg = {}; qkf = {}; qkc = {}
    rb = []
    for r in range(NR):
        rb.append(S.G); S.it_start.append(S.G)
        j, e = (-1, NSTEP - 2) if r == 0 else (0, 2 * r - 2)
        def qk(i, t):
            kts = [0] if i == NSTEP - 1 else ([1, 0] if cfg.snake and i & 1 and t & 1 else [0, 1])
            qkf[(i, t)] = S.G
            for n, kt in enumerate(kts):
                rev = cfg.snake and (n == 1 or (len(kts) == 1 and t & 1))
                for pos in range(4):
                    s = 3 - pos if rev else pos
                    g = S.add(qk_mfma(0, i, t, kt, s, pos)); qkg[(i, t, kt, s)] = g
                    if pos == 0: qkc[(i, t, kt)] = g
                    if kt == 0 and pos == 0: qk0[(i, t)] = g
                qkend[(i, t, kt)] = g
        for t in range(NT):
            if t == 3: S.it_start.append(S.G)
            pv0[(r, t)] = S.G
            if r == 0:
                for par in range(2):
                    for dt in range(8): pvg[(r, t, dt, par)] = S.add(pv_mfma(j, e + par, t, dt))
                    pvend[(r, t)] = S.add(sum_mfma(j, e + par, t))
            else:
                for dt in range(8):
                    for par in range(2): pvg[(r, t, dt, par)] = S.add(pv_mfma(j, e + par, t, dt))
                S.add(sum_mfma(j, e, t)); pvend[(r, t)] = S.add(sum_mfma(j, e + 1, t))
            qk(2 * r, t)
        for t in range(NT): qk(2 * r + 1, t)
    G = S.G
    its = S.it_start + [G]
    rb += [G, G + rb[1]]
    for t in range(NT):
        for d in range(2):
            pv0[(NR + d, t)] = pv0[(d, t)] + G; pvend[(NR + d, t)] = pvend[(d, t)] + G; qk0[(NSTEP + d, t)] = qk0[(d, t)] + G
        for dt in range(8):
            for par in range(2): pvg[(NR, t, dt, par)] = pvg[(0, t, dt, par)] + G
        for kt in range(2):
            for s in range(4): qkg[(NSTEP, t, kt, s)] = qkg[(0, t, kt, s)] + G; qkg[(NSTEP + 1, t, kt, s)] = qkg[(1, t, kt, s)] + G
    LAT = cfg.lat
    RL = cfg.rl
    T = S.task
    pubg = {}; chkg = {}
    for n in range(NSTEP + 1):
        base = rb[n // 2]
        pubg[n] = base + (cfg.pubA if n & 1 else cfg.pubB); chkg[n] = pubg[n] + cfg.fgap
    for n in range(NSTEP):
        inc, pub, rd, cmp_, br = flag_ops(n)
        a_ = T(inc, pubg[n] - 20, pubg[n] - 1)
        T(pub, pubg[n] - 1, pubg[n], [(a_, 1)], zone=True)
        b_ = T(rd, chkg[n] - 11, chkg[n] - 10)
        c_ = T(cmp_, chkg[n] - 3, chkg[n] - 2, [(b_, 7)])
        T(br, chkg[n], chkg[n], [(c_, 2)])
    mprev = None
    for i in range(NSTEP):
        for t in range(NT):
            nk = 1 if i == NSTEP - 1 else 2
            if i & 1 == 0: hi = qk0[(i + 1, t)] - 1
            else:
                hi = pv0[(i // 2 + 1, t)] - 1
                if t == 0 and nk == 2: hi = min(hi, qkc[(i, 4, 1)] - 1)
            if i == 0:
                ch, adds = max_chain(0, t)
                p = mprev
                lo = qkend[(0, t, 0)] + LAT
                negs = []
                for n, x in enumerate(ch):
                    isneg = n >= len(ch) - 3
                    q = T(x, lo, min(lo + cfg.maxwin, qkf[(1, t)] - 2), [] if p is None else [(p, 1 if x.kind == "perm" else 0)])
                    p = q
                    if isneg: negs.append(q)
                mprev = p
            pc = None
            for kt in range(nk):
                es = []
                for r in range(4):
                    if i == 0:
                        a_ = T(adds[(kt, r)], qkend[(0, t, kt)] + LAT, hi, [(negs[0], 0)])
                        es.append(T(exp_ins(0, 0, t, kt, r, ("Sm", 0, t, 4 * kt + r)), lo, hi, [(a_, 0)]))
                    else:
                        es.append(T(exp_ins(0, i, t, kt, r, ("S", 0, i, t, kt, 3, r)), qkend[(i, t, kt)] + LAT, hi))
                    if r & 1:
                        pc = T(cvt_ins(0, i, t, 2 * kt + (r >> 1)), 0, hi, [(es[r - 1], 1), (es[r], 1)] + ([(pc, 0)] if pc else []))
    pd = None
    def dmas(lst, r0, step):
        nonlocal pd
        for x, (which, tile) in enumerate(lst):
            so, m0, d0, d1 = kv_dma(which, tile // NSTEP, tile % NSTEP)
            r = r0 + x * step
            a_ = T(so, r, r + 20, [(pd, 1)] if x else [])
            b_ = T(m0, r, r + 20, [(pd, 1)] if x else [])
            d1.kind = "dma"
            pd = T(d0, r, r + 12, [(a_, 1), (b_, 1)], zone=True)
            pd = T(d1, r, r + 20, [(pd, cfg.dsplit)], zone=True)
    for r in range(NR):
        e, o_ = 2 * r, 2 * r + 1
        kr = [k_read(0, o_, kt, s) for kt in range(1 if o_ == NSTEP - 1 else 2) for s in range(4)]
        lo = chkg[e] + 1; hi = pubg[o_] - RL
        pr_ = None
        for k, x in enumerate(kr):
            rr = lo + int(k * (hi - lo - cfg.rdwin) / len(kr))
            pr_ = T(x, rr, min(hi, rr + cfg.rdwin), [(pr_, 1)] if pr_ else [])
        items = []
        for dt in range(8):
            for par in range(2):
                for half in range(1 if e + par == NSTEP - 1 else 2):
                    items.append((v_read(0, e + par, dt, half), pvg[(r, 4, dt, par)] + 1, pvg[(r + 1, 0, dt, par)] - RL))
        for kt in range(2):
            for s in range(4):
                items.append((k_read((e + 2) // NSTEP, (e + 2) % NSTEP, kt, s), qkg[(e, 4, kt, s)] + 1, qkg[(e + 2, 0, kt, s)] - RL))
        lo = chkg[o_] + 1; hi = min(pubg[e + 2] - RL, max(d for _, _, d in items))
        items.sort(key=lambda z: z[2])
        vs_ = [x for x in items if "tr_b16" in x[0].text]; ks_ = [x for x in items if "tr_b16" not in x[0].text]
        h2 = len(vs_) // 2
        items = vs_[:h2] + weave2(vs_[h2:], ks_)
        pr_ = None
        for k, (x, a_, d_) in enumerate(items):
            rr = max(a_, lo + int(k * (hi - lo - cfg.rdwin - cfg.bmar) / len(items)))
            pr_ = T(x, rr, min(hi, d_, rr + cfg.rdwin), [(pr_, 1)] if pr_ else [])
        dmas([("V", e - 2 + NS), ("V", e - 1 + NS), ("K", e + NS)], chkg[e] + 1, cfg.dma2)
        dmas([("K", o_ + NS)], chkg[o_] + 1, 0)
    epi_w = {}
    pacc = None; qr = {}
    c0 = its[2] + cfg.c0
    step = (G - cfg.zpre - 2 - c0) / 20
    NQ = len(V_QS)
    wt = {}; lt = {}; drt = {}
    def mkload(b, rel, preds):
        so, ld = q_load(1, b, V_QS[b % NQ])
        if so is not None:
            preds = preds + [(T(so, max(1, rel - 4), rel + 30, [(lt[b - 1], 1)] if b else []), 1)]
        if b: preds = preds + [(lt[b - 1], 0)]
        lt[b] = T(ld, rel, rel + cfg.qldwin, preds, zone=True)
    for b in range(NQ): mkload(b, 6 + b * cfg.q0step, [])
    epi = {t: epilogue(0, t, pk=cfg.pk_epi) for t in range(NT)}
    pst = None; pv_ = None
    for b in range(20):
        lo = c0 + int(b * step); hi = c0 + int((b + 1) * step) - 1
        so, rd, st = o_drain(-1, b, b & 1)
        drt[b] = T(rd, lo - cfg.dlead if b else lo, hi - 1)
        pr = [(drt[b], 9)]
        if so is not None: pr.append((T(so, lo - cfg.dlead if b else lo, hi + 30, [(pst, 1)] if pst else []), 1))
        if pst: pr.append((pst, 0))
        pst = T(st, 0, min(hi + 30, G - 1), pr, zone=True)
        vs, wr = q_scale(1, b, V_QS[b % NQ], pk=b < cfg.qpk, tmp=(V_RCP, V_RCP + 1))
        p = pv_
        if b < cfg.qpk: vs = vs[:8] + [vs[8:12]] + vs[12:]
        for v in vs:
            p = T(v, lo, hi + cfg.qslack, [(p, 0)] if p else [])
        pv_ = p
        wt[b] = T(wr, lo, min(hi + cfg.qslack, G - 1), [(p, 1), (drt[b], 0)], zone=True)
        if b + NQ < 20: mkload(b + NQ, hi + cfg.qslack + 1, [(wt[b], 1)])
    for t in range(NT):
        for s_ in range(4):
            qr[(t, s_)] = T(q_read(1, t, s_), qkend[(NSTEP - 1, t, 0)] + 1, qk0[(NSTEP, t)] - 12, [(wt[4 * t + 3], 0)] + ([(qr[(t, s_ - 1)], 2)] if s_ else []))
    wslot = 0
    for t in range(NT):
        head, acc, per = epi[t]
        lo = pvend[(NR, t)] + LAT
        hi = pv0[(NR + 1, t)] - 2
        if t == 0: hi = qkc[(1, 0, 1)] + G - 12
        h0 = T(head[0], lo, lo + 2)
        h1 = T(head[1], lo, lo + 2, [(h0, 0)] + ([(pacc, 0)] if pacc else []))
        pacc = T(acc, lo, lo + 12, [(h1, cfg.accd)])
        h2 = T(head[2], lo, lo + 2, [(h1, 0)])
        burst = [v for vs, w in per for v in vs if v.kind == "pk"]
        pb = [(h2, 1)]
        p = None
        for x in head[3:]: p = T(x, lo, hi, [(p, 0)] if p else [])
        if p: pb.append((p, 0))
        bt = T(burst, lo, lo + cfg.bwin, pb)
        for dt, (vs, w) in enumerate(per):
            wslot = max(wslot + cfg.epistep * (2 if cfg.w2 else 1), lo + cfg.epi0)
            while S.forbidden(wslot): wslot += 1
            h = min(hi + dt, wslot)
            p = bt
            for v in vs:
                if v.kind != "pk": p = T(v, lo, h, [(p, 0)])
            T(w, h - 1, h, [(p, 1)] + [(qr[(t, s_)], 0) for s_ in range(4)], zone=True)
        if t == NT - 1:
            T(fail_commit(0), lo, hi, [(pacc, 1)])
    if cfg.tpf:
        g0 = its[cfg.tpf] + 20
        a_ = T([salu(f"s_getpc_b64 s[{S_X0}:{S_X0+1}]", [], [(f"s{S_X0}", ("pc", 0))]), I("L_pc2:", "salu0")], g0, g0 + 4)
        b_ = T(valu("v_lshlrev_b32_e32 v12, 6, v0", [], [("v12", ("tp", 0, 0))]), g0, g0 + 8, [(wt[16], 2)])
        c_ = T(valu("v_add_u32_e32 v12, L_tail-L_pc2, v12", [("v12", ("tp", 0, 0))], [("v12", ("tp", 0, 1))]), g0, g0 + 8, [(b_, 0)])
        d_ = T(valu("v_mov_b32_e32 v13, 0", [], [("v13", ("tp", 0, 2))]), g0, g0 + 8, [(wt[16], 2)])
        e_ = T(valu(f"v_lshl_add_u64 v[12:13], v[12:13], 0, s[{S_X0}:{S_X0+1}]", [("v12", ("tp", 0, 1)), ("v13", ("tp", 0, 2)), (f"s{S_X0}", ("pc", 0))],
                    [("v12", ("tp", 0, 3)), ("v13", ("tp", 0, 4))]), g0, g0 + 10, [(a_, 1), (c_, 0), (d_, 0)])
        T(I("global_load_dword v12, v[12:13], off", "vload", [("v12", ("tp", 0, 3)), ("v13", ("tp", 0, 4))], [("v12", None)]), g0, g0 + 16, [(e_, 1)], zone=True)
    cutb = cfg.cutb
    S.run(c0 + int(cutb * step) if cfg.cut is None else cfg.cut, carry, clip)
    if not clip: return S.left
    S.qkend = qkend; S.qk0 = qk0; S.pv0 = pv0
    sys.stderr.write(f"Q loads {[lt[b].g - lt[b].off for b in range(20)]} writes {[wt[b].g - wt[b].off for b in range(20)]}\n")
    return S, its

def raw(text, kind="salu", rd=(), wr=()): return I(text, kind, rd, wr)

def setup_code():
    o = []
    A = lambda t, k="salu", rd=(), wr=(): o.append(raw(t, k, [(r, None) for r in rd], [(r, None) for r in wr]))
    A("s_cmp_ge_u32 s2, 256"); A("s_cbranch_scc1 L_end", "branch")
    for b, off in ((S_K, 8), (S_Q, 0), (S_V, 16), (S_O, 24)):
        A(f"s_load_dwordx2 s[{b}:{b+1}], s[0:1], {off}")
    o.extend(code_prefetch())
    V = lambda t, rd=(), wr=(): A(t, "valu", rd, wr)
    V("v_lshrrev_b32_e32 v9, 6, v0", ["v0"], ["v9"])
    V("v_and_b32_e32 v0, 63, v0", ["v0"], ["v0"])
    V(f"v_readfirstlane_b32 s{S_W}, v9", ["v9"], [f"s{S_W}"])
    V("v_bfe_u32 v9, v0, 2, 2", ["v0"], ["v9"])
    V("v_bfe_u32 v10, v0, 3, 1", ["v0"], ["v10"])
    V("v_and_b32_e32 v11, 3, v0", ["v0"], ["v11"])
    V("v_xor_b32_e32 v10, v10, v11", ["v10", "v11"], ["v10"])
    V("v_lshlrev_b32_e32 v10, 4, v10", ["v10"], ["v10"])
    V("v_lshl_add_u32 v10, v9, 8, v10", ["v9", "v10"], ["v10"])
    V("v_lshrrev_b32_e32 v11, 4, v0", ["v0"], ["v11"])
    V(f"v_lshl_add_u32 v{V_VOFF}, v11, 6, v10", ["v11", "v10"], [f"v{V_VOFF}"])
    V(f"v_xor_b32_e32 v{V_VOFF1}, 32, v{V_VOFF}", [f"v{V_VOFF}"], [f"v{V_VOFF1}"])
    A(f"s_and_b32 s{S_X0}, s2, 7")
    A(f"s_lshr_b32 s{S_X0+1}, s2, 4")
    A(f"s_lshl_b32 s{S_X0}, s{S_X0}, 4")
    A(f"s_add_u32 s{S_X0}, s{S_X0}, s{S_X0+1}")
    A(f"s_mul_i32 s{S_H0}, s{S_X0}, {HEAD}")
    A(f"s_bfe_u32 s{S_X0}, s2, 0x10003")
    A(f"s_lshl_b32 s{S_LW}, s{S_W}, 11", rd=[f"s{S_W}"])
    A(f"s_mul_i32 s{S_LST}, s{S_W}, 20480")
    A(f"s_mul_i32 s{S_QREL}, s{S_X0}, {320*256}")
    A(f"s_add_u32 s{S_QREL}, s{S_QREL}, s{S_LST}")
    A(f"s_add_u32 s{S_LST}, s{S_LST}, {STAGE}")
    A(f"s_cmp_ge_u32 s{S_W}, 2")
    A(f"s_cselect_b32 s{S_W19}, {OOB}, {19*8192}")
    A(f"s_lshl_b32 s{S_X0}, s{S_X0}, 2")
    A(f"s_add_u32 s{S_X0}, s{S_X0}, s{S_W}")
    A(f"s_cmp_eq_u32 s{S_X0}, 7")
    A(f"s_cselect_b32 s{S_T4OFF}, {OOB}, {4*4096}")
    A(f"s_mov_b32 s{S_CAP}, 0x7f800000")
    A(f"s_cselect_b32 s{S_CAP}, 0xf149f2ca, s{S_CAP}")
    A(f"s_mov_b32 s{S_C}, {f32bits(CSCALE):#x}")
    A(f"s_mov_b32 s{S_MASK}, 0xffff0000")
    A(f"s_mov_b32 s{S_THR}, {f32bits(THRESH):#x}")
    A(f"s_mov_b64 s[{S_FACC}:{S_FACC+1}], 0")
    A(f"s_mov_b32 s{S_FAIL}, 0")
    A(f"s_mov_b32 s{S_JOB}, 4")
    A(f"s_mov_b32 s{S_CBIT}, 0")
    A(f"s_add_u32 s{S_KVN}, s{S_H0}, s{S_LW}")
    A(f"s_add_u32 s{S_QN}, s{S_H0}, s{S_QREL}")
    A(f"s_add_u32 s{S_QN4}, s{S_QN}, s{S_T4OFF}")
    A(f"s_mov_b32 s{S_QC}, {OOB}")
    A(f"s_mov_b32 s{S_QC4}, {OOB}")
    for b in (S_Q, S_K, S_V, S_O):
        A(f"s_mov_b32 s{b+2}, {TOTAL}"); A(f"s_mov_b32 s{b+3}, 0x20000")
    return o

def setup_addrs():
    o = []
    V = lambda t, rd=(), wr=(): o.append(raw(t, "valu", [(r, None) for r in rd], [(r, None) for r in wr]))
    V("v_bfe_u32 v9, v0, 2, 2", ["v0"], ["v9"])
    V("v_lshlrev_b32_e32 v9, 10, v9", ["v9"], ["v9"])
    V("v_and_b32_e32 v10, 3, v0", ["v0"], ["v10"])
    V("v_lshl_add_u32 v9, v10, 6, v9", ["v9", "v10"], ["v9"])
    V("v_bfe_u32 v10, v0, 1, 2", ["v0"], ["v10"])
    V("v_lshrrev_b32_e32 v11, 4, v0", ["v0"], ["v11"])
    V("v_xor_b32_e32 v12, v10, v11", ["v10", "v11"], ["v12"])
    V(f"v_lshl_add_u32 v{V_KADDR}, v12, 4, v9", ["v12", "v9"], [f"v{V_KADDR}"])
    V(f"v_add_u32_e32 v{V_QADDR}, s{S_LST}, v{V_KADDR}", [f"v{V_KADDR}"], [f"v{V_QADDR}"])
    V("v_lshrrev_b32_e32 v12, 5, v0", ["v0"], ["v12"])
    V("v_xor_b32_e32 v12, v10, v12", ["v10", "v12"], ["v12"])
    V("v_lshl_add_u32 v12, v12, 4, v9", ["v12", "v9"], ["v12"])
    V("v_bfe_u32 v13, v0, 4, 1", ["v0"], ["v13"])
    V("v_lshl_add_u32 v12, v13, 3, v12", ["v13", "v12"], ["v12"])
    V(f"v_add_u32_e32 v{V_OW0}, s{S_LST}, v12", ["v12"], [f"v{V_OW0}"])
    V(f"v_xor_b32_e32 v{V_OW1}, 32, v{V_OW0}", [f"v{V_OW0}"], [f"v{V_OW1}"])
    V("v_lshrrev_b32_e32 v9, 4, v0", ["v0"], ["v9"])
    V("v_lshlrev_b32_e32 v9, 10, v9", ["v9"], ["v9"])
    V("v_bfe_u32 v10, v0, 2, 2", ["v0"], ["v10"])
    V("v_lshl_add_u32 v9, v10, 6, v9", ["v9", "v10"], ["v9"])
    V("v_bfe_u32 v10, v0, 3, 2", ["v0"], ["v10"])
    V("v_bfe_u32 v11, v0, 1, 1", ["v0"], ["v11"])
    V("v_xor_b32_e32 v10, v10, v11", ["v10", "v11"], ["v10"])
    V("v_lshl_add_u32 v9, v10, 4, v9", ["v9", "v10"], ["v9"])
    V("v_and_b32_e32 v10, 1, v0", ["v0"], ["v10"])
    V("v_lshl_add_u32 v9, v10, 3, v9", ["v9", "v10"], ["v9"])
    V(f"v_add_u32_e32 v{V_VA0}, {VRING}, v9", ["v9"], [f"v{V_VA0}"])
    V(f"v_xor_b32_e32 v{V_VA1}, 32, v{V_VA0}", [f"v{V_VA0}"], [f"v{V_VA1}"])
    V("v_lshlrev_b32_e32 v9, 4, v0", ["v0"], ["v9"])
    V(f"v_add_u32_e32 v{V_LIN}, s{S_LST}, v9", ["v9"], [f"v{V_LIN}"])
    if cfg.flags:
        V("v_and_b32_e32 v9, 3, v0", ["v0"], ["v9"])
        V("v_lshlrev_b32_e32 v9, 2, v9", ["v9"], ["v9"])
        V(f"v_add_u32_e32 v{V_FR}, {FLAGS}, v9", ["v9"], [f"v{V_FR}"])
        V(f"v_mov_b32_e32 v9, s{S_W}", [], ["v9"])
        V("v_lshlrev_b32_e32 v9, 2, v9", ["v9"], ["v9"])
        V(f"v_add_u32_e32 v{V_FW}, {FLAGS}, v9", ["v9"], [f"v{V_FW}"])
        o.append(I(f"v_mov_b32_e32 v{V_CNT}, 1", "valu", [], [(f"v{V_CNT}", ("cnt", 0, 1)), ("chkd", ("chkd", 0, 1))]))
        o.append(raw(f"ds_write_b32 v{V_FW}, v{V_CNT}", "lds_w32", [(f"v{V_FW}", None), (f"v{V_CNT}", None)]))
        o.append(raw(f"s_mov_b32 s{S_SPIN}, 0x1000000"))
    V("v_mov_b32_e32 v9, 0x3f803f80", [], ["v9"])
    if cfg.sparse1:
        V("v_and_b32_e32 v10, 3, v0", ["v0"], ["v10"])
        V("v_cmp_eq_u32_e32 vcc, 0, v10", ["v10"], ["vcc"])
        V("v_cndmask_b32_e32 v9, 0, v9, vcc", ["v9", "vcc"], ["v9"])
    for x in range(4):
        o.append(I(f"v_accvgpr_write_b32 a{A_ONE+x}, v9", "valu", [("v9", None)], [(f"a{A_ONE+x}", ("one", None, x))]))
    V(f"v_add_u32_e32 v{V_OW2}, 256, v{V_OW0}", [f"v{V_OW0}"], [f"v{V_OW2}"])
    V(f"v_add_u32_e32 v{V_OW3}, 256, v{V_OW1}", [f"v{V_OW1}"], [f"v{V_OW3}"])
    return o

def rotate():
    o = []
    A = lambda t, rd=(), wr=(): o.append(salu(t, rd, wr))
    A(f"s_mov_b32 s{S_OP}, s{S_QC}", [], [(f"s{S_OP}", ("qb", -1))])
    A(f"s_mov_b32 s{S_OP4}, s{S_QC4}", [], [(f"s{S_OP4}", ("qb4", -1))])
    A(f"s_mov_b32 s{S_QC}, s{S_QN}", [], [(f"s{S_QC}", ("qb", 0))]); A(f"s_mov_b32 s{S_QC4}, s{S_QN4}", [], [(f"s{S_QC4}", ("qb4", 0))])
    A(f"s_mov_b32 s{S_KVC}, s{S_KVN}", [], [(f"s{S_KVC}", ("kvb", 0))])
    A(f"s_add_u32 s{S_KV19}, s{S_KVN}, s{S_W19}", [], [(f"s{S_KV19}", ("kv19", 0))])
    A(f"s_mov_b32 s{S_PBIT}, s{S_CBIT}", [], [(f"s{S_PBIT}", ("bit", -1))])
    A(f"s_lshl_b32 s{S_CBIT}, s{S_CBIT}, 1")
    A(f"s_max_u32 s{S_CBIT}, s{S_CBIT}, 1")
    A(f"s_cmp_gt_u32 s{S_JOB}, 1")
    A(f"s_cselect_b32 s{S_X0}, {JOBSTRIDE}, {OOB}")
    A(f"s_add_u32 s{S_KVN}, s{S_KVN}, s{S_X0}", [], [(f"s{S_KVN}", ("kvb", 1))])
    A(f"s_add_u32 s{S_QN}, s{S_QN}, s{S_X0}", [], [(f"s{S_QN}", ("qb", 1))])
    A(f"s_add_u32 s{S_QN4}, s{S_QN4}, s{S_X0}", [], [(f"s{S_QN4}", ("qb4", 1))])
    A(f"s_sub_u32 s{S_JOB}, s{S_JOB}, 1")
    return o

def tile_of(x):
    tg = x.wr[0][1]
    if tg[0] in ("S", "E", "P", "O", "L"): return (tg[2], tg[3])
    if tg[0] in ("mx", "negm", "Sm"): return (0, tg[2])
    return None

def code_prefetch():
    o = []
    A = lambda t, k="salu", rd=(), wr=(): o.append(raw(t, k, [(r, None) for r in rd], [(r, None) for r in wr]))
    if not cfg.cpf: return o
    A(f"s_getpc_b64 s[{S_X0+12}:{S_X0+13}]")
    A("L_pc:", "label")
    if cfg.cpf == 1:
        A(f"s_lshr_b32 s{S_X0}, s2, 3"); A(f"s_lshl_b32 s{S_X0}, s{S_X0}, 11")
        A("v_and_b32_e32 v26, 15, v0", "valu", ["v0"], ["v26"])
        A(f"v_lshl_add_u32 v26, v26, 7, s{S_X0}", "valu", ["v26"], ["v26"])
        A(f"v_min_u32_e32 v26, L_slow-L_pc, v26", "valu", ["v26"], ["v26"])
        A("v_mov_b32_e32 v27, 0", "valu", [], ["v27"])
        A(f"v_lshl_add_u64 v[26:27], v[26:27], 0, s[{S_X0+12}:{S_X0+13}]", "valu", ["v26", "v27"], ["v26", "v27"])
        A("global_load_dword v27, v[26:27], off", "vload", ["v26", "v27"], ["v27"])
        return o
    A("v_lshlrev_b32_e32 v26, 7, v0", "valu", ["v0"], ["v26"])
    for k in range(cfg.cpf):
        A(f"v_min_u32_e32 v27, L_slow-L_pc, v26", "valu", ["v26"], ["v27"])
        A(f"global_load_dword v27, v27, s[{S_X0+12}:{S_X0+13}]", "vload", ["v27"], ["v27"])
        if k + 1 < cfg.cpf: A("v_add_u32_e32 v26, 32768, v26", "valu", ["v26"], ["v26"])
    return o

def weave2(vs, ms):
    out = []; n = len(vs); k = len(ms); mi = 0
    for i, v in enumerate(vs):
        while mi < k and mi * n <= i * k: out.append(ms[mi]); mi += 1
        out.append(v)
    return out + ms[mi:]

def build_prologue(it01):
    o = []
    init = [("facc", ("facc", 0, -1))]
    for x in range(NS):
        init += [(f"KF{x}", ("freeK", 0, x)), (f"VF{x}", ("freeV", 0, x))]
    for b in range(20): init.append((f"ST{b}", ("Ofree", -2, b)))
    o.append(I("; init state", "label", [], init))
    land = lambda b: Oreg(b >> 2, b & 3)
    pend = []
    def kv(which, tile): pend.append(kv_dma(which, 0, tile))
    def qt(t):
        for b in range(4 * t, 4 * t + 4): pend.append([x for x in q_load(0, b, land(b)) if x is not None])
    kv("K", 0); qt(0); qt(1); kv("K", 1); qt(2); qt(3)
    if cfg.pord == 0: kv("V", 0); kv("V", 1); qt(4)
    else: qt(4); kv("V", 0); kv("V", 1)
    kv("K", 2); kv("K", 3)
    assert NS == 4
    order = [x for g in pend for x in g if x.kind in VMEM_KINDS]
    qidx = {x.wr[0][1][2]: n for n, x in enumerate(order) if x.kind == "vload"}
    cnt = [0]
    def issue(upto):
        r = []
        while pend and cnt[0] < upto:
            g = pend.pop(0); r.extend(g); cnt[0] += sum(1 for x in g if x.kind in VMEM_KINDS)
        return r
    o.extend(issue(cfg.pro_first))
    o.extend(setup_addrs())
    isflag = lambda x: x.kind == "branch" or (x.wr and x.wr[0][1] is not None and x.wr[0][1][0] in ("cnt", "pub", "ft", "fc"))
    mine = [x.copy() for x in it01 if x.aff >= 0 and x.kind != "label" and not isflag(x)]
    isv = lambda x: x.kind in VALU_KINDS and x.aff == 0
    C = {t: [x for x in mine if isv(x) and tile_of(x) == (0, t)] for t in range(NT)}
    E = {t: [x for x in mine if isv(x) and tile_of(x) == (1, t)] for t in range(NT)}
    B = {t: [x for x in mine if x.kind == "mfma" and x.wr[0][1][0] == "S" and tile_of(x) == (0, t)] for t in range(NT)}
    D = {t: [x for x in mine if x.kind == "mfma" and x not in B[t] and tile_of(x)[1] == t] for t in range(NT)}
    bars = [x for x in mine if x.kind == "barrier"]
    fr = lambda nm, i: [x for x in mine if x.kind == "lds_r" and x.wr[0][1][0] == nm and x.wr[0][1][2] == i]
    late = [x for x in mine if x.kind in VMEM_KINDS or x.kind == "salu"]
    nlate = len(late)
    if cfg.bar2:
        def isearly(x):
            tg = x.wr[0][1]
            return tg is not None and tg[0] in ("soK", "m0K", "Kd", "soV", "m0V", "Vd") and tg[2] == (NS - 1 if "K" in tg[0] else NS - 2)
        late = [x for x in late if not isearly(x)]
    acc = sum(len(d[t]) for d in (B, C, D, E) for t in range(NT)) + len(bars) + nlate + sum(len(fr(*z)) for z in (("Kf", 0), ("Kf", 1), ("Kf", 2), ("Vf", 0), ("Vf", 1)))
    nqr = len([x for x in mine if x.kind == "lds_r" and x.wr[0][1][0] == "Q"])
    assert acc + nqr == len(mine), (acc, nqr, len(mine))
    bars = [mkbarrier([1], [], [0], []), mkbarrier([2], [0, 1], [1], [])]
    def blk(b):
        vs, wr = q_scale(0, b, land(b))
        return vs[:1] + issue(qidx[b] + 1 + cfg.pro_depth) + vs[1:] + [wr]
    qrd = lambda t: [q_read(0, t, s_) for s_ in range(4)]
    def weave3(vs, ms):
        out = weave2(vs, ms)
        i = 1
        while i < len(out):
            x = out[i]
            if (x.kind in LDS_KINDS or x.kind in VMEM_KINDS) and out[i - 1].kind in VALU_KINDS:
                for k in range(i + 1, min(len(out), i + 5)):
                    if out[k].kind == "mfma":
                        out.insert(i, out.pop(k)); break
            i += 1
        return out
    A_ = lambda t: [x for b in range(4 * t, 4 * t + 4) for x in blk(b)]
    bk = mkbarrier([0], [], [], [])
    o.extend(A_(0)); o.extend(qrd(0))
    x = blk(4) + blk(5)
    o.extend(x[:-1]); o.append(bk)
    o.extend([k_read(0, 0, kt, s_) for kt in range(2) for s_ in range(4)])
    o.append(x[-1])
    o.extend(blk(6)); o.extend(weave3(blk(7), B[0])); o.extend(qrd(1))
    o.extend(C[0])
    o.append(bars[0])
    o.extend(weave2(fr("Kf", 1), B[1]))
    o.extend(blk(8)); o.extend(weave3(blk(9) + blk(10) + blk(11), D[0])); o.extend(qrd(2)); o.extend(C[1])
    o.extend(weave3(A_(3), B[2] + D[1])); o.extend(qrd(3)); o.extend(C[2]); o.extend(E[0])
    o.extend(weave3(A_(4), B[3] + D[2])); o.extend(qrd(4)); o.extend(C[3])
    o.extend(weave3(issue(99) + E[1] + E[2], B[4] + D[3]))
    o.extend(C[4]); o.append(bars[1])
    burst = [x for x in mine if x.kind == "lds_r" and x.wr[0][1][0] == "Vf"] + fr("Kf", 2)
    o.extend(weave2(burst, D[4])); o.extend(late + E[3] + E[4])
    return o

def build_tail(it0, rest):
    left = [x.copy() for x in it0 + rest if x.aff == -1 and x.kind in VALU_KINDS and x.wr[0][1][0] in ("E", "P")]
    lrd = [x.copy() for x in it0 + rest if x.aff == -1 and x.kind == "lds_r" and x.wr[0][1][0] == "Vf"]
    JJ = {t: [x for par in range(2) for x in [sum_mfma(-1, NSTEP - 2 + par, t)] + [pv_mfma(-1, NSTEP - 2 + par, t, dt) for dt in range(8)]]
          for t in range(NT)}
    ep = {t: epilogue(-1, t, pk=(t >= cfg.tail_pk)) for t in range(NT)}
    dr = {b: o_drain(-1, b, 0, A_Q + 4 * b) for b in range(20)}
    def head(t): return [ep[t][0][0], ep[t][0][1], ep[t][0][2]]
    def muls(t): return [v for vs, w in ep[t][2] for v in vs if "cvt" not in v.text]
    def cvts(t): return [v for vs, w in ep[t][2] for v in vs if "cvt" in v.text]
    def wrs(t): return [w for vs, w in ep[t][2]]
    def rds(t): return [dr[b][1] for b in range(4 * t, 4 * t + 4)] + [dr[4 * t][0]]
    def sts(t): return [dr[b][2] for b in range(4 * t, 4 * t + 4)]
    o = []
    def under(ms, fill):
        fill = list(fill)
        for m in ms:
            o.append(m); c = 0
            while fill and (c + COST[fill[0].kind] <= 8 or c == 0):
                x = fill.pop(0); o.append(x); c += COST[x.kind]
        return fill
    o.extend(lrd)
    o.extend(under(JJ[0], left))
    k0 = cfg.tail0
    o.extend(under(JJ[1][:5], head(0) + [ep[0][1]]))
    o.extend(under(JJ[1][5:k0], ep[0][0][3:]))
    ms = JJ[1][k0:] + JJ[2] + JJ[3] + JJ[4]
    for t in range(NT):
        o.extend(muls(t))
        cw = []
        c = cvts(t); w = wrs(t)
        nc = len(c) // len(w)
        for dt in range(len(w)):
            cw += c[nc * dt: nc * dt + nc]
            if dt >= 1: cw.append(w[dt - 1])
        cw.append(w[-1])
        if t >= 1: cw = cw[:4] + sts(t - 1) + cw[4:]
        if t + 1 < NT: cw = cw[:12] + head(t + 1) + cw[12:] + [ep[t + 1][1]]
        need = (18 - k0 if t == 0 else 18)
        k = min(len(ms), need + (5 if t == 0 else 0))
        o.extend(under(ms[:k], cw)); ms = ms[k:]
        if t + 1 < NT: o.extend(rds(t))
    assert not ms
    o.extend(rds(NT - 1)); o.extend(fail_commit(-1)); o.extend(sts(NT - 1))
    return o

def build():
    carry = frozenset()
    for _ in range(cfg.passes): carry = carry | build_schedule(carry, False)
    S, its = build_schedule(carry)
    G = S.G
    it0 = S.linear(0, its[2])
    rest = S.linear(its[2], G)
    setup = setup_code()
    rot_p = rotate() + [I("s_waitcnt lgkmcnt(0)", "wait", note="full")]
    pro = build_prologue(it0)
    rot = rotate()
    tail = build_tail(it0, rest)
    lab = lambda n: [I(n + ":", "label")]
    br = lambda t: [I(t, "branch")]
    seg_rest = lab("L_it1") + rest
    seg_rot = rot + br("s_cbranch_scc1 L_tail")
    seg_it0 = it0 + br("s_branch L_it1")
    seg_tail = lab("L_tail") + tail
    seq = [(x, 0, True) for x in setup + rot_p + pro]
    for J in range(4):
        if J:
            seq += [(x, J, True) for x in seg_rot]
            seq += [(x, J, 0 <= J + x.aff) for x in seg_it0]
        seq += [(x, J, 0 <= J + x.aff) for x in seg_rest]
    seq += [(x, 4, True) for x in seg_rot + seg_tail]
    errs = check_dataflow(seq)
    paths = [[setup, rot_p, pro, seg_rest, seg_rot, seg_it0, seg_rest, seg_rot, seg_it0, seg_rest, seg_rot, seg_tail]]
    nw = insert_waits(paths)
    nn = insert_nops(paths)
    firsts = {id(S.sp[g + 1]) for g in its[:NSTEP]}
    if cfg.fine is not None:
        g0, st = cfg.fine
        fg = [g0 + st * k for k in range(20)]
        firsts = {id(S.sp[g]) for g in fg}
        sys.stderr.write("fine est: " + str([sum(max(16, 8 + S.load(g)) for g in range(a_, a_ + st)) for a_ in fg[:-1]]) + "\n")
    if cfg.prof:
        def stamp(seg, first):
            out = []; i = first
            for x in seg:
                out.append(x)
                if id(x) in firsts:
                    out.append(raw(f"s_memtime s[{60+2*i}:{61+2*i}]")); i += 1
            seg[:] = out
        stamp(seg_rest, 2 if cfg.fine is None else 0); stamp(seg_it0, 0)
        out = [raw("s_memtime s[60:61]")]; i = 1; fw = True
        for x in pro:
            if fw and x.kind == "wait":
                out.append(raw(f"s_memtime s[{60+2*i}:{61+2*i}]")); i += 1
                out.append(x)
                out.append(raw(f"s_memtime s[{60+2*i}:{61+2*i}]")); i += 1
                fw = False; continue
            out.append(x)
            if (x.kind == "lds_w128" and int(x.text.split(":")[-1]) // 1024 % 2 == 1) or x.kind == "barrier":
                out.append(raw(f"s_memtime s[{60+2*i}:{61+2*i}]")); i += 1
        pro[:] = out
        setup.insert(2, raw("s_memtime s[98:99]"))
        setup.insert(2, raw("s_load_dwordx2 s[4:5], s[0:1], 40"))
        rot_p += [raw("s_mov_b32 s6, 327155712"), raw("s_mov_b32 s7, 0x20000"), raw("s_mov_b32 s100, s98"),
                  raw(f"s_lshl_b32 s3, s2, 2"), raw(f"s_add_u32 s3, s3, s{S_W}"), raw("s_mul_i32 s3, s3, 2048")]
        def dump():
            o = [raw("s_memtime s[56:57]"), raw("s_memrealtime s[58:59]"), raw("s_waitcnt lgkmcnt(0)", "wait")]
            for i in range(20): o.append(raw(f"v_writelane_b32 v11, s{60+2*i}, {i}", "valu"))
            o += [raw("v_writelane_b32 v11, s56, 20", "valu"), raw("v_writelane_b32 v11, s58, 21", "valu"), raw("v_writelane_b32 v11, s100, 22", "valu"),
                  raw("v_lshlrev_b32_e32 v0, 2, v0", "valu"),
                  raw("buffer_store_dword v11, v0, s[4:7], s3 offen", "vstore"), raw("s_nop 1"), raw("v_lshrrev_b32_e32 v0, 2, v0", "valu"), raw("s_add_u32 s3, s3, 256")]
            return o
        seg_rot[0:0] = dump()
        pro += dump() + [raw('s_memtime s[60:61]'), raw('s_memtime s[62:63]')]
        out = []; i = 0; ns = 0
        for x in seg_tail:
            out.append(x)
            if x.kind == "label" or (x.kind == "vstore" and (ns % 4) in (0, 3)) :
                out.append(raw(f"s_memtime s[{60+2*i}:{61+2*i}]")); i += 1
            if x.kind == "vstore": ns += 1
        seg_tail[:] = out
        seg_tail += [raw("s_waitcnt vmcnt(0)", "wait")] + dump()
    if cfg.dbgt:
        setup.insert(2, raw("s_memtime s[90:91]")); setup.insert(2, raw("s_memrealtime s[92:93]"))
        setup.insert(2, raw("s_load_dwordx2 s[4:5], s[0:1], 32"))
        rot_p += [raw("s_mov_b32 s6, 256"), raw("s_mov_b32 s7, 0x20000"), raw("s_mov_b32 s3, s2")]
        seg_tail += [raw(t) for t in """s_waitcnt vmcnt(0)
s_memtime s[94:95]
s_memrealtime s[96:97]
s_waitcnt lgkmcnt(0)
s_not_b32 s93, s92
v_mov_b32 v11, 0
v_mov_b32 v12, s93
v_mov_b32 v13, s96
s_mov_b64 exec, 1
buffer_atomic_umax v12, v11, s[4:7], 0 offen
buffer_atomic_umax v13, v11, s[4:7], 0 offen offset:4
s_sub_u32 s94, s94, s90
s_sub_u32 s96, s96, s92
s_and_b32 s3, s3, 7
s_min_u32 s3, s3, 6
s_lshl_b32 s3, s3, 2
v_mov_b32 v14, s94
v_mov_b32 v15, s96
buffer_atomic_umax v14, v11, s[4:7], s3 offen offset:8
buffer_atomic_umax v15, v11, s[4:7], s3 offen offset:36
s_waitcnt vmcnt(0)
s_mov_b64 exec, -1""".split("\n")]
    est = [estimate(S_) for S_ in (pro, seg_it0, seg_rest, seg_tail)]
    per = []; cur = []
    for x in seg_it0[1:] + seg_rest + seg_rot + seg_it0[:1]:
        if id(x) in firsts and len(cur) > 8: per.append(estimate(cur)); cur = []
        cur.append(x)
    per.append(estimate(cur))
    sys.stderr.write(f"per-iter est {per}\n")
    for i in range(NSTEP):
        l = [S.load(g) for g in range(its[i], (its + [G])[i + 1])]
        sys.stderr.write(f" it{i}: idle={sum(max(0,8-x) for x in l)} over={sum(max(0,x-8) for x in l)} " + "".join("0123456789abcdefghijklmnopqrstuvwxyz"[min(35,x//4)] for x in l) + "\n")
    sys.stderr.write(f"G={G} waits={nw} nops={nn} est pro/it0/rest/tail={est} job={est[1]+est[2]} mfma_floor={16*G}\n")
    return errs, [setup, rot_p, pro, seg_rest, seg_rot, seg_it0, seg_tail], S, its

HEADER = f"""; MHA forward, B=16 H=32 S=624 D=128 bf16.  Generated by gen/gen.py (hand written generator).
; @launch grid=(256,1,1) block=(256,1,1) lds={LDS_BYTES}
.amdgcn_target "amdgcn-amd-amdhsa--gfx950"
.text
.globl {NAME}_kernel
.p2align 8
.type {NAME}_kernel,@function
{NAME}_kernel:
"""
FOOTER = f"""L_end:
    s_endpgm
.section .rodata,"a"
.p2align 6
.amdhsa_kernel {NAME}_kernel
  .amdhsa_next_free_vgpr 512
  .amdhsa_next_free_sgpr 102
  .amdhsa_accum_offset 256
  .amdhsa_group_segment_fixed_size 0
  .amdhsa_kernarg_size 48
  .amdhsa_user_sgpr_count 2
  .amdhsa_user_sgpr_kernarg_segment_ptr 1
  .amdhsa_system_sgpr_workgroup_id_x 1
.end_amdhsa_kernel
"""

def ablated(x):
    ab = cfg.ablate
    if not ab: return False
    tg = x.wr[0][1][0] if x.wr and x.wr[0][1] else None
    if "sum" in ab and x.kind == "mfma" and tg == "L": return True
    if "pv" in ab and x.kind == "mfma" and tg == "O": return True
    if "qk" in ab and x.kind == "mfma" and tg == "S": return True
    if "exp" in ab and tg == "E": return True
    if "cvt" in ab and tg == "P": return True
    if "frag" in ab and tg in ("Kf", "Vf"): return True
    if "dma" in ab and x.kind in ("dma", "dma2"): return True
    if "qs" in ab and tg in ("u0", "u1", "qs1", "qs2", "qs3"): return True
    if "qo" in ab and x.kind in ("vload", "vstore") and x.aff != 0: return True
    return False

def emit(segs, extra=""):
    s = HEADER
    for n, seg in enumerate(segs):
        for x in seg:
            if n in (3, 5) and ablated(x):
                if cfg.abnop: s += "    s_nop 0\n"
                continue
            if x.kind == "label": s += x.text + "\n"
            else: s += "    " + x.text + "\n"
    return s + extra + FOOTER

if __name__ == "__main__":
    cfg.c0 = 0
    cfg.lat = 5
    cfg.snake = True
    cfg.passes = 2
    cfg.tail0 = 11
    cfg.rl = 9
    cfg.pubB = 26
    cfg.pubA = 84
    cfg.fgap = 20
    cfg.bmar = 0
    cfg.bwin = 20
    cfg.sparse1 = True
    cfg.ptrunc = False
    cfg.flags = True
    cfg.fpub = 9
    cfg.frd = 0
    cfg.fchk = 11
    cfg.tpf = 18
    cfg.qpk = 0
    cfg.w2 = True
    cfg.pkurg = 3
    cfg.pord = 1
    cfg.barpar = 1
    cfg.cutb = 17
    cfg.ablate = ()
    cfg.abnop = True
    cfg.dsplit = 3
    cfg.accd = 3
    cfg.fine = None
    cfg.bar2 = False
    cfg.dma2 = 14
    cfg.bigsep = 3
    cfg.epi0 = 5
    cfg.epistep = 5
    cfg.rdwin = 16
    cfg.rdgap = 1
    cfg.zpre = 10
    cfg.zpost = 5
    cfg.maxwin = 16
    cfg.rdmargin = 10
    cfg.qslack = 30
    cfg.qldwin = 24
    cfg.cut = 1400
    cfg.pk_epi = True
    cfg.q0step = 40
    cfg.dlead = 20
    cfg.cpf = 1
    cfg.pro_first = 10
    cfg.pro_depth = 10
    cfg.tail_pk = 0
    cfg.tailm = 14
    for a in sys.argv[2:]:
        k, v = a.split("="); setattr(cfg, k, eval(v))
    if cfg.dsplit: COST["dma"] = 8; COST["vload"] = 8
    errs, segs, S, its = build()
    for e in errs[:30]: sys.stderr.write(e + "\n")
    sys.stderr.write(f"{len(errs)} dataflow errors\n")
    from slow2 import slow_path
    segs += [[I("L_slow:", "label")]] + slow_path(sys.modules["__main__"])
    if cfg.flags: segs += [[I("s_branch L_end", "branch")], retry_stubs()]
    open(sys.argv[1], "w").write(emit(segs))
```

```python
import sys, struct
from core import *

NAME = "standalone__mha_softmax__near_ridge"
HEAD = 624 * 256
TOTAL = 512 * HEAD
OOB = 0x40000000
import os
NS = int(os.environ.get("NS", "4"))
KRING = 0
VRING = NS * 8192
STAGE = 2 * NS * 8192
FLAGS = STAGE + 4 * 20480
LDS_BYTES = min(163840, FLAGS + 256)
NT = 5
NSTEP = 20
JOBSTRIDE = 128 * HEAD
CSCALE = 0.08838834764831845 * 1.4426950408889634
THRESH = float(2 ** 50)
def f32bits(x): return struct.unpack("<I", struct.pack("<f", x))[0]

class Cfg:
    pk_epi = False
    qflags = 'nt'
    kvflags = 'nt'
    oflags = 'nt'
    prof = False
    dbgt = False
cfg = Cfg()

V_TMP0 = 0
V_VOFF, V_KADDR, V_VA0, V_VA1, V_LIN, V_OW0, V_OW1, V_QADDR = 1, 2, 3, 4, 5, 6, 7, 8
V_OW2, V_OW3 = 9, 10
V_VOFF1 = 25
V_QS = [12, 16, 28, 32]
V_RCP = 20
V_CNT, V_FW, V_FR, V_FT = 22, 23, 24, 11
V_MX = 26
V_NEGM = 36
V_S = 56
V_U = 96
V_O = 112
A_Q = 0
A_K = 80
A_V = 144
A_L = 208
A_ONE = 228
A_RB = 232
A_O = 240
def Oloc(t, dt):
    if t == 0: return ("v", V_O + 4 * dt) if dt < 4 else ("a", A_O + 4 * (dt - 4))
    return ("v", V_O + 16 + 32 * (t - 1) + 4 * dt)
def Oreg(t, dt):
    f, r = Oloc(t, dt)
    return r if f == "v" else V_U + 4 * (dt - 4)
def Sreg(t, kt, i):
    if i & 1 == 0: return V_S + 8 * t + 4 * kt
    return V_S + 8 * t + 4 if kt == 0 else V_U + 4 * (t & 3)
def Preg(t, i): return V_S + 8 * t + 4 * (i & 1)
def Nreg(t): return V_NEGM + 4 * t
def Qreg(t, s): return A_Q + 16 * t + 4 * s
def Kreg(b, kt, s): return A_K + 32 * b + 16 * kt + 4 * s
def Vreg(b, dt): return A_V + 32 * b + 4 * dt
def Lreg(t): return A_L + 4 * t

S_Q, S_K, S_V, S_O = 8, 12, 16, 20
S_W = 24
S_JOB = 25
S_KVC, S_KVN, S_KV19 = 26, 27, 28
S_QN, S_QN4, S_QC, S_QC4, S_OP, S_OP4 = 29, 30, 31, 32, 33, 34
S_LW = 35
S_LST = 36
S_C = 37
S_MASK = 38
S_THR = 39
S_FACC = 40
S_FAIL = 42
S_PBIT, S_CBIT = 43, 44
S_T0, S_T1, S_T2, S_T3 = 45, 46, 47, 48
S_W19 = 49
S_T4OFF = 50
S_QREL = 51
S_H0 = 52
S_SPIN = 53
S_CAP = 101
S_X0 = 54
S_CHK = 102 - 2

S_CHK = 58
def srd(b): return f"s[{b}:{b+3}]"

def salu(text, rd=(), wr=(), aff=0): return I(text, "salu", rd, wr, aff)
def valu(text, rd=(), wr=(), aff=0, kind="valu"): return I(text, kind, rd, wr, aff)

def mfma(dF, d, aF, a, bF, b, cF, c, dtag, atag, btag, ctag, k16=False, aff=0):
    n = 2 if k16 else 4
    op = "v_mfma_f32_16x16x16_bf16" if k16 else "v_mfma_f32_16x16x32_bf16"
    ctext = "0" if c is None else rs(cF, c, 4)
    A = R(aF, a, n); B = R(bF, b, n); C = [] if c is None else R(cF, c, 4)
    return I(f"{op} {rs(dF,d,4)}, {rs(aF,a,n)}, {rs(bF,b,n)}, {ctext}", "mfma",
             tagged(A, atag) + tagged(B, btag) + tagged(C, ctag), tagged(R(dF, d, 4), dtag), aff, ab=A + B, c=C)

def pv_mfma(j, i, t, dt):
    k16 = i == NSTEP - 1
    f, r = Oloc(t, dt)
    c = None if i == 0 else r
    return mfma(f, r, "a", Vreg(i & 1, dt), "v", Preg(t, i), f, c,
                ("O", j, i, t, dt), ("Vf", j, i, dt), ("P", j, i, t), ("O", j, i - 1, t, dt), k16, aff=j)
def sum_mfma(j, i, t):
    k16 = i == NSTEP - 1
    c = None if i == 0 else Lreg(t)
    return mfma("a", Lreg(t), "a", A_ONE, "v", Preg(t, i), "a", c,
                ("L", j, i, t), ("one", None), ("P", j, i, t), ("L", j, i - 1, t), k16, aff=j)
def qk_mfma(j, i, t, kt, s, pos=None):
    if pos is None: pos = s
    if pos == 0:
        c = None if i == 0 else Nreg(t); ctag = ("negm", j, t)
    else:
        c = Sreg(t, kt, i); ctag = ("S", j, i, t, kt, pos - 1)
    return mfma("v", Sreg(t, kt, i), "a", Kreg(i & 1, kt, s), "a", Qreg(t, s), "v", c,
                ("S", j, i, t, kt, pos), ("Kf", j, i, kt, s), ("Q", j, t, s), ctag, aff=j)

def k_read(j, i, kt, s):
    off = KRING + (i % NS) * 8192 + kt * 4096 + s * 256
    r = Kreg(i & 1, kt, s)
    return I(f"ds_read_b128 {rs('a',r,4)}, v{V_KADDR} offset:{off}", "lds_r",
             [(f"v{V_KADDR}", None), (f"KV{i%NS}", ("Kv", j, i))], tagged(R("a", r, 4), ("Kf", j, i, kt, s)), j)
def v_read(j, i, dt, half):
    off = (i % NS) * 8192 + half * 4096 + (dt >> 1) * 256
    r = Vreg(i & 1, dt) + 2 * half
    va = V_VA1 if dt & 1 else V_VA0
    wr = [(f"a{r+x}", ("Vf", j, i, dt, 2 * half + x)) for x in range(2)]
    return I(f"ds_read_b64_tr_b16 {rs('a',r,2)}, v{va} offset:{off}", "lds_r",
             [(f"v{va}", None), (f"VV{i%NS}", ("Vv", j, i))], wr, j)
def q_read(j, t, s):
    off = t * 4096 + s * 256
    r = Qreg(t, s)
    need = [(f"ST{t*4+rb}", ("Qs", j, t * 4 + rb)) for rb in range(4)]
    return I(f"ds_read_b128 {rs('a',r,4)}, v{V_QADDR} offset:{off}", "lds_r",
             [(f"v{V_QADDR}", None)] + need, tagged(R("a", r, 4), ("Q", j, t, s)), j)

def kv_dma(which, j, tile):
    st = S_T0 if which == "K" else S_T1
    sr = S_K if which == "K" else S_V
    ring = KRING if which == "K" else VRING
    out = []
    stag = ("so" + which, j, tile)
    if tile == NSTEP - 1:
        assert j == 0
        out.append(salu(f"s_mov_b32 s{st}, s{S_KV19}", [(f"s{S_KV19}", ("kv19", j))], [(f"s{st}", stag)], j))
    else:
        base = S_KVC if j == 0 else S_KVN
        out.append(salu(f"s_add_u32 s{st}, s{base}, {tile*8192}", [(f"s{base}", ("kvb", j))], [(f"s{st}", stag)], j))
    mtag = ("m0" + which, j, tile)
    out.append(salu(f"s_add_u32 m0, s{S_LW}, {ring + (tile % NS) * 8192}", [], [("m0", mtag)], j))
    for a in range(2):
        res = ("KR" if which == "K" else "VR") + f"{tile % NS}_{a}"
        free = ("KF" if which == "K" else "VF") + f"{tile % NS}"
        o = " offset:1024" if a else ""
        if cfg.kvflags: o += " " + cfg.kvflags
        out.append(I(f"buffer_load_dwordx4 v{V_VOFF1 if a else V_VOFF}, {srd(sr)}, s{st} offen{o} lds", "dma2" if a else "dma",
                     [("m0", mtag), (f"s{st}", stag), (f"v{V_VOFF}", None), (free, ("free" + which, j, tile))],
                     [(res, (which + "d", j, tile, a))], j))
    return out

def mkbarrier(pubK, pubV, doneK, doneV):
    need = []; wr = []
    for nm, tiles in (("K", pubK), ("V", pubV)):
        for x in tiles:
            need += [(f"{nm}R{x%NS}_{a}", (nm + "d", x // NSTEP, x % NSTEP, a)) for a in range(2)]
            wr.append((f"{nm}V{x%NS}", (nm + "v", x // NSTEP, x % NSTEP)))
    for x in doneK:
        for kt in range(2):
            for s in range(4): need += [(r, None) for r in R("a", Kreg(x & 1, kt, s), 4)]
        f = x + NS
        wr += [(f"KF{f%NS}", ("freeK", f // NSTEP, f % NSTEP)), (f"KV{x%NS}", ("dead", None))]
    for x in doneV:
        for dt in range(8): need += [(r, None) for r in R("a", Vreg(x & 1, dt), 4)]
        f = x + NS
        wr += [(f"VF{f%NS}", ("freeV", f // NSTEP, f % NSTEP)), (f"VV{x%NS}", ("dead", None))]
    return I("s_barrier", "barrier", [], wr, 0, need=need)

def barrier(i):
    if cfg.bar2:
        return mkbarrier([i + 1, i + 2], [i, i + 1], [i - 1, i], [i - 2, i - 1])
    return mkbarrier([i + 1], [i], [i], [i - 1])

def flag_ops(i):
    if i & 1 == 0: b = mkbarrier([i + 1], [], [i], [i - 2, i - 1])
    else: b = mkbarrier([i + 1], [i - 1, i], [i], [])
    tg = lambda n, k: (n, k // NSTEP, k % NSTEP)
    inc = valu(f"v_add_u32_e32 v{V_CNT}, 1, v{V_CNT}", [(f"v{V_CNT}", tg("cnt", i - 1)), ("chkd", tg("chkd", i - 1))], [(f"v{V_CNT}", tg("cnt", i))])
    pub = I(f"ds_write_b32 v{V_FW}, v{V_CNT}", "lds_w32", [(f"v{V_CNT}", tg("cnt", i))], [("pub", tg("pub", i))] + [x for x in b.wr if x[1][0] == "dead"], 0, need=b.need)
    rd = I(f"ds_read_b32 v{V_FT}, v{V_FR}", "lds_r", [("pub", tg("pub", i))], [(f"v{V_FT}", tg("ft", i))])
    cmp_ = valu(f"v_cmp_lt_u32_e32 vcc, v{V_FT}, v{V_CNT}", [(f"v{V_FT}", tg("ft", i)), (f"v{V_CNT}", tg("cnt", i))], [("vcc", tg("fc", i))])
    br = I(f"s_cbranch_vccnz L_rt{i % NSTEP}", "branch", [("vcc", tg("fc", i))], b.wr + [("chkd", tg("chkd", i))])
    return inc, pub, rd, cmp_, [br, I(f"L_bk{i % NSTEP}:", "salu0")]

def retry_stubs():
    o = []
    for i in range(NSTEP):
        o += [I(f"L_rt{i}:", "label"),
              raw(f"ds_read_b32 v{V_FT}, v{V_FR}", "lds_r"), raw(f"s_sub_u32 s{S_SPIN}, s{S_SPIN}, 1"), raw(f"s_cbranch_scc1 L_giveup{i}", "branch"),
              raw("s_waitcnt lgkmcnt(0)", "wait"), raw(f"v_cmp_lt_u32_e32 vcc, v{V_FT}, v{V_CNT}", "valu"), raw("s_nop 1", "nop"),
              raw(f"s_cbranch_vccnz L_rt{i}", "branch"), raw(f"s_branch L_bk{i}", "branch"),
              I(f"L_giveup{i}:", "label"), raw(f"s_mov_b32 s{S_SPIN}, 0"), raw("s_waitcnt lgkmcnt(0)", "wait"), raw(f"s_branch L_bk{i}", "branch")]
    return o

def blk_goff(b):
    return (b & 3) * 1024

def q_load(j, b, q):
    t = b >> 2
    stag = ("soQ", j, t)
    so = None
    if b & 3 == 0:
        if t == 4:
            bs = S_QN4 if j == 1 else S_QC4
            so = salu(f"s_mov_b32 s{S_T2}, s{bs}", [(f"s{bs}", ("qb4", j))], [(f"s{S_T2}", stag)], j)
        else:
            bs = S_QN if j == 1 else S_QC
            so = salu(f"s_add_u32 s{S_T2}, s{bs}, {t*4096}", [(f"s{bs}", ("qb", j))], [(f"s{S_T2}", stag)], j)
    go = blk_goff(b)
    o = f" offset:{go}" if go else ""
    nt = (" " + cfg.qflags) if cfg.qflags else ""
    ld = I(f"buffer_load_dwordx4 {rs('v',q,4)}, v{V_VOFF1 if b & 1 else V_VOFF}, {srd(S_Q)}, s{S_T2} offen{o}{nt}", "vload",
           [(f"s{S_T2}", stag), (f"v{V_VOFF}", None)], tagged(R("v", q, 4), ("qs0", j, b)), j)
    return so, ld

def q_scale(j, b, q, pk=False, tmp=(12, 13)):
    vs = []
    if pk:
        U = [V_RCP, V_RCP + 1, V_MX, V_MX + 1]
        for x in range(4):
            r = q + x; u = U[x]
            vs.append(valu(f"v_lshlrev_b32_e32 v{u}, 16, v{r}", [(f"v{r}", ("qs0", j, b, x))], [(f"v{u}", ("u0", j, b, x))], j))
            vs.append(valu(f"v_and_b32_e32 v{r}, s{S_MASK}, v{r}", [(f"v{r}", ("qs0", j, b, x))], [(f"v{r}", ("qs1", j, b, x))], j))
        assert S_C & 1
        for base, x, ti, to in ((U[0], 0, "u0", "u1"), (q, 0, "qs1", "qs2"), (U[2], 2, "u0", "u1"), (q + 2, 2, "qs1", "qs2")):
            vs.append(valu(f"v_pk_mul_f32 v[{base}:{base+1}], v[{base}:{base+1}], s[{S_C-1}:{S_C}] op_sel:[0,1] op_sel_hi:[1,1]",
                           [(f"v{base+y}", (ti, j, b, x + y)) for y in range(2)], [(f"v{base+y}", (to, j, b, x + y)) for y in range(2)], j, "pk"))
        for x in range(4):
            r = q + x; u = U[x]
            vs.append(valu(f"v_cvt_pk_bf16_f32 v{r}, v{u}, v{r}", [(f"v{u}", ("u1", j, b, x)), (f"v{r}", ("qs2", j, b, x))],
                           [(f"v{r}", ("qs3", j, b, x))], j))
    else:
      for x in range(4):
        r = q + x; u = tmp[x & 1]
        vs.append(valu(f"v_lshlrev_b32_e32 v{u}, 16, v{r}", [(f"v{r}", ("qs0", j, b, x))], [(f"v{u}", ("u0", j, b, x))], j))
        vs.append(valu(f"v_and_b32_e32 v{r}, s{S_MASK}, v{r}", [(f"v{r}", ("qs0", j, b, x))], [(f"v{r}", ("qs1", j, b, x))], j))
        vs.append(valu(f"v_mul_f32_e32 v{u}, s{S_C}, v{u}", [(f"v{u}", ("u0", j, b, x))], [(f"v{u}", ("u1", j, b, x))], j))
        vs.append(valu(f"v_mul_f32_e32 v{r}, s{S_C}, v{r}", [(f"v{r}", ("qs1", j, b, x))], [(f"v{r}", ("qs2", j, b, x))], j))
        vs.append(valu(f"v_cvt_pk_bf16_f32 v{r}, v{u}, v{r}", [(f"v{u}", ("u1", j, b, x)), (f"v{r}", ("qs2", j, b, x))],
                       [(f"v{r}", ("qs3", j, b, x))], j))
    wr = I(f"ds_write_b128 v{V_LIN}, {rs('v',q,4)} offset:{b*1024}", "lds_w128",
           [(f"v{V_LIN}", None), (f"ST{b}", ("Ofree", j - 2, b))] + tagged(R("v", q, 4), ("qs3", j, b)), [(f"ST{b}", ("Qs", j, b))], j)
    return vs, wr

def o_drain(j, b, buf, reg=None):
    t = b >> 2
    r = A_RB + 4 * buf if reg is None else reg
    stag = ("soO", j, t)
    so = None
    if b & 3 == 0:
        if t == 4:
            so = salu(f"s_mov_b32 s{S_T3}, s{S_OP4}", [(f"s{S_OP4}", ("qb4", j))], [(f"s{S_T3}", stag)], j)
        else:
            so = salu(f"s_add_u32 s{S_T3}, s{S_OP}, {t*4096}", [(f"s{S_OP}", ("qb", j))], [(f"s{S_T3}", stag)], j)
    rdeps = [(f"SO{t}_{dt}", ("Ow", j, t, dt)) for dt in range(8)]
    rd = I(f"ds_read_b128 {rs('a',r,4)}, v{V_LIN} offset:{b*1024}", "lds_r",
           [(f"v{V_LIN}", None)] + rdeps, tagged(R("a", r, 4), ("rb", j, b)) + [(f"ST{b}", ("Ofree", j, b))], j)
    go = blk_goff(b)
    o = f" offset:{go}" if go else ""
    nt = (" " + cfg.oflags) if cfg.oflags else ""
    st = I(f"buffer_store_dwordx4 {rs('a',r,4)}, v{V_VOFF1 if b & 1 else V_VOFF}, {srd(S_O)}, s{S_T3} offen{o}{nt}", "vstore",
           tagged(R("a", r, 4), ("rb", j, b)) + [(f"s{S_T3}", stag), (f"v{V_VOFF}", None)], [], j, note=f"free{b}")
    return so, rd, st

def exp_ins(j, i, t, kt, r, srctag):
    reg = Sreg(t, kt, i) + r
    return valu(f"v_exp_f32_e32 v{reg}, v{reg}", [(f"v{reg}", srctag)], [(f"v{reg}", ("E", j, i, t, kt, r))], j, "trans")
def cvt_ins(j, i, t, p):
    kt = p >> 1; r = (p & 1) * 2
    a = Sreg(t, kt, i) + r; d = Preg(t, i) + p
    txt = f"v_cvt_pk_bf16_f32 v{d}, v{a}, v{a+1}"
    return valu(txt,
                [(f"v{a}", ("E", j, i, t, kt, r)), (f"v{a+1}", ("E", j, i, t, kt, r + 1))], [(f"v{d}", ("P", j, i, t, p))], j)

def max_chain(j, t):
    m0 = V_MX; m1 = m0 + 1
    s = Sreg(t, 0, 0)
    def st(x): return (f"v{s+x}", ("S", j, 0, t, x >> 2, 3, x & 3))
    T = lambda n: ("mx", j, t, n)
    ch = [
        valu(f"v_max3_f32 v{m0}, v{s}, v{s+1}, v{s+2}", [st(0), st(1), st(2)], [(f"v{m0}", T(2))], j),
        valu(f"v_max_f32_e32 v{m1}, v{m0}, v{s+3}", [(f"v{m0}", T(2)), st(3)], [(f"v{m1}", T(3))], j),
        valu(f"v_max_f32_e32 v{m0}, v{m0}, v{s+3}", [(f"v{m0}", T(2)), st(3)], [(f"v{m0}", T(3))], j),
        valu(f"v_permlane32_swap_b32_e32 v{m0}, v{m1}", [(f"v{m0}", T(3)), (f"v{m1}", T(3))], [(f"v{m0}", T(4)), (f"v{m1}", T(5))], j, "perm"),
        valu(f"v_max_f32_e32 v{m0}, v{m0}, v{m1}", [(f"v{m0}", T(4)), (f"v{m1}", T(5))], [(f"v{m0}", T(6))], j),
        valu(f"v_mov_b32_e32 v{m1}, v{m0}", [(f"v{m0}", T(6))], [(f"v{m1}", T(6))], j),
        valu(f"v_permlane16_swap_b32_e32 v{m0}, v{m1}", [(f"v{m0}", T(6)), (f"v{m1}", T(6))], [(f"v{m0}", T(7)), (f"v{m1}", T(8))], j, "perm"),
    ]
    n = Nreg(t)
    for x in range(2):
        txt = f"v_min3_f32 v{n+x}, -v{m0}, -v{m1}, s{S_CAP}" if t == NT - 1 else f"v_min_f32_e64 v{n+x}, -v{m0}, -v{m1}"
        ch.append(valu(txt, [(f"v{m0}", T(7)), (f"v{m1}", T(8))], [(f"v{n+x}", ("negm", j, t, x))], j))
    ch.append(valu(f"v_mov_b64_e32 v[{n+2}:{n+3}], v[{n}:{n+1}]", [(f"v{n+x}", ("negm", j, t, x)) for x in range(2)],
                   [(f"v{n+2+x}", ("negm", j, t, 2 + x)) for x in range(2)], j))
    adds = {}
    for x in range(8):
        n = Nreg(t)
        adds[(x >> 2, x & 3)] = valu(f"v_add_f32_e32 v{s+x}, v{n}, v{s+x}", [(f"v{n}", ("negm", j, t, 0)), st(x)],
                                     [(f"v{s+x}", ("Sm", j, t, x))], j)
    return ch, adds

def epilogue(j, t, pk=False):
    L = NSTEP - 1
    rc = V_RCP + (t & 1)
    head = [
        valu(f"v_accvgpr_read_b32 v{rc}, a{Lreg(t)}", [(f"a{Lreg(t)}", ("L", j, L, t, 0))], [(f"v{rc}", ("l", j, t))], j),
        valu(f"v_cmp_nge_f32_e64 s[{S_CHK}:{S_CHK+1}], s{S_THR}, v{rc}", [(f"v{rc}", ("l", j, t))], [(f"s{S_CHK}", ("chk", j, t))], j),
        valu(f"v_rcp_f32_e32 v{rc}, v{rc}", [(f"v{rc}", ("l", j, t))], [(f"v{rc}", ("rl", j, t))], j, "trans"),
    ]
    acc = salu(f"s_or_b64 s[{S_FACC}:{S_FACC+1}], s[{S_FACC}:{S_FACC+1}], s[{S_CHK}:{S_CHK+1}]", [(f"s{S_CHK}", ("chk", j, t)), ("facc", ("facc", j, t - 1))],
               [("facc", ("facc", j, t)), ("scc", None)], j)
    per = []
    for dt in range(8):
        o = Oreg(t, dt)
        vs = []
        if Oloc(t, dt)[0] == "a":
            ar = Oloc(t, dt)[1]
            for x in range(4):
                head.append(valu(f"v_accvgpr_read_b32 v{o+x}, a{ar+x}", [(f"a{ar+x}", ("O", j, L, t, dt, x))], [(f"v{o+x}", ("O", j, L, t, dt, x))], j))
        if pk:
            rb = rc & ~1
            sel = "op_sel:[0,1] op_sel_hi:[1,1]" if rc & 1 else "op_sel_hi:[1,0]"
            for x in (0, 2):
                vs.append(valu(f"v_pk_mul_f32 v[{o+x}:{o+x+1}], v[{o+x}:{o+x+1}], v[{rb}:{rb+1}] {sel}",
                               [(f"v{rc}", ("rl", j, t))] + [(f"v{o+x+y}", ("O", j, L, t, dt, x + y)) for y in range(2)],
                               [(f"v{o+x+y}", ("On", j, t, dt, x + y)) for y in range(2)], j, "pk"))
        else:
          for x in range(4):
            vs.append(valu(f"v_mul_f32_e32 v{o+x}, v{rc}, v{o+x}", [(f"v{rc}", ("rl", j, t)), (f"v{o+x}", ("O", j, L, t, dt, x))],
                           [(f"v{o+x}", ("On", j, t, dt, x))], j))
        vs.append(valu(f"v_cvt_pk_bf16_f32 v{o}, v{o}, v{o+1}", [(f"v{o}", ("On", j, t, dt, 0)), (f"v{o+1}", ("On", j, t, dt, 1))],
                       [(f"v{o}", ("Ob", j, t, dt, 0))], j))
        vs.append(valu(f"v_cvt_pk_bf16_f32 v{o+1}, v{o+2}, v{o+3}", [(f"v{o+2}", ("On", j, t, dt, 2)), (f"v{o+3}", ("On", j, t, dt, 3))],
                       [(f"v{o+1}", ("Ob", j, t, dt, 1))], j))
        ow = V_OW1 if dt & 1 else V_OW0
        off = t * 4096 + (dt >> 1) * 256
        w = I(f"ds_write_b64 v{ow}, {rs('v',o,2)} offset:{off}", "lds_w64",
              [(f"v{ow}", None)] + tagged(R("v", o, 2), ("Ob", j, t, dt)),
              [(f"SO{t}_{dt}", ("Ow", j, t, dt))] + [(f"ST{t*4+rb}", ("Ob", j)) for rb in range(4)], j)
        per.append((vs, w))
    if cfg.w2:
        per2 = []
        for da, db in ((0, 4), (1, 5), (2, 6), (3, 7)):
            (va, wa), (vb, wb) = per[da], per[db]
            ow = (V_OW1 if da & 1 else V_OW0) if da < 2 else (V_OW3 if da & 1 else V_OW2)
            w = I(f"ds_write2st64_b64 v{ow}, {rs('v', Oreg(t, da), 2)}, {rs('v', Oreg(t, db), 2)} offset0:{t*8} offset1:{t*8+1}", "lds_w128",
                  wa.rd + wb.rd, wa.wr + wb.wr, j)
            nm = len(va) - 2
            per2.append((va[:nm] + vb[:nm] + va[nm:] + vb[nm:], w))
        per = per2
    return head, acc, per

def fail_commit(j):
    return [
        salu(f"s_cmp_lg_u64 s[{S_FACC}:{S_FACC+1}], 0", [("facc", ("facc", j, 4))], [("scc", ("fc", j))], j),
        salu(f"s_cselect_b32 s{S_X0}, s{S_PBIT}, 0", [("scc", ("fc", j)), (f"s{S_PBIT}", ("bit", j))], [(f"s{S_X0}", None)], j),
        salu(f"s_or_b32 s{S_FAIL}, s{S_FAIL}, s{S_X0}", [], [("scc", None)], j),
        salu(f"s_mov_b64 s[{S_FACC}:{S_FACC+1}], 0", [], [("facc", ("facc", j + 1, -1))], j),
    ]

class Task:
    n = 0
    def __init__(self, ins, rel, dl, preds=(), zone=False):
        self.ins = ins if isinstance(ins, list) else [ins]
        self.kind = self.ins[0].kind
        self.cost = sum(COST[x.kind] for x in self.ins)
        self.rel = rel; self.dl = dl; self.preds = list(preds); self.succ = []
        self.zone = zone
        self.g = None; self.id = Task.n; Task.n += 1
        for p, d in self.preds: p.succ.append((self, d))

class Sched:
    def __init__(self):
        self.sp = []
        self.sc = []; self.mem = []; self.val = []
        self.it_start = []
        self.tasks = []
        self.bars = []
    def add(self, m):
        self.sp.append(m); self.sc.append([]); self.mem.append([]); self.val.append([])
        return len(self.sp) - 1
    @property
    def G(self): return len(self.sp)
    def load(self, g):
        g %= self.G
        nsc = sum(1 for x in self.sc[g] if x.kind != "label" or x.need)
        return sum(COST[x.kind] for x in self.mem[g] + self.val[g]) + 4 * max(0, nsc - 1)
    def put(self, ins, g):
        w = g // self.G
        if w: ins = ins.shifted(-w)
        gg = g % self.G
        ins.gap = gg
        if ins.kind == "salu0": ins.kind = "label"; self.sc[gg].append(ins)
        elif ins.kind in ("salu", "barrier", "branch"): self.sc[gg].append(ins)
        elif ins.kind in VALU_KINDS: self.val[gg].append(ins)
        else: self.mem[gg].append(ins)
        return g
    def task(self, ins, rel, dl, preds=(), zone=False):
        t = Task(ins, rel, dl, preds, zone); self.tasks.append(t); return t
    def forbidden(self, g):
        g %= self.G
        if not self.bars: return False
        for b in self.bars + [self.bars[0] + self.G]:
            if b - cfg.zpre <= g <= b + cfg.zpost: return True
        return False
    def run(self, cut, carry=frozenset(), clip=True):
        G = self.G
        for t in self.tasks:
            for p, d in t.preds: t.rel = max(t.rel, p.rel + d)
        for t in self.tasks:
            t.off = -((t.rel - cut) // G) * G
            if t.id in carry: t.off -= G
            t.r = max(cut, t.rel + t.off); t.d = min(t.dl + t.off, cut + G - 1) if clip else t.dl + t.off
        for t in self.tasks:
            t.lp = [(p, d) for p, d in t.preds if p.off == t.off]
            for p, d in t.preds:
                if p.off != t.off:
                    assert p.off == t.off + G, (t.ins[0].text, p.ins[0].text)
                    if clip or t.id in carry: p.d = min(p.d, t.r + G - d)
                    else: p.xs = getattr(p, "xs", []) + [(t, d)]
        for t in reversed(self.tasks):
            for s_, d in t.succ:
                if s_.off == t.off: t.d = min(t.d, s_.d - d)
            for s_, d in getattr(t, "xs", []): t.d = min(t.d, s_.d + G - d)
            if t.zone:
                while self.forbidden(t.d): t.d -= 1
            assert t.d >= t.r, ("infeasible", t.ins[0].text, t.r, t.d)
        pend = sorted(self.tasks, key=lambda t: t.r)
        act = []; pi = 0
        lastz = [-99]
        def ready(t, g):
            if t.zone and (self.forbidden(g) or (g - lastz[0] < cfg.bigsep and t.d > g)): return False
            return all(p.g is not None and p.g + d <= g for p, d in t.lp)
        def commit(t, g):
            t.g = g; act.remove(t)
            if t.zone: lastz[0] = g
            for x in t.ins: self.put(x, g - t.off)
        for g in range(cut, cut + G):
            while pi < len(pend) and pend[pi].r <= g: act.append(pend[pi]); pi += 1
            key = lambda t: (t.d, t.id)
            isbar = (g % G) in self.bars
            while True:
                rs_ = sorted([t for t in act if t.kind in ("salu", "branch") and ready(t, g)], key=key)
                if rs_ and (not self.sc[g % G] or rs_[0].d <= g): commit(rs_[0], g)
                else: break
            def chain_before(t):
                ch_ = []
                while True:
                    un = [(p, d) for p, d in t.lp if p.g is None or p.g + d > g]
                    if not un: return ch_
                    if len(un) > 1 or un[0][1] != 0 or un[0][0] not in act or un[0][0].kind not in ("valu",): return None
                    t = un[0][0]; ch_.insert(0, t)
                    if len(ch_) > 5: return None
            cap = 8
            if not isbar and self.load(g) == 0:
                for t in sorted([t for t in act if t.kind == "pk"], key=key):
                    ch_ = chain_before(t)
                    if ch_ is None: continue
                    others = [u for u in act if u.kind not in ("salu", "pk", "branch") and ready(u, g) and u not in ch_ and u.cost <= 8]
                    urgent = [u for u in others if key(u) < key(t)]
                    if len(urgent) > cfg.pkurg and t.d > g + 3 and len(t.ins) < 8: continue
                    for u in ch_: commit(u, g)
                    cap = 20
                    break
            while not isbar:
                free = cap - self.load(g)
                if free <= 0: break
                rd = sorted([t for t in act if t.kind not in ("salu", "pk", "branch") and ready(t, g)], key=key)
                if cap == 8:
                    def held(t):
                        n = 0
                        while t.kind == "valu" and len(t.succ) == 1 and t.succ[0][1] == 0 and n < 5:
                            t = t.succ[0][0]; n += 1
                            if t.kind == "pk": return True
                        return False
                    rd = [t for t in rd if not held(t)]
                if free == 8 and cap == 8:
                    if not rd: break
                    t = rd[0]
                    if t.cost == 4:
                        partner = any(u.cost == 4 for u in rd[1:]) or any(s_.cost == 4 and d == 0 and s_.kind != "salu" for s_, d in t.succ)
                        full = [u for u in rd if u.cost >= 8]
                        if not partner and full and t.d > g + 2: t = full[0]
                    commit(t, g)
                else:
                    rd = [t for t in rd if t.cost <= free]
                    if not rd: break
                    commit(rd[0], g)
            while True:
                f = sorted([t for t in act if ready(t, g) and (t.d <= g or (t.kind == "pk" and cap == 20))], key=key)
                if not f: break
                commit(f[0], g)
            late = [t for t in act if t.d <= g]
            assert not late, ("missed", g, late[0].ins[0].text, late[0].d)
        assert pi == len(pend) and (not act or not clip)
        self.left = {t.id for t in act}
    def linear(self, g0, g1):
        out = []
        for g in range(g0, g1):
            out.append(self.sp[g]); out += self.sc[g]; out += self.mem[g]; out += self.val[g]
        return out

def build_schedule(carry=frozenset(), clip=True):
    Task.n = 0
    S = Sched()
    NR = NSTEP // 2
    pv0 = {}; pvend = {}; qkend = {}; qk0 = {}; pvg = {}; qkg = {}; qkf = {}; qkc = {}
    rb = []
    for r in range(NR):
        rb.append(S.G); S.it_start.append(S.G)
        j, e = (-1, NSTEP - 2) if r == 0 else (0, 2 * r - 2)
        def qk(i, t):
            kts = [0] if i == NSTEP - 1 else ([1, 0] if cfg.snake and i & 1 and t & 1 else [0, 1])
            qkf[(i, t)] = S.G
            for n, kt in enumerate(kts):
                rev = cfg.snake and (n == 1 or (len(kts) == 1 and t & 1))
                for pos in range(4):
                    s = 3 - pos if rev else pos
                    g = S.add(qk_mfma(0, i, t, kt, s, pos)); qkg[(i, t, kt, s)] = g
                    if pos == 0: qkc[(i, t, kt)] = g
                    if kt == 0 and pos == 0: qk0[(i, t)] = g
                qkend[(i, t, kt)] = g
        for t in range(NT):
            if t == 3: S.it_start.append(S.G)
            pv0[(r, t)] = S.G
            if r == 0:
                for par in range(2):
                    for dt in range(8): pvg[(r, t, dt, par)] = S.add(pv_mfma(j, e + par, t, dt))
                    pvend[(r, t)] = S.add(sum_mfma(j, e + par, t))
            else:
                for dt in range(8):
                    for par in range(2): pvg[(r, t, dt, par)] = S.add(pv_mfma(j, e + par, t, dt))
                S.add(sum_mfma(j, e, t)); pvend[(r, t)] = S.add(sum_mfma(j, e + 1, t))
            qk(2 * r, t)
        for t in range(NT): qk(2 * r + 1, t)
    G = S.G
    its = S.it_start + [G]
    rb += [G, G + rb[1]]
    for t in range(NT):
        for d in range(2):
            pv0[(NR + d, t)] = pv0[(d, t)] + G; pvend[(NR + d, t)] = pvend[(d, t)] + G; qk0[(NSTEP + d, t)] = qk0[(d, t)] + G
        for dt in range(8):
            for par in range(2): pvg[(NR, t, dt, par)] = pvg[(0, t, dt, par)] + G
        for kt in range(2):
            for s in range(4): qkg[(NSTEP, t, kt, s)] = qkg[(0, t, kt, s)] + G; qkg[(NSTEP + 1, t, kt, s)] = qkg[(1, t, kt, s)] + G
    LAT = cfg.lat
    RL = cfg.rl
    T = S.task
    pubg = {}; chkg = {}
    for n in range(NSTEP + 1):
        base = rb[n // 2]
        pubg[n] = base + (cfg.pubA if n & 1 else cfg.pubB); chkg[n] = pubg[n] + cfg.fgap
    for n in range(NSTEP):
        inc, pub, rd, cmp_, br = flag_ops(n)
        a_ = T(inc, pubg[n] - 20, pubg[n] - 1)
        T(pub, pubg[n] - 1, pubg[n], [(a_, 1)], zone=True)
        b_ = T(rd, chkg[n] - 11, chkg[n] - 10)
        c_ = T(cmp_, chkg[n] - 3, chkg[n] - 2, [(b_, 7)])
        T(br, chkg[n], chkg[n], [(c_, 2)])
    mprev = None
    for i in range(NSTEP):
        for t in range(NT):
            nk = 1 if i == NSTEP - 1 else 2
            if i & 1 == 0: hi = qk0[(i + 1, t)] - 1
            else:
                hi = pv0[(i // 2 + 1, t)] - 1
                if t == 0 and nk == 2: hi = min(hi, qkc[(i, 4, 1)] - 1)
            if i == 0:
                ch, adds = max_chain(0, t)
                p = mprev
                lo = qkend[(0, t, 0)] + LAT
                negs = []
                for n, x in enumerate(ch):
                    isneg = n >= len(ch) - 3
                    q = T(x, lo, min(lo + cfg.maxwin, qkf[(1, t)] - 2), [] if p is None else [(p, 1 if x.kind == "perm" else 0)])
                    p = q
                    if isneg: negs.append(q)
                mprev = p
            pc = None
            for kt in range(nk):
                es = []
                for r in range(4):
                    if i == 0:
                        a_ = T(adds[(kt, r)], qkend[(0, t, kt)] + LAT, hi, [(negs[0], 0)])
                        es.append(T(exp_ins(0, 0, t, kt, r, ("Sm", 0, t, 4 * kt + r)), lo, hi, [(a_, 0)]))
                    else:
                        es.append(T(exp_ins(0, i, t, kt, r, ("S", 0, i, t, kt, 3, r)), qkend[(i, t, kt)] + LAT, hi))
                    if r & 1:
                        pc = T(cvt_ins(0, i, t, 2 * kt + (r >> 1)), 0, hi, [(es[r - 1], 1), (es[r], 1)] + ([(pc, 0)] if pc else []))
    pd = None
    def dmas(lst, r0, step):
        nonlocal pd
        for x, (which, tile) in enumerate(lst):
            so, m0, d0, d1 = kv_dma(which, tile // NSTEP, tile % NSTEP)
            r = r0 + x * step
            a_ = T(so, r, r + 20, [(pd, 1)] if x else [])
            b_ = T(m0, r, r + 20, [(pd, 1)] if x else [])
            d1.kind = "dma"
            pd = T(d0, r, r + 12, [(a_, 1), (b_, 1)], zone=True)
            pd = T(d1, r, r + 20, [(pd, cfg.dsplit)], zone=True)
    for r in range(NR):
        e, o_ = 2 * r, 2 * r + 1
        kr = [k_read(0, o_, kt, s) for kt in range(1 if o_ == NSTEP - 1 else 2) for s in range(4)]
        lo = chkg[e] + 1; hi = pubg[o_] - RL
        pr_ = None
        for k, x in enumerate(kr):
            rr = lo + int(k * (hi - lo - cfg.rdwin) / len(kr))
            pr_ = T(x, rr, min(hi, rr + cfg.rdwin), [(pr_, 1)] if pr_ else [])
        items = []
        for dt in range(8):
            for par in range(2):
                for half in range(1 if e + par == NSTEP - 1 else 2):
                    items.append((v_read(0, e + par, dt, half), pvg[(r, 4, dt, par)] + 1, pvg[(r + 1, 0, dt, par)] - RL))
        for kt in range(2):
            for s in range(4):
                items.append((k_read((e + 2) // NSTEP, (e + 2) % NSTEP, kt, s), qkg[(e, 4, kt, s)] + 1, qkg[(e + 2, 0, kt, s)] - RL))
        lo = chkg[o_] + 1; hi = min(pubg[e + 2] - RL, max(d for _, _, d in items))
        items.sort(key=lambda z: z[2])
        vs_ = [x for x in items if "tr_b16" in x[0].text]; ks_ = [x for x in items if "tr_b16" not in x[0].text]
        h2 = len(vs_) // 2
        items = vs_[:h2] + weave2(vs_[h2:], ks_)
        pr_ = None
        for k, (x, a_, d_) in enumerate(items):
            rr = max(a_, lo + int(k * (hi - lo - cfg.rdwin - cfg.bmar) / len(items)))
            pr_ = T(x, rr, min(hi, d_, rr + cfg.rdwin), [(pr_, 1)] if pr_ else [])
        dmas([("V", e - 2 + NS), ("V", e - 1 + NS), ("K", e + NS)], chkg[e] + 1, cfg.dma2)
        dmas([("K", o_ + NS)], chkg[o_] + 1, 0)
    epi_w = {}
    pacc = None; qr = {}
    c0 = its[2] + cfg.c0
    step = (G - cfg.zpre - 2 - c0) / 20
    NQ = len(V_QS)
    wt = {}; lt = {}; drt = {}
    def mkload(b, rel, preds):
        so, ld = q_load(1, b, V_QS[b % NQ])
        if so is not None:
            preds = preds + [(T(so, max(1, rel - 4), rel + 30, [(lt[b - 1], 1)] if b else []), 1)]
        if b: preds = preds + [(lt[b - 1], 0)]
        lt[b] = T(ld, rel, rel + cfg.qldwin, preds, zone=True)
    for b in range(NQ): mkload(b, 6 + b * cfg.q0step, [])
    epi = {t: epilogue(0, t, pk=cfg.pk_epi) for t in range(NT)}
    pst = None; pv_ = None
    for b in range(20):
        lo = c0 + int(b * step); hi = c0 + int((b + 1) * step) - 1
        so, rd, st = o_drain(-1, b, b & 1)
        drt[b] = T(rd, lo - cfg.dlead if b else lo, hi - 1)
        pr = [(drt[b], 9)]
        if so is not None: pr.append((T(so, lo - cfg.dlead if b else lo, hi + 30, [(pst, 1)] if pst else []), 1))
        if pst: pr.append((pst, 0))
        pst = T(st, 0, min(hi + 30, G - 1), pr, zone=True)
        vs, wr = q_scale(1, b, V_QS[b % NQ], pk=b < cfg.qpk, tmp=(V_RCP, V_RCP + 1))
        p = pv_
        if b < cfg.qpk: vs = vs[:8] + [vs[8:12]] + vs[12:]
        for v in vs:
            p = T(v, lo, hi + cfg.qslack, [(p, 0)] if p else [])
        pv_ = p
        wt[b] = T(wr, lo, min(hi + cfg.qslack, G - 1), [(p, 1), (drt[b], 0)], zone=True)
        if b + NQ < 20: mkload(b + NQ, hi + cfg.qslack + 1, [(wt[b], 1)])
    for t in range(NT):
        for s_ in range(4):
            qr[(t, s_)] = T(q_read(1, t, s_), qkend[(NSTEP - 1, t, 0)] + 1, qk0[(NSTEP, t)] - 12, [(wt[4 * t + 3], 0)] + ([(qr[(t, s_ - 1)], 2)] if s_ else []))
    wslot = 0
    for t in range(NT):
        head, acc, per = epi[t]
        lo = pvend[(NR, t)] + LAT
        hi = pv0[(NR + 1, t)] - 2
        if t == 0: hi = qkc[(1, 0, 1)] + G - 12
        h0 = T(head[0], lo, lo + 2)
        h1 = T(head[1], lo, lo + 2, [(h0, 0)] + ([(pacc, 0)] if pacc else []))
        pacc = T(acc, lo, lo + 12, [(h1, cfg.accd)])
        h2 = T(head[2], lo, lo + 2, [(h1, 0)])
        burst = [v for vs, w in per for v in vs if v.kind == "pk"]
        pb = [(h2, 1)]
        p = None
        for x in head[3:]: p = T(x, lo, hi, [(p, 0)] if p else [])
        if p: pb.append((p, 0))
        bt = T(burst, lo, lo + cfg.bwin, pb)
        for dt, (vs, w) in enumerate(per):
            wslot = max(wslot + cfg.epistep * (2 if cfg.w2 else 1), lo + cfg.epi0)
            while cfg.wno[0] <= wslot - G <= cfg.wno[1]: wslot += 1
            h = min(hi + dt, wslot)
            p = bt
            for v in vs:
                if v.kind != "pk": p = T(v, lo, h, [(p, 0)])
            T(w, h - 1, h, [(p, 1)] + [(qr[(t, s_)], 0) for s_ in range(4)], zone=True)
        if t == NT - 1:
            T(fail_commit(0), lo, hi, [(pacc, 1)])
    if cfg.tpf:
        g0 = its[cfg.tpf] + 20
        a_ = T([salu(f"s_getpc_b64 s[{S_X0}:{S_X0+1}]", [], [(f"s{S_X0}", ("pc", 0))]), I("L_pc2:", "salu0")], g0, g0 + 4)
        b_ = T(valu("v_lshlrev_b32_e32 v12, 6, v0", [], [("v12", ("tp", 0, 0))]), g0, g0 + 8, [(wt[16], 2)])
        c_ = T(valu("v_add_u32_e32 v12, L_tail-L_pc2, v12", [("v12", ("tp", 0, 0))], [("v12", ("tp", 0, 1))]), g0, g0 + 8, [(b_, 0)])
        d_ = T(valu("v_mov_b32_e32 v13, 0", [], [("v13", ("tp", 0, 2))]), g0, g0 + 8, [(wt[16], 2)])
        e_ = T(valu(f"v_lshl_add_u64 v[12:13], v[12:13], 0, s[{S_X0}:{S_X0+1}]", [("v12", ("tp", 0, 1)), ("v13", ("tp", 0, 2)), (f"s{S_X0}", ("pc", 0))],
                    [("v12", ("tp", 0, 3)), ("v13", ("tp", 0, 4))]), g0, g0 + 10, [(a_, 1), (c_, 0), (d_, 0)])
        T(I("global_load_dword v12, v[12:13], off", "vload", [("v12", ("tp", 0, 3)), ("v13", ("tp", 0, 4))], [("v12", None)]), g0, g0 + 16, [(e_, 1)], zone=True)
    cutb = cfg.cutb
    S.run(c0 + int(cutb * step) if cfg.cut is None else cfg.cut, carry, clip)
    if not clip: return S.left
    S.qkend = qkend; S.qk0 = qk0; S.pv0 = pv0
    sys.stderr.write(f"Q loads {[lt[b].g - lt[b].off for b in range(20)]} writes {[wt[b].g - wt[b].off for b in range(20)]}\n")
    return S, its

def raw(text, kind="salu", rd=(), wr=()): return I(text, kind, rd, wr)

def setup_code():
    o = []
    A = lambda t, k="salu", rd=(), wr=(): o.append(raw(t, k, [(r, None) for r in rd], [(r, None) for r in wr]))
    A("s_cmp_ge_u32 s2, 256"); A("s_cbranch_scc1 L_end", "branch")
    for b, off in ((S_K, 8), (S_Q, 0), (S_V, 16), (S_O, 24)):
        A(f"s_load_dwordx2 s[{b}:{b+1}], s[0:1], {off}")
    o.extend(code_prefetch())
    V = lambda t, rd=(), wr=(): A(t, "valu", rd, wr)
    V("v_lshrrev_b32_e32 v9, 6, v0", ["v0"], ["v9"])
    V("v_and_b32_e32 v0, 63, v0", ["v0"], ["v0"])
    V(f"v_readfirstlane_b32 s{S_W}, v9", ["v9"], [f"s{S_W}"])
    V("v_bfe_u32 v9, v0, 2, 2", ["v0"], ["v9"])
    V("v_bfe_u32 v10, v0, 3, 1", ["v0"], ["v10"])
    V("v_and_b32_e32 v11, 3, v0", ["v0"], ["v11"])
    V("v_xor_b32_e32 v10, v10, v11", ["v10", "v11"], ["v10"])
    V("v_lshlrev_b32_e32 v10, 4, v10", ["v10"], ["v10"])
    V("v_lshl_add_u32 v10, v9, 8, v10", ["v9", "v10"], ["v10"])
    V("v_lshrrev_b32_e32 v11, 4, v0", ["v0"], ["v11"])
    V(f"v_lshl_add_u32 v{V_VOFF}, v11, 6, v10", ["v11", "v10"], [f"v{V_VOFF}"])
    V(f"v_xor_b32_e32 v{V_VOFF1}, 32, v{V_VOFF}", [f"v{V_VOFF}"], [f"v{V_VOFF1}"])
    A(f"s_and_b32 s{S_X0}, s2, 7")
    A(f"s_lshr_b32 s{S_X0+1}, s2, 4")
    A(f"s_lshl_b32 s{S_X0}, s{S_X0}, 4")
    A(f"s_add_u32 s{S_X0}, s{S_X0}, s{S_X0+1}")
    A(f"s_mul_i32 s{S_H0}, s{S_X0}, {HEAD}")
    A(f"s_bfe_u32 s{S_X0}, s2, 0x10003")
    A(f"s_lshl_b32 s{S_LW}, s{S_W}, 11", rd=[f"s{S_W}"])
    A(f"s_mul_i32 s{S_LST}, s{S_W}, 20480")
    A(f"s_mul_i32 s{S_QREL}, s{S_X0}, {320*256}")
    A(f"s_add_u32 s{S_QREL}, s{S_QREL}, s{S_LST}")
    A(f"s_add_u32 s{S_LST}, s{S_LST}, {STAGE}")
    A(f"s_cmp_ge_u32 s{S_W}, 2")
    A(f"s_cselect_b32 s{S_W19}, {OOB}, {19*8192}")
    A(f"s_lshl_b32 s{S_X0}, s{S_X0}, 2")
    A(f"s_add_u32 s{S_X0}, s{S_X0}, s{S_W}")
    A(f"s_cmp_eq_u32 s{S_X0}, 7")
    A(f"s_cselect_b32 s{S_T4OFF}, {OOB}, {4*4096}")
    A(f"s_mov_b32 s{S_CAP}, 0x7f800000")
    A(f"s_cselect_b32 s{S_CAP}, 0xf149f2ca, s{S_CAP}")
    A(f"s_mov_b32 s{S_C}, {f32bits(CSCALE):#x}")
    A(f"s_mov_b32 s{S_MASK}, 0xffff0000")
    A(f"s_mov_b32 s{S_THR}, {f32bits(THRESH):#x}")
    A(f"s_mov_b64 s[{S_FACC}:{S_FACC+1}], 0")
    A(f"s_mov_b32 s{S_FAIL}, 0")
    A(f"s_mov_b32 s{S_JOB}, 4")
    A(f"s_mov_b32 s{S_CBIT}, 0")
    A(f"s_add_u32 s{S_KVN}, s{S_H0}, s{S_LW}")
    A(f"s_add_u32 s{S_QN}, s{S_H0}, s{S_QREL}")
    A(f"s_add_u32 s{S_QN4}, s{S_QN}, s{S_T4OFF}")
    A(f"s_mov_b32 s{S_QC}, {OOB}")
    A(f"s_mov_b32 s{S_QC4}, {OOB}")
    for b in (S_Q, S_K, S_V, S_O):
        A(f"s_mov_b32 s{b+2}, {TOTAL}"); A(f"s_mov_b32 s{b+3}, 0x20000")
    return o

def setup_addrs():
    o = []
    V = lambda t, rd=(), wr=(): o.append(raw(t, "valu", [(r, None) for r in rd], [(r, None) for r in wr]))
    V("v_bfe_u32 v9, v0, 2, 2", ["v0"], ["v9"])
    V("v_lshlrev_b32_e32 v9, 10, v9", ["v9"], ["v9"])
    V("v_and_b32_e32 v10, 3, v0", ["v0"], ["v10"])
    V("v_lshl_add_u32 v9, v10, 6, v9", ["v9", "v10"], ["v9"])
    V("v_bfe_u32 v10, v0, 1, 2", ["v0"], ["v10"])
    V("v_lshrrev_b32_e32 v11, 4, v0", ["v0"], ["v11"])
    V("v_xor_b32_e32 v12, v10, v11", ["v10", "v11"], ["v12"])
    V(f"v_lshl_add_u32 v{V_KADDR}, v12, 4, v9", ["v12", "v9"], [f"v{V_KADDR}"])
    V(f"v_add_u32_e32 v{V_QADDR}, s{S_LST}, v{V_KADDR}", [f"v{V_KADDR}"], [f"v{V_QADDR}"])
    V("v_lshrrev_b32_e32 v12, 5, v0", ["v0"], ["v12"])
    V("v_xor_b32_e32 v12, v10, v12", ["v10", "v12"], ["v12"])
    V("v_lshl_add_u32 v12, v12, 4, v9", ["v12", "v9"], ["v12"])
    V("v_bfe_u32 v13, v0, 4, 1", ["v0"], ["v13"])
    V("v_lshl_add_u32 v12, v13, 3, v12", ["v13", "v12"], ["v12"])
    V(f"v_add_u32_e32 v{V_OW0}, s{S_LST}, v12", ["v12"], [f"v{V_OW0}"])
    V(f"v_xor_b32_e32 v{V_OW1}, 32, v{V_OW0}", [f"v{V_OW0}"], [f"v{V_OW1}"])
    V("v_lshrrev_b32_e32 v9, 4, v0", ["v0"], ["v9"])
    V("v_lshlrev_b32_e32 v9, 10, v9", ["v9"], ["v9"])
    V("v_bfe_u32 v10, v0, 2, 2", ["v0"], ["v10"])
    V("v_lshl_add_u32 v9, v10, 6, v9", ["v9", "v10"], ["v9"])
    V("v_bfe_u32 v10, v0, 3, 2", ["v0"], ["v10"])
    V("v_bfe_u32 v11, v0, 1, 1", ["v0"], ["v11"])
    V("v_xor_b32_e32 v10, v10, v11", ["v10", "v11"], ["v10"])
    V("v_lshl_add_u32 v9, v10, 4, v9", ["v9", "v10"], ["v9"])
    V("v_and_b32_e32 v10, 1, v0", ["v0"], ["v10"])
    V("v_lshl_add_u32 v9, v10, 3, v9", ["v9", "v10"], ["v9"])
    V(f"v_add_u32_e32 v{V_VA0}, {VRING}, v9", ["v9"], [f"v{V_VA0}"])
    V(f"v_xor_b32_e32 v{V_VA1}, 32, v{V_VA0}", [f"v{V_VA0}"], [f"v{V_VA1}"])
    V("v_lshlrev_b32_e32 v9, 4, v0", ["v0"], ["v9"])
    V(f"v_add_u32_e32 v{V_LIN}, s{S_LST}, v9", ["v9"], [f"v{V_LIN}"])
    if cfg.flags:
        V("v_and_b32_e32 v9, 3, v0", ["v0"], ["v9"])
        V("v_lshlrev_b32_e32 v9, 2, v9", ["v9"], ["v9"])
        V(f"v_add_u32_e32 v{V_FR}, {FLAGS}, v9", ["v9"], [f"v{V_FR}"])
        V(f"v_mov_b32_e32 v9, s{S_W}", [], ["v9"])
        V("v_lshlrev_b32_e32 v9, 2, v9", ["v9"], ["v9"])
        V(f"v_add_u32_e32 v{V_FW}, {FLAGS}, v9", ["v9"], [f"v{V_FW}"])
        o.append(I(f"v_mov_b32_e32 v{V_CNT}, 1", "valu", [], [(f"v{V_CNT}", ("cnt", 0, 1)), ("chkd", ("chkd", 0, 1))]))
        o.append(raw(f"ds_write_b32 v{V_FW}, v{V_CNT}", "lds_w32", [(f"v{V_FW}", None), (f"v{V_CNT}", None)]))
        o.append(raw(f"s_mov_b32 s{S_SPIN}, 0x1000000"))
    V("v_mov_b32_e32 v9, 0x3f803f80", [], ["v9"])
    if cfg.sparse1:
        V("v_and_b32_e32 v10, 3, v0", ["v0"], ["v10"])
        V("v_cmp_eq_u32_e32 vcc, 0, v10", ["v10"], ["vcc"])
        V("v_cndmask_b32_e32 v9, 0, v9, vcc", ["v9", "vcc"], ["v9"])
    for x in range(4):
        o.append(I(f"v_accvgpr_write_b32 a{A_ONE+x}, v9", "valu", [("v9", None)], [(f"a{A_ONE+x}", ("one", None, x))]))
    V(f"v_add_u32_e32 v{V_OW2}, 256, v{V_OW0}", [f"v{V_OW0}"], [f"v{V_OW2}"])
    V(f"v_add_u32_e32 v{V_OW3}, 256, v{V_OW1}", [f"v{V_OW1}"], [f"v{V_OW3}"])
    return o

def rotate():
    o = []
    A = lambda t, rd=(), wr=(): o.append(salu(t, rd, wr))
    A(f"s_mov_b32 s{S_OP}, s{S_QC}", [], [(f"s{S_OP}", ("qb", -1))])
    A(f"s_mov_b32 s{S_OP4}, s{S_QC4}", [], [(f"s{S_OP4}", ("qb4", -1))])
    A(f"s_mov_b32 s{S_QC}, s{S_QN}", [], [(f"s{S_QC}", ("qb", 0))]); A(f"s_mov_b32 s{S_QC4}, s{S_QN4}", [], [(f"s{S_QC4}", ("qb4", 0))])
    A(f"s_mov_b32 s{S_KVC}, s{S_KVN}", [], [(f"s{S_KVC}", ("kvb", 0))])
    A(f"s_add_u32 s{S_KV19}, s{S_KVN}, s{S_W19}", [], [(f"s{S_KV19}", ("kv19", 0))])
    A(f"s_mov_b32 s{S_PBIT}, s{S_CBIT}", [], [(f"s{S_PBIT}", ("bit", -1))])
    A(f"s_lshl_b32 s{S_CBIT}, s{S_CBIT}, 1")
    A(f"s_max_u32 s{S_CBIT}, s{S_CBIT}, 1")
    A(f"s_cmp_gt_u32 s{S_JOB}, 1")
    A(f"s_cselect_b32 s{S_X0}, {JOBSTRIDE}, {OOB}")
    A(f"s_add_u32 s{S_KVN}, s{S_KVN}, s{S_X0}", [], [(f"s{S_KVN}", ("kvb", 1))])
    A(f"s_add_u32 s{S_QN}, s{S_QN}, s{S_X0}", [], [(f"s{S_QN}", ("qb", 1))])
    A(f"s_add_u32 s{S_QN4}, s{S_QN4}, s{S_X0}", [], [(f"s{S_QN4}", ("qb4", 1))])
    A(f"s_sub_u32 s{S_JOB}, s{S_JOB}, 1")
    return o

def tile_of(x):
    tg = x.wr[0][1]
    if tg[0] in ("S", "E", "P", "O", "L"): return (tg[2], tg[3])
    if tg[0] in ("mx", "negm", "Sm"): return (0, tg[2])
    return None

def code_prefetch():
    o = []
    A = lambda t, k="salu", rd=(), wr=(): o.append(raw(t, k, [(r, None) for r in rd], [(r, None) for r in wr]))
    if not cfg.cpf: return o
    A(f"s_getpc_b64 s[{S_X0+12}:{S_X0+13}]")
    A("L_pc:", "label")
    if cfg.cpf == 1:
        A(f"s_lshr_b32 s{S_X0}, s2, 3"); A(f"s_lshl_b32 s{S_X0}, s{S_X0}, 11")
        A("v_and_b32_e32 v26, 15, v0", "valu", ["v0"], ["v26"])
        A(f"v_lshl_add_u32 v26, v26, 7, s{S_X0}", "valu", ["v26"], ["v26"])
        A(f"v_min_u32_e32 v26, L_slow-L_pc, v26", "valu", ["v26"], ["v26"])
        A("v_mov_b32_e32 v27, 0", "valu", [], ["v27"])
        A(f"v_lshl_add_u64 v[26:27], v[26:27], 0, s[{S_X0+12}:{S_X0+13}]", "valu", ["v26", "v27"], ["v26", "v27"])
        A("global_load_dword v27, v[26:27], off", "vload", ["v26", "v27"], ["v27"])
        return o
    A("v_lshlrev_b32_e32 v26, 7, v0", "valu", ["v0"], ["v26"])
    for k in range(cfg.cpf):
        A(f"v_min_u32_e32 v27, L_slow-L_pc, v26", "valu", ["v26"], ["v27"])
        A(f"global_load_dword v27, v27, s[{S_X0+12}:{S_X0+13}]", "vload", ["v27"], ["v27"])
        if k + 1 < cfg.cpf: A("v_add_u32_e32 v26, 32768, v26", "valu", ["v26"], ["v26"])
    return o

def weave2(vs, ms):
    out = []; n = len(vs); k = len(ms); mi = 0
    for i, v in enumerate(vs):
        while mi < k and mi * n <= i * k: out.append(ms[mi]); mi += 1
        out.append(v)
    return out + ms[mi:]

def build_prologue(it01):
    o = []
    init = [("facc", ("facc", 0, -1))]
    for x in range(NS):
        init += [(f"KF{x}", ("freeK", 0, x)), (f"VF{x}", ("freeV", 0, x))]
    for b in range(20): init.append((f"ST{b}", ("Ofree", -2, b)))
    o.append(I("; init state", "label", [], init))
    land = lambda b: Oreg(b >> 2, b & 3)
    pend = []
    def kv(which, tile): pend.append(kv_dma(which, 0, tile))
    def qt(t):
        for b in range(4 * t, 4 * t + 4): pend.append([x for x in q_load(0, b, land(b)) if x is not None])
    kv("K", 0); qt(0); qt(1); kv("K", 1); qt(2); qt(3)
    if cfg.pord == 0: kv("V", 0); kv("V", 1); qt(4)
    else: qt(4); kv("V", 0); kv("V", 1)
    kv("K", 2); kv("K", 3)
    early = [("V", 2), ("V", 3), ("K", 4)][:cfg.pearly]
    for z in early: kv(*z)
    assert NS == 4
    order = [x for g in pend for x in g if x.kind in VMEM_KINDS]
    qidx = {x.wr[0][1][2]: n for n, x in enumerate(order) if x.kind == "vload"}
    cnt = [0]
    def issue(upto):
        r = []
        while pend and cnt[0] < upto:
            g = pend.pop(0); r.extend(g); cnt[0] += sum(1 for x in g if x.kind in VMEM_KINDS)
        return r
    o.extend(issue(cfg.pro_first))
    o.extend(setup_addrs())
    isflag = lambda x: x.kind == "branch" or (x.wr and x.wr[0][1] is not None and x.wr[0][1][0] in ("cnt", "pub", "ft", "fc"))
    mine = [x.copy() for x in it01 if x.aff >= 0 and x.kind != "label" and not isflag(x)]
    isv = lambda x: x.kind in VALU_KINDS and x.aff == 0
    C = {t: [x for x in mine if isv(x) and tile_of(x) == (0, t)] for t in range(NT)}
    E = {t: [x for x in mine if isv(x) and tile_of(x) == (1, t)] for t in range(NT)}
    B = {t: [x for x in mine if x.kind == "mfma" and x.wr[0][1][0] == "S" and tile_of(x) == (0, t)] for t in range(NT)}
    D = {t: [x for x in mine if x.kind == "mfma" and x not in B[t] and tile_of(x)[1] == t] for t in range(NT)}
    bars = [x for x in mine if x.kind == "barrier"]
    fr = lambda nm, i: [x for x in mine if x.kind == "lds_r" and x.wr[0][1][0] == nm and x.wr[0][1][2] == i]
    late = [x for x in mine if x.kind in VMEM_KINDS or x.kind == "salu"]
    nlate = len(late)
    def isearly(x):
        tg = x.wr[0][1]
        return tg is not None and tg[0] in ("soK", "m0K", "Kd", "soV", "m0V", "Vd") and ("K" if "K" in tg[0] else "V", tg[2]) in early
    late = [x for x in late if not isearly(x)]
    acc = sum(len(d[t]) for d in (B, C, D, E) for t in range(NT)) + len(bars) + nlate + sum(len(fr(*z)) for z in (("Kf", 0), ("Kf", 1), ("Kf", 2), ("Vf", 0), ("Vf", 1)))
    nqr = len([x for x in mine if x.kind == "lds_r" and x.wr[0][1][0] == "Q"])
    assert acc + nqr == len(mine), (acc, nqr, len(mine))
    bars = [mkbarrier([1], [], [0], []), mkbarrier([2], [0, 1], [1], [])]
    def blk(b):
        vs, wr = q_scale(0, b, land(b))
        return vs[:1] + issue(qidx[b] + 1 + cfg.pro_depth) + vs[1:] + [wr]
    qrd = lambda t: [q_read(0, t, s_) for s_ in range(4)]
    def weave3(vs, ms):
        out = weave2(vs, ms)
        i = 1
        while i < len(out):
            x = out[i]
            if (x.kind in LDS_KINDS or x.kind in VMEM_KINDS) and out[i - 1].kind in VALU_KINDS:
                for k in range(i + 1, min(len(out), i + 5)):
                    if out[k].kind == "mfma":
                        out.insert(i, out.pop(k)); break
            i += 1
        return out
    A_ = lambda t: [x for b in range(4 * t, 4 * t + 4) for x in blk(b)]
    bk = mkbarrier([0], [], [], [])
    o.extend(A_(0)); o.extend(qrd(0))
    x = blk(4) + blk(5)
    o.extend(x[:-1]); o.append(bk)
    o.extend([k_read(0, 0, kt, s_) for kt in range(2) for s_ in range(4)])
    o.append(x[-1])
    o.extend(blk(6)); o.extend(weave3(blk(7), B[0])); o.extend(qrd(1))
    o.extend(C[0])
    o.append(bars[0])
    o.extend(weave2(fr("Kf", 1), B[1]))
    o.extend(blk(8)); o.extend(weave3(blk(9) + blk(10) + blk(11), D[0])); o.extend(qrd(2)); o.extend(C[1])
    o.extend(weave3(A_(3), B[2] + D[1])); o.extend(qrd(3)); o.extend(C[2]); o.extend(E[0])
    o.extend(weave3(A_(4), B[3] + D[2])); o.extend(qrd(4)); o.extend(C[3])
    o.extend(weave3(issue(cnt[0] + cfg.pmid) + E[1] + E[2], B[4] + D[3]))
    o.extend(C[4][:cfg.pc4]); o.extend(issue(99)); o.extend(C[4][cfg.pc4:]); o.append(bars[1])
    burst = [x for x in mine if x.kind == "lds_r" and x.wr[0][1][0] == "Vf"] + fr("Kf", 2)
    o.extend(weave2(burst, D[4])); o.extend(late + E[3] + E[4])
    return o

def build_tail(it0, rest):
    left = [x.copy() for x in it0 + rest if x.aff == -1 and x.kind in VALU_KINDS and x.wr[0][1][0] in ("E", "P")]
    lrd = [x.copy() for x in it0 + rest if x.aff == -1 and x.kind == "lds_r" and x.wr[0][1][0] == "Vf"]
    JJ = {t: [x for par in range(2) for x in [sum_mfma(-1, NSTEP - 2 + par, t)] + [pv_mfma(-1, NSTEP - 2 + par, t, dt) for dt in range(8)]]
          for t in range(NT)}
    ep = {t: epilogue(-1, t, pk=(t >= cfg.tail_pk)) for t in range(NT)}
    dr = {b: o_drain(-1, b, 0, A_Q + 4 * b) for b in range(20)}
    def head(t): return [ep[t][0][0], ep[t][0][1], ep[t][0][2]]
    def muls(t): return [v for vs, w in ep[t][2] for v in vs if "cvt" not in v.text]
    def cvts(t): return [v for vs, w in ep[t][2] for v in vs if "cvt" in v.text]
    def wrs(t): return [w for vs, w in ep[t][2]]
    def rds(t): return [dr[b][1] for b in range(4 * t, 4 * t + 4)] + [dr[4 * t][0]]
    def sts(t): return [dr[b][2] for b in range(4 * t, 4 * t + 4)]
    o = []
    def under(ms, fill):
        fill = list(fill)
        for m in ms:
            o.append(m); c = 0
            while fill and (c + COST[fill[0].kind] <= 8 or c == 0):
                x = fill.pop(0); o.append(x); c += COST[x.kind]
        return fill
    o.extend(lrd)
    o.extend(under(JJ[0], left))
    k0 = cfg.tail0
    o.extend(under(JJ[1][:5], head(0) + [ep[0][1]]))
    o.extend(under(JJ[1][5:k0], ep[0][0][3:]))
    ms = JJ[1][k0:] + JJ[2] + JJ[3] + JJ[4]
    for t in range(NT):
        o.extend(muls(t))
        cw = []
        c = cvts(t); w = wrs(t)
        nc = len(c) // len(w)
        for dt in range(len(w)):
            cw += c[nc * dt: nc * dt + nc]
            if dt >= 1: cw.append(w[dt - 1])
        cw.append(w[-1])
        if t >= 1: cw = cw[:4] + sts(t - 1) + cw[4:]
        if t + 1 < NT: cw = cw[:12] + head(t + 1) + cw[12:] + [ep[t + 1][1]]
        need = (18 - k0 if t == 0 else 18)
        k = min(len(ms), need + (5 if t == 0 else 0))
        o.extend(under(ms[:k], cw)); ms = ms[k:]
        if t + 1 < NT: o.extend(rds(t))
    assert not ms
    o.extend(rds(NT - 1)); o.extend(fail_commit(-1)); o.extend(sts(NT - 1))
    return o

def build():
    carry = frozenset()
    for _ in range(cfg.passes): carry = carry | build_schedule(carry, False)
    S, its = build_schedule(carry)
    G = S.G
    it0 = S.linear(0, its[2])
    rest = S.linear(its[2], G)
    setup = setup_code()
    rot_p = rotate() + [I("s_waitcnt lgkmcnt(0)", "wait", note="full")]
    pro = build_prologue(it0)
    rot = rotate()
    tail = build_tail(it0, rest)
    lab = lambda n: [I(n + ":", "label")]
    br = lambda t: [I(t, "branch")]
    seg_rest = lab("L_it1") + rest
    seg_rot = rot + br("s_cbranch_scc1 L_tail")
    seg_it0 = it0 + br("s_branch L_it1")
    seg_tail = lab("L_tail") + tail
    seq = [(x, 0, True) for x in setup + rot_p + pro]
    for J in range(4):
        if J:
            seq += [(x, J, True) for x in seg_rot]
            seq += [(x, J, 0 <= J + x.aff) for x in seg_it0]
        seq += [(x, J, 0 <= J + x.aff) for x in seg_rest]
    seq += [(x, 4, True) for x in seg_rot + seg_tail]
    errs = check_dataflow(seq)
    paths = [[setup, rot_p, pro, seg_rest, seg_rot, seg_it0, seg_rest, seg_rot, seg_it0, seg_rest, seg_rot, seg_tail]]
    nw = insert_waits(paths)
    nn = insert_nops(paths)
    firsts = {id(S.sp[g + 1]) for g in its[:NSTEP]}
    if cfg.fine is not None:
        g0, st = cfg.fine
        fg = [g0 + st * k for k in range(20)]
        firsts = {id(S.sp[g]) for g in fg}
        sys.stderr.write("fine est: " + str([sum(max(16, 8 + S.load(g)) for g in range(a_, a_ + st)) for a_ in fg[:-1]]) + "\n")
    if cfg.prof:
        def stamp(seg, first):
            out = []; i = first
            for x in seg:
                out.append(x)
                if id(x) in firsts:
                    out.append(raw(f"s_memtime s[{60+2*i}:{61+2*i}]")); i += 1
            seg[:] = out
        stamp(seg_rest, 2 if cfg.fine is None else 0); stamp(seg_it0, 0)
        out = [raw("s_memtime s[60:61]")]; i = 1; fw = True
        for x in pro:
            if fw and x.kind == "wait":
                out.append(raw(f"s_memtime s[{60+2*i}:{61+2*i}]")); i += 1
                out.append(x)
                out.append(raw(f"s_memtime s[{60+2*i}:{61+2*i}]")); i += 1
                fw = False; continue
            out.append(x)
            if (x.kind == "lds_w128" and int(x.text.split(":")[-1]) // 1024 % 2 == 1) or x.kind == "barrier":
                out.append(raw(f"s_memtime s[{60+2*i}:{61+2*i}]")); i += 1
        pro[:] = out
        setup.insert(2, raw("s_memtime s[98:99]"))
        setup.insert(2, raw("s_load_dwordx2 s[4:5], s[0:1], 40"))
        rot_p += [raw("s_mov_b32 s6, 327155712"), raw("s_mov_b32 s7, 0x20000"), raw("s_mov_b32 s100, s98"),
                  raw(f"s_lshl_b32 s3, s2, 2"), raw(f"s_add_u32 s3, s3, s{S_W}"), raw("s_mul_i32 s3, s3, 2048")]
        def dump():
            o = [raw("s_memtime s[56:57]"), raw("s_memrealtime s[58:59]"), raw("s_waitcnt lgkmcnt(0)", "wait")]
            for i in range(20): o.append(raw(f"v_writelane_b32 v11, s{60+2*i}, {i}", "valu"))
            o += [raw("v_writelane_b32 v11, s56, 20", "valu"), raw("v_writelane_b32 v11, s58, 21", "valu"), raw("v_writelane_b32 v11, s100, 22", "valu"),
                  raw("v_lshlrev_b32_e32 v0, 2, v0", "valu"),
                  raw("buffer_store_dword v11, v0, s[4:7], s3 offen", "vstore"), raw("s_nop 1"), raw("v_lshrrev_b32_e32 v0, 2, v0", "valu"), raw("s_add_u32 s3, s3, 256")]
            return o
        seg_rot[0:0] = dump()
        pro += dump() + [raw('s_memtime s[60:61]'), raw('s_memtime s[62:63]')]
        out = []; i = 0; ns = 0
        for x in seg_tail:
            out.append(x)
            if x.kind == "label" or (x.kind == "vstore" and (ns % 4) in (0, 3)) :
                out.append(raw(f"s_memtime s[{60+2*i}:{61+2*i}]")); i += 1
            if x.kind == "vstore": ns += 1
        seg_tail[:] = out
        seg_tail += [raw("s_waitcnt vmcnt(0)", "wait")] + dump()
    if cfg.dbgt:
        setup.insert(2, raw("s_memtime s[90:91]")); setup.insert(2, raw("s_memrealtime s[92:93]"))
        setup.insert(2, raw("s_load_dwordx2 s[4:5], s[0:1], 32"))
        rot_p += [raw("s_mov_b32 s6, 256"), raw("s_mov_b32 s7, 0x20000"), raw("s_mov_b32 s3, s2")]
        seg_tail += [raw(t) for t in """s_waitcnt vmcnt(0)
s_memtime s[94:95]
s_memrealtime s[96:97]
s_waitcnt lgkmcnt(0)
s_not_b32 s93, s92
v_mov_b32 v11, 0
v_mov_b32 v12, s93
v_mov_b32 v13, s96
s_mov_b64 exec, 1
buffer_atomic_umax v12, v11, s[4:7], 0 offen
buffer_atomic_umax v13, v11, s[4:7], 0 offen offset:4
s_sub_u32 s94, s94, s90
s_sub_u32 s96, s96, s92
s_and_b32 s3, s3, 7
s_min_u32 s3, s3, 6
s_lshl_b32 s3, s3, 2
v_mov_b32 v14, s94
v_mov_b32 v15, s96
buffer_atomic_umax v14, v11, s[4:7], s3 offen offset:8
buffer_atomic_umax v15, v11, s[4:7], s3 offen offset:36
s_waitcnt vmcnt(0)
s_mov_b64 exec, -1""".split("\n")]
    est = [estimate(S_) for S_ in (pro, seg_it0, seg_rest, seg_tail)]
    per = []; cur = []
    for x in seg_it0[1:] + seg_rest + seg_rot + seg_it0[:1]:
        if id(x) in firsts and len(cur) > 8: per.append(estimate(cur)); cur = []
        cur.append(x)
    per.append(estimate(cur))
    sys.stderr.write(f"per-iter est {per}\n")
    for i in range(NSTEP):
        l = [S.load(g) for g in range(its[i], (its + [G])[i + 1])]
        sys.stderr.write(f" it{i}: idle={sum(max(0,8-x) for x in l)} over={sum(max(0,x-8) for x in l)} " + "".join("0123456789abcdefghijklmnopqrstuvwxyz"[min(35,x//4)] for x in l) + "\n")
    sys.stderr.write(f"G={G} waits={nw} nops={nn} est pro/it0/rest/tail={est} job={est[1]+est[2]} mfma_floor={16*G}\n")
    return errs, [setup, rot_p, pro, seg_rest, seg_rot, seg_it0, seg_tail], S, its

HEADER = f"""; MHA forward (softmax(Q K^T / sqrt(D)) V), B=16 H=32 S=624 D=128, bf16 in / bf16 out.
; K/V stream through an LDS ring (LDS-DMA), S^T = K Q^T and O^T = V^T P^T use v_mfma_f32_16x16x32_bf16,
; Q is pre-scaled by log2(e)/sqrt(D), row sums come from a ones-row MFMA.
; Softmax guard: the offset subtracted is the row max over the first 16 keys (so the denominator is >= 1); the
; denominator is checked at run time and any wave whose offset was unsafe (sum > 2^50, inf or NaN) recomputes the job
; after the main loop with the true row max (L_slow).
; @launch grid=(256,1,1) block=(256,1,1) lds={LDS_BYTES}
.amdgcn_target "amdgcn-amd-amdhsa--gfx950"
.text
.globl {NAME}_kernel
.p2align 8
.type {NAME}_kernel,@function
{NAME}_kernel:
"""
FOOTER = f"""L_end:
    s_endpgm
.section .rodata,"a"
.p2align 6
.amdhsa_kernel {NAME}_kernel
  .amdhsa_next_free_vgpr 512
  .amdhsa_next_free_sgpr 102
  .amdhsa_accum_offset 256
  .amdhsa_group_segment_fixed_size 0
  .amdhsa_kernarg_size 48
  .amdhsa_user_sgpr_count 2
  .amdhsa_user_sgpr_kernarg_segment_ptr 1
  .amdhsa_system_sgpr_workgroup_id_x 1
.end_amdhsa_kernel
"""

def ablated(x):
    ab = cfg.ablate
    if not ab: return False
    tg = x.wr[0][1][0] if x.wr and x.wr[0][1] else None
    if "sum" in ab and x.kind == "mfma" and tg == "L": return True
    if "pv" in ab and x.kind == "mfma" and tg == "O": return True
    if "qk" in ab and x.kind == "mfma" and tg == "S": return True
    if "exp" in ab and tg == "E": return True
    if "cvt" in ab and tg == "P": return True
    if "frag" in ab and tg in ("Kf", "Vf"): return True
    if "dma" in ab and x.kind in ("dma", "dma2"): return True
    if "qs" in ab and tg in ("u0", "u1", "qs1", "qs2", "qs3"): return True
    if "qo" in ab and x.kind in ("vload", "vstore") and x.aff != 0: return True
    return False

def emit(segs, extra=""):
    s = HEADER
    for n, seg in enumerate(segs):
        for x in seg:
            if n in (3, 5) and ablated(x):
                if cfg.abnop: s += "    s_nop 0\n"
                continue
            if x.kind == "label": s += x.text + "\n"
            else: s += "    " + x.text + "\n"
    return s + extra + FOOTER

if __name__ == "__main__":
    cfg.c0 = 0
    cfg.lat = 5
    cfg.pearly = 3
    cfg.pmid = 99
    cfg.pc4 = 0
    cfg.wno = (106, 184)
    cfg.snake = True
    cfg.passes = 2
    cfg.tail0 = 11
    cfg.rl = 9
    cfg.pubB = 26
    cfg.pubA = 84
    cfg.fgap = 20
    cfg.bmar = 0
    cfg.bwin = 20
    cfg.sparse1 = True
    cfg.ptrunc = False
    cfg.flags = True
    cfg.fpub = 9
    cfg.frd = 0
    cfg.fchk = 11
    cfg.tpf = 18
    cfg.qpk = 0
    cfg.w2 = True
    cfg.pkurg = 3
    cfg.pord = 1
    cfg.barpar = 1
    cfg.cutb = 17
    cfg.ablate = ()
    cfg.abnop = True
    cfg.dsplit = 3
    cfg.accd = 3
    cfg.fine = None
    cfg.bar2 = False
    cfg.dma2 = 14
    cfg.bigsep = 3
    cfg.epi0 = 5
    cfg.epistep = 3
    cfg.rdwin = 16
    cfg.rdgap = 1
    cfg.zpre = 10
    cfg.zpost = 5
    cfg.maxwin = 16
    cfg.rdmargin = 10
    cfg.qslack = 30
    cfg.qldwin = 24
    cfg.cut = 1400
    cfg.pk_epi = True
    cfg.q0step = 40
    cfg.dlead = 20
    cfg.cpf = 1
    cfg.pro_first = 10
    cfg.pro_depth = 10
    cfg.tail_pk = 0
    cfg.tailm = 14
    for a in sys.argv[2:]:
        k, v = a.split("="); setattr(cfg, k, eval(v))
    if cfg.dsplit: COST["dma"] = 8; COST["vload"] = 8
    errs, segs, S, its = build()
    for e in errs[:30]: sys.stderr.write(e + "\n")
    sys.stderr.write(f"{len(errs)} dataflow errors\n")
    from slow2 import slow_path
    segs += [[I("L_slow:", "label")]] + slow_path(sys.modules["__main__"])
    if cfg.flags: segs += [[I("s_branch L_end", "branch")], retry_stubs()]
    open(sys.argv[1], "w").write(emit(segs))
```
